```python
import torch

def _softmax(x, axis=-1):
    return torch.softmax(x, dim=axis)
def _gelu(x):
    return torch.nn.functional.gelu(x, approximate="tanh")
def _silu(x):
    return torch.nn.functional.silu(x)
def _sigmoid(x):
    return torch.sigmoid(x)
def _layernorm(x, axis=-1, eps=1e-5):
    m = x.mean(dim=axis, keepdim=True)
    v = x.var(dim=axis, keepdim=True, unbiased=False)
    return (x - m) / torch.sqrt(v + eps)
def _scatter_add(tgt, idx, src, axis=0):
    return tgt.clone().index_add_(axis, idx, src)
def _segment_sum(src, seg, n):
    out = torch.zeros((n,) + src.shape[1:], dtype=src.dtype)
    return out.index_add_(0, seg, src)
def _pad(x, pw):
    flat = tuple(v for pair in reversed(pw) for v in pair)
    return torch.nn.functional.pad(x, flat)

kernel_name = 'parallel_sum__grouped_kv_mqa__mixer_token_mlp__prompt'

def setup_inputs():

    _w = (lambda a: (lambda t: t.to(torch.bfloat16) if t.is_floating_point() else t)(torch.as_tensor(a)))
    def _A_setup():
        B, S, D, H = 1, 2048, 640, 32
        Dh = D // H
        return {
            "x": _w((lambda *s: torch.randn(*s, dtype=torch.bfloat16) * 0.05)(B, S, D)),
            "wq": _w((lambda *s: torch.randn(*s, dtype=torch.bfloat16) * 0.05)(D, H * Dh)),
            "wk": _w((lambda *s: torch.randn(*s, dtype=torch.bfloat16) * 0.05)(D, Dh)),
            "wv": _w((lambda *s: torch.randn(*s, dtype=torch.bfloat16) * 0.05)(D, Dh)),
            "wo": _w((lambda *s: torch.randn(*s, dtype=torch.bfloat16) * 0.05)(H * Dh, D)),
        }
    _A_in = _A_setup()

    def _B_setup():
        B, S, D, F = 1, 2048, 640, 1728
        return {
            "x": _w((lambda *s: torch.randn(*s, dtype=torch.bfloat16) * 0.05)(B, S, D)),
            "w1": _w((lambda *s: torch.randn(*s, dtype=torch.bfloat16) * 1.6)(S, F) * (S ** -0.5)),
            "b1": _w((lambda *s: torch.randn(*s, dtype=torch.bfloat16) * 12.8)(F) * 0.02),
            "w2": _w((lambda *s: torch.randn(*s, dtype=torch.bfloat16) * 0.8)(F, S) * (F ** -0.5)),
            "b2": _w((lambda *s: torch.randn(*s, dtype=torch.bfloat16) * 12.8)(S) * 0.02),
        }
    _B_in = _B_setup()

    return {
        "A_x": _A_in["x"],
        "A_wq": _A_in["wq"],
        "A_wk": _A_in["wk"],
        "A_wv": _A_in["wv"],
        "A_wo": _A_in["wo"],
        "B_x": _B_in["x"],
        "B_w1": _B_in["w1"],
        "B_b1": _B_in["b1"],
        "B_w2": _B_in["w2"],
        "B_b2": _B_in["b2"],
    }

def reference(A_x, A_wq, A_wk, A_wv, A_wo, B_x, B_w1, B_b1, B_w2, B_b2):
    def _A_ref(x, wq, wk, wv, wo):
        B, S, D = x.shape
        H = 32
        Dh = D // H
        q = (lambda x, *d: x.permute(*d))((x @ wq).reshape(B, S, H, Dh), 0, 2, 1, 3)
        k = x @ wk
        v = x @ wv
        scores = torch.einsum("bhqd,bkd->bhqk", q, k) * (Dh ** -0.5)
        p = _softmax(scores, axis=-1)
        o = torch.einsum("bhqk,bkd->bhqd", p, v)
        return (lambda x, *d: x.permute(*d))(o, 0, 2, 1, 3).reshape(B, S, H * Dh) @ wo

    def _B_ref(x, w1, b1, w2, b2):
        B, S, D = x.shape
        h = _layernorm(x, axis=-1)
        u = torch.einsum("bsd,sf->bdf", h, w1) + b1
        u = _gelu(u)
        y = torch.einsum("bdf,fs->bds", u, w2) + b2
        return (lambda x, *d: x.permute(*d))(y, 0, 2, 1)

    x = A_x
    xn = _layernorm(x, axis=-1)
    return x + _A_ref(xn, A_wq, A_wk, A_wv, A_wo) + _B_ref(xn, B_w1, B_b1, B_w2, B_b2)
```

```python
import re

class Asm:
    def __init__(self):
        self.lines = []
    def __call__(self, s):
        for l in s.split("\n"):
            l = l.strip()
            if l:
                self.lines.append(l)
    def label(self, name):
        self.lines.append(name + ":")
    def text(self):
        out = []
        for l in self.lines:
            if l.endswith(":") or l.startswith("."):
                out.append(l)
            else:
                out.append("    " + l)
        return "\n".join(out) + "\n"

def vr(a, n=1):
    return f"v{a}" if n == 1 else f"v[{a}:{a+n-1}]"
def sr(a, n=1):
    return f"s{a}" if n == 1 else f"s[{a}:{a+n-1}]"

_TRANS = ("v_exp_f32", "v_log_f32", "v_rcp_f32", "v_rsq_f32", "v_sqrt_f32", "v_sin_f32", "v_cos_f32", "v_rcp_iflag_f32")
_REG = re.compile(r"^(-?\|?)?(?:abs\()?([vsa])(\d+)\)?\|?$|^(-)?([vsa])\[(\d+):(\d+)\]$")

def regs_of(op):
    op = op.strip()
    if op in ("vcc",): return {("s", "vcc")}
    if op in ("vcc_lo", "vcc_hi"): return {("s", "vcc")}
    if op in ("exec", "exec_lo", "exec_hi"): return {("s", "exec")}
    if op == "m0": return {("s", "m0")}
    m = re.match(r"^-?\|?(?:abs\()?([vsa])(\d+)\)?\|?$", op)
    if m: return {(m.group(1), int(m.group(2)))}
    m = re.match(r"^-?([vsa])\[(\d+):(\d+)\]$", op)
    if m: return {(m.group(1), i) for i in range(int(m.group(2)), int(m.group(3)) + 1)}
    return set()

def parse(line):
    line = line.split(";")[0].strip()
    if not line or line.endswith(":") or line.startswith("."):
        return None
    parts = line.split(None, 1)
    mn = parts[0]
    ops = []
    if len(parts) > 1:
        body = parts[1]
        toks = [t.strip() for t in body.split(",")]
        for t in toks:
            ops.append(t.split()[0] if t else t)
    return mn, ops, line

def classify(mn, ops, line):
    k = "other"; w = set(); r = set()
    R = lambda i: regs_of(ops[i]) if i < len(ops) else set()
    if mn.startswith("v_mfma") or mn.startswith("v_smfmac"):
        k = "mfma"; w = R(0); r = R(1) | R(2) | R(3)
        passes = 8 if ("32x32x16" in mn or "32x32x8" in mn) else 4 if "16x16x32" in mn else None
        assert passes, mn
        return dict(kind=k, w=w, r=r, ab=R(1) | R(2), c=R(3), passes=passes, mn=mn)
    if mn.startswith("v_"):
        k = "valu"
        if mn.startswith("v_cmp"):
            w = R(0); r = R(1) | R(2)
            if mn.startswith("v_cmpx"): w |= {("s", "exec")}
        elif mn.startswith("v_readfirstlane") or mn.startswith("v_readlane"):
            w = R(0); r = R(1) | R(2)
        elif mn.startswith("v_permlane") and "swap" in mn:
            w = R(0) | R(1); r = R(0) | R(1)
        elif "_co_" in mn:
            w = R(0) | R(1); r = set().union(*[R(i) for i in range(2, len(ops))])
        else:
            w = R(0); r = set().union(*[R(i) for i in range(1, len(ops))]) if len(ops) > 1 else set()
            if mn.startswith(("v_fmac", "v_dot2c", "v_pk_fmac", "v_writelane")) or "UNUSED_PRESERVE" in line or "_dpp" in mn or "row_" in line or "quad_perm" in line:
                r |= R(0)
            if mn.startswith("v_cndmask") and len(ops) == 3:
                r |= {("s", "vcc")}
        return dict(kind=k, w=w, r=r, trans=mn.replace("_e32","").replace("_e64","") in _TRANS, dpp=("_dpp" in mn or "row_" in line or "quad_perm" in line),
                    perml=mn.startswith("v_permlane"), rl=mn.startswith(("v_readfirstlane", "v_readlane")), dot=mn.startswith("v_dot"), sdwa=("sdwa" in mn), mn=mn)
    if mn.startswith(("buffer_", "global_", "flat_")):
        k = "vmem"
        lds = " lds" in line or "_lds_" in mn
        allr = set().union(*[regs_of(o) for o in ops]) if ops else set()
        if "load" in mn and not lds:
            w = R(0); r = allr - R(0) | set().union(*[R(i) for i in range(1, len(ops))])
        elif "atomic" in mn and (" sc0" in line):
            w = R(0); r = allr
        else:
            r = allr
        wide = ("store" in mn and ("x3" in mn or "x4" in mn))
        sd = set()
        if wide:
            sd = R(0) if mn.startswith("buffer_") else R(1)
        if lds: r |= {("s", "m0")}
        return dict(kind=k, w=w, r=r, lds=lds, widestore=sd, mn=mn)
    if mn.startswith("ds_"):
        k = "ds"
        if mn.startswith(("ds_read", "ds_bpermute", "ds_permute", "ds_swizzle")) or "_rtn" in mn:
            w = R(0); r = set().union(*[R(i) for i in range(1, len(ops))])
        else:
            r = set().union(*[R(i) for i in range(len(ops))])
        return dict(kind=k, w=w, r=r, mn=mn)
    if mn.startswith("s_"):
        k = "salu"
        if mn.startswith(("s_cmp", "s_cbranch", "s_branch", "s_waitcnt", "s_barrier", "s_nop", "s_endpgm", "s_setprio", "s_sleep", "s_bitcmp")):
            r = set().union(*[regs_of(o) for o in ops]) if ops else set()
        else:
            w = R(0); r = set().union(*[R(i) for i in range(1, len(ops))]) if len(ops) > 1 else set()
            if "saveexec" in mn: w |= {("s", "exec")}
        n = 1
        if mn == "s_nop": n = int(ops[0], 0) + 1
        return dict(kind=k, w=w, r=r, states=n, mn=mn)
    raise ValueError("unknown " + line)

def need(p, c):
    n = 0
    pk, ck = p["kind"], c["kind"]
    vw = {x for x in p["w"] if x[0] in "va"}
    sw = {x for x in p["w"] if x[0] == "s"}
    if pk == "valu":
        if ck == "mfma" and (vw & c["r"]): n = max(n, 2)
        if ck == "mfma" and ("s", "exec") in sw: n = max(n, 4)
        if ck == "valu":
            if p.get("trans") and not c.get("trans") and (vw & c["r"]): n = max(n, 1)
            if p.get("trans") and c.get("trans") and (vw & c["r"]): n = max(n, 1)
            if c.get("dpp") and (vw & c["r"]): n = max(n, 2)
            if c.get("dpp") and ("s", "exec") in sw: n = max(n, 5)
            if c.get("perml") and (vw & c["r"]): n = max(n, 2)
            if c.get("perml") and ("s", "exec") in sw: n = max(n, 4)
            if c.get("rl") and (vw & c["r"]): n = max(n, 1)
            if c.get("rl") and (sw & c["r"]): n = max(n, 4)
            if c.get("rl") and ("s", "exec") in sw: n = max(n, 4)
            if sw & c["r"]: n = max(n, 2)
            if p.get("sdwa") and (vw & (c["r"] | c["w"])): n = max(n, 1)
            if p.get("dot") and (vw & (c["r"] | c["w"])):
                if not (c.get("dot") and c["mn"] == p["mn"] and False): n = max(n, 3) if not (c.get("dot") and c["mn"] == p["mn"] and not (vw & (c["r"] - c["w"]))) else n
        if ck == "vmem" and (sw & c["r"]): n = max(n, 5)
        if ck in ("vmem", "ds") and p.get("dot") and (vw & c["r"]): n = max(n, 3)
        if ck in ("vmem", "ds") and p.get("trans") and (vw & c["r"]): n = max(n, 1)
        if ck == "salu" and (sw & c["r"]): n = max(n, 1)
    if pk == "salu":
        if ("s", "m0") in sw and ck == "vmem" and c.get("lds"): n = max(n, 1)
    if pk == "vmem" and p.get("widestore"):
        if ck == "valu" and (p["widestore"] & c["w"]): n = max(n, 2)
        elif p["widestore"] & c["w"]: n = max(n, 1)
    if pk == "mfma":
        ps = p["passes"]
        t = {4: (6, 8, 3), 8: (10, 12, 7)}[ps]
        D = p["w"]
        if ck == "mfma":
            if D & c["ab"]: n = max(n, t[1])
            if D & c["c"]:
                if not (c["c"] == D and c["passes"] == ps): n = max(n, t[0])
            elif D & c["w"]:
                n = max(n, t[0])
        else:
            if D & (c["r"] | c["w"]): n = max(n, t[1])
            if ck == "valu" and (p["c"] & c["w"]): n = max(n, t[2])
    return n

def check_hazards(lines, name="", window=24):
    ins = []
    labels = {}
    for l in lines:
        if l.endswith(":") and not l.startswith("."):
            labels[l[:-1]] = len(ins)
            continue
        p = parse(l)
        if p is None: continue
        c = classify(*p)
        c["line"] = p[2]; c["ops"] = p[1]
        ins.append(c)
    n = len(ins)
    succ = []
    for i, c in enumerate(ins):
        s = []
        mn = c["mn"]
        if mn == "s_endpgm": pass
        elif mn == "s_branch": s.append(labels[c["ops"][0]])
        elif mn.startswith("s_cbranch"):
            s.append(labels[c["ops"][0]]); s.append(i + 1)
        else: s.append(i + 1)
        succ.append([x for x in s if x < n])
    errs = []
    for i, p in enumerate(ins):
        if p["kind"] == "salu" and ("s", "m0") not in p["w"]: continue
        if p["kind"] == "ds": continue
        if p["kind"] == "vmem" and not p.get("widestore"): continue
        stack = [(j, 0) for j in succ[i]]
        seen = {}
        while stack:
            j, d = stack.pop()
            if d >= 20: continue
            if seen.get(j, 99) <= d: continue
            seen[j] = d
            c = ins[j]
            k = need(p, c)
            if k > d:
                errs.append(f"{name}: need {k} have {d}: [{p['line']}] -> [{c['line']}]")
            st = c.get("states", 1)
            for t in succ[j]:
                stack.append((t, d + st))
    return errs
```

```python
from asmlib import *
from layout import *

V_L16 = 1
V_AV  = 2
V_AK1 = 3
V_T0  = 4
QA0, QA1, QB0, QB1 = 8, 12, 16, 20
K0 = [24, 32]; K1 = [28, 36]
VV = [[40, 44], [48, 52]]
PA, PB = 56, 64
SA, SB, OA, OB = 72, 88, 104, 120
E = 136
TMP = 144
V_FLAG = 160
V_ONE = 161
V_POLL = 162
V_PADDR = 163
NV_ATT = 164

CHUNK = 12288
T_BOUND = 48.0

def f2u(x):
    import struct
    return struct.unpack("<I", struct.pack("<f", x))[0]

def mfma32(d, a, b, c):
    cs = "0" if c is None else vr(c, 16)
    return f"v_mfma_f32_32x32x16_bf16 {vr(d,16)}, {vr(a,4)}, {vr(b,4)}, {cs}"

def valu_stream(S_, P_, Pprev, lag):
    out = []
    if not lag:
        for k in range(4):
            for i in range(4):
                out.append(f"v_exp_f32 {vr(S_+4*k+i)}, {vr(S_+4*k+i)}")
            out.append(f"v_cvt_pk_bf16_f32 {vr(P_+2*k)}, {vr(S_+4*k)}, {vr(S_+4*k+1)}")
            out.append(f"v_cvt_pk_bf16_f32 {vr(P_+2*k+1)}, {vr(S_+4*k+2)}, {vr(S_+4*k+3)}")
    else:
        for k in range(4):
            e = E + 4 * (k & 1)
            ep = E + 4 * ((k + 1) & 1)
            for i in range(4):
                out.append(f"v_exp_f32 {vr(e+i)}, {vr(S_+4*k+i)}")
            pp = (Pprev + 6) if k == 0 else (P_ + 2 * (k - 1))
            out.append(f"v_cvt_pk_bf16_f32 {vr(pp)}, {vr(ep)}, {vr(ep+1)}")
            out.append(f"v_cvt_pk_bf16_f32 {vr(pp+1)}, {vr(ep+2)}, {vr(ep+3)}")
    return out

def emit_phase(a, mf, aux, valu, pat):
    p = 0
    for k in range(4):
        a(mf[k])
        for x in aux[k]: a(x)
        for x in valu[p:p + pat[k]]: a(x)
        p += pat[k]
    assert p == len(valu)

def attn_prologue(a, S, sync, tag):
    ws, w, wg = S["ws"], S["w"], S["wg"]
    srdw, srdk = S["srdw"], S["srdk"]
    t0, t1, t2 = S["t0"], S["t1"], S["t2"]
    so = S["soff"]; wb = S["wb"]
    a(f"""
    v_and_b32 v{V_T0}, 63, v0
    v_lshlrev_b32 v{V_L16}, 4, v{V_T0}
    s_add_u32 s{srdk}, s{ws}, {KV_OFF}
    s_addc_u32 s{srdk+1}, s{ws+1}, 0
    s_and_b32 s{srdk+1}, s{srdk+1}, 0xffff
    s_mov_b32 s{srdk+2}, {KV_SZ}
    s_mov_b32 s{srdk+3}, 0x20000
    s_mul_i32 s{wb}, s{w}, 3072
    s_mov_b32 s{so}, s{wb}
    """)
    for c in range(3):
        a(f"s_add_u32 m0, s{wb}, {c*CHUNK}")
        a("s_nop 0")
        for i in range(3):
            a(f"buffer_load_dwordx4 v{V_L16}, {sr(srdk,4)}, s{so} offen offset:{i*1024} lds")
        a(f"s_add_u32 s{so}, s{so}, {CHUNK}")
    a(f"""
    s_mov_b32 s{srdw}, s{ws}
    s_and_b32 s{srdw+1}, s{ws+1}, 0xffff
    s_mov_b32 s{srdw+2}, {WS_END}
    s_mov_b32 s{srdw+3}, 0x20000
    v_and_b32 v{V_T0+1}, 31, v0
    v_bfe_u32 v{V_T0+2}, v0, 5, 1          ; hf
    v_lshlrev_b32 v{TMP}, 3, v{V_T0+1}
    v_lshl_add_u32 v{TMP+1}, v{V_T0+2}, 14, v{TMP}
    v_lshl_add_u32 v{TMP+2}, v{V_T0+2}, 30, v{TMP}
    s_and_b32 s{t0}, s{wg}, 3
    s_lshl_b32 s{t0}, s{t0}, 2
    s_add_u32 s{t0}, s{t0}, s{w}
    s_lshr_b32 s{t1}, s{wg}, 2
    s_mul_i32 s{t2}, s{t0}, {10*16384}
    s_lshl_b32 s{S['qo']}, s{t1}, 8
    s_add_u32 s{t2}, s{t2}, s{S['qo']}
    s_mul_i32 s{S['oo']}, s{t0}, {5*32768}
    s_lshl_b32 s{t1}, s{t1}, 9
    s_add_u32 s{S['oo']}, s{S['oo']}, s{t1}
    s_add_u32 s{S['oo']}, s{S['oo']}, {OF_OFF}
    """)
    assert QP_OFF == 0
    for (q0, q1, hoff) in ((QA0, QA1, 0), (QB0, QB1, 5)):
        a(f"s_add_u32 s{t0}, s{t2}, {hoff*16384}")
        a(f"buffer_load_dwordx2 {vr(q0,2)}, v{TMP+1}, {sr(srdw,4)}, s{t0} offen")
        a(f"s_add_u32 s{t0}, s{t2}, {(hoff+2)*16384}")
        a(f"buffer_load_dwordx2 {vr(q0+2,2)}, v{TMP+1}, {sr(srdw,4)}, s{t0} offen")
        a(f"s_add_u32 s{t0}, s{t2}, {(hoff+4)*16384}")
        a(f"buffer_load_dwordx2 {vr(q1,2)}, v{TMP+2}, {sr(srdw,4)}, s{t0} offen")
    a(f"""
    v_lshlrev_b32 v{TMP+3}, 2, v{V_T0}
    s_mov_b32 s{t0}, {KM_OFF}
    buffer_load_dword v{TMP+4}, v{TMP+3}, {sr(srdw,4)}, s{t0} offen
    v_min_u32 v{V_AV}, 27, v{V_T0+1}
    v_lshlrev_b32 v{V_AV}, 4, v{V_AV}
    v_mul_u32_u24 v{TMP+5}, {V_PLANE}, v{V_T0+2}
    v_add_u32 v{V_AV}, v{V_AV}, v{TMP+5}
    v_add_u32 v{V_AV}, {V_OFF_T}, v{V_AV}
    v_add_u32 v{V_AK1}, {K1_OFF_T}, v{TMP}
    v_cmp_eq_u32 vcc, 1, v{V_T0+2}
    v_mov_b32 v{TMP+5}, {V_OFF_T + 27*16}
    v_mov_b32 v{K1[0]+2}, 0x3f80
    v_cndmask_b32 v{V_AK1}, v{V_AK1}, v{TMP+5}, vcc
    v_mov_b32 v{K1[0]+3}, 0
    v_mov_b32 v{K1[1]+2}, 0x3f80
    v_mov_b32 v{K1[1]+3}, 0
    v_lshlrev_b32 v{V_T0+3}, 4, v{V_T0+1}
    v_lshl_add_u32 v{V_T0+3}, v{V_T0+2}, 15, v{V_T0+3}
    """)
    for i in range(16):
        a(f"v_mov_b32 v{OA+i}, 0")
        a(f"v_mov_b32 v{OB+i}, 0")
    for i in range(8):
        a(f"v_mov_b32 v{PB+i}, 0")
        a(f"v_mov_b32 v{VV[1][0]+i}, 0")
        a(f"v_mov_b32 v{E+i}, 0")
    if sync == "flag":
        a(f"s_lshl_b32 s{t0}, s{w}, 8")
        a(f"s_add_u32 s{t0}, s{t0}, {S['flag_addr']}")
        a(f"v_lshl_add_u32 v{V_FLAG}, v{V_T0}, 2, s{t0}")
        a(f"v_and_b32 v{V_PADDR}, 3, v0")
        a(f"v_mul_u32_u24 v{V_PADDR}, 260, v{V_PADDR}")
        a(f"v_add_u32 v{V_PADDR}, {S['flag_addr']}, v{V_PADDR}")
        a(f"v_mov_b32 v{V_ONE}, 0")
        a(f"ds_write_b32 v{V_FLAG}, v{V_ONE}")
        a(f"v_mov_b32 v{V_ONE}, 1")
        a("s_waitcnt lgkmcnt(0)")
    a("s_waitcnt vmcnt(0)")
    km = TMP + 4
    for r in (8, 4, 2, 1):
        a(f"s_nop 1")
        a(f"v_max_f32_dpp v{km}, v{km}, v{km} row_ror:{r} row_mask:0xf bank_mask:0xf")
    for sw in ("v_permlane16_swap_b32", "v_permlane32_swap_b32"):
        a(f"v_mov_b32 v{km+1}, v{km}")
        a("s_nop 1")
        a(f"{sw} v{km}, v{km+1}")
        a("s_nop 1")
        a(f"v_max_f32 v{km}, v{km}, v{km+1}")
    for (q0, q1, t) in ((QA0, QA1, TMP + 6), (QB0, QB1, TMP + 8)):
        a(f"v_dot2_f32_bf16 v{t}, v{q0}, v{q0}, 0")
        for r in (q0 + 1, q0 + 2, q0 + 3, q1, q1 + 1):
            a(f"v_dot2_f32_bf16 v{t}, v{r}, v{r}, v{t}")
        a("s_nop 2")
        a(f"v_mov_b32 v{t+1}, v{t}")
        a("s_nop 1")
        a(f"v_permlane32_swap_b32 v{t}, v{t+1}")
        a("s_nop 1")
        a(f"v_add_f32 v{t}, v{t}, v{t+1}")
        a(f"v_mul_f32 v{t}, v{t}, v{km}")
        a(f"v_sqrt_f32 v{t}, v{t}")
        a("s_nop 0")
        a(f"v_sub_f32 v{t+1}, 0, v{t}")
        a(f"v_cvt_pk_bf16_f32 v{t+1}, v{t+1}, 0")
        a(f"v_cndmask_b32 v{q1+2}, v{t+1}, 0, vcc")
        a(f"v_mov_b32 v{q1+3}, 0")
    a(f"v_max_f32 v{TMP+6}, v{TMP+6}, v{TMP+8}")
    a(f"v_mov_b32 v{TMP+7}, {hex(f2u(T_BOUND))}")
    a(f"v_cmp_nle_f32 vcc, v{TMP+6}, v{TMP+7}")

def ds_k(slot, tile, buf):
    o = slot * CHUNK + tile * TILE_B
    return [f"ds_read_b128 {vr(K0[buf],4)}, v{V_L16} offset:{o}",
            f"ds_read_b64 {vr(K1[buf],2)}, v{V_AK1} offset:{o}"]
def ds_v(slot, tile, buf):
    o = slot * CHUNK + tile * TILE_B
    return [f"ds_read_b128 {vr(VV[buf][0],4)}, v{V_AV} offset:{o}",
            f"ds_read_b128 {vr(VV[buf][1],4)}, v{V_AV} offset:{o+2*V_PLANE}"]

def attn_main(a, S, sync, tag, pat=(6,6,6,6), lag=False, prio=None, nods=False, nodma=False, nowait=False, clk=False):
    srdk, so, wb = S["srdk"], S["soff"], S["wb"]
    cnt, tgt = S["cnt"], S["tgt"]
    for x in ds_k(0, 0, 0): a(x)
    a("s_waitcnt lgkmcnt(0)")
    a(mfma32(SA, K0[0], QA0, None))
    a(mfma32(SA, K1[0], QA1, SA))
    for x in ds_k(0, 1, 1): a(x)
    for x in ds_v(0, 0, 0): a(x)
    a(f"s_mov_b32 s{cnt}, 4")
    a(f"s_mov_b32 s{tgt}, 1")
    a("s_nop 7")
    a(".p2align 6")
    a.label(f"{tag}_loop")
    for c in range(4):
        for t in range(4):
            j = 4 * c + t
            kb, vb = j & 1, j & 1
            mf = [mfma32(SB, K0[kb], QB0, None), mfma32(SB, K1[kb], QB1, SB),
                  mfma32(OB, VV[vb ^ 1][0], PB, OB), mfma32(OB, VV[vb ^ 1][1], PB + 4, OB)]
            aux = [[], [], [], ["s_waitcnt lgkmcnt(0)"]]
            dslot = (c + 3) & 3
            dma = [f"buffer_load_dwordx4 v{V_L16}, {sr(srdk,4)}, s{so} offen offset:{i*1024} lds" for i in range(3)]
            if sync == "barrier":
                if t == 0:
                    aux[0] = ["s_waitcnt vmcnt(3)"]
                    aux[1] = ["s_barrier"]
                    aux[2] = [f"s_add_u32 m0, s{wb}, {dslot*CHUNK}"]
                if t == 1:
                    aux[0] = [dma[0]]; aux[1] = [dma[1]]; aux[2] = [dma[2]]
                if t == 2:
                    aux[0] = [f"s_add_u32 s{so}, s{so}, {CHUNK}"]
            else:
                if t == 0:
                    aux[0] = ["s_waitcnt vmcnt(3)"]
                    aux[1] = [f"ds_add_u32 v{V_FLAG}, v{V_ONE}"]
                    aux[2] = [f"s_add_u32 m0, s{wb}, {dslot*CHUNK}"]
                if t == 1:
                    aux[2] = [f"ds_read_b32 v{V_POLL}, v{V_PADDR}"]
                if t == 2:
                    aux[0] = [f"v_cmp_gt_u32 vcc, s{tgt}, v{V_POLL}"]
                    aux[2] = [f"s_cbranch_vccnz {tag}_spin{c}"]
                    aux[3] = [f"LABEL {tag}_back{c}", "s_waitcnt lgkmcnt(0)"]
                if t == 3:
                    aux[0] = [dma[0]]; aux[1] = [dma[1]]; aux[2] = [dma[2]]
            if nodma: aux = [[], [], [], ["s_waitcnt lgkmcnt(0)"]]
            if nowait: aux[3] = []
            va = valu_stream(SA, PA, PB, lag)
            emit_phase_l(a, mf, aux, va, pat)
            mf = [mfma32(SA, K0[kb ^ 1], QA0, None), mfma32(SA, K1[kb ^ 1], QA1, SA),
                  mfma32(OA, VV[vb][0], PA, OA), mfma32(OA, VV[vb][1], PA + 4, OA)]
            j2 = j + 2; j1 = j + 1
            dk = ds_k((j2 >> 2) & 3, j2 & 3, kb)
            dv = ds_v((j1 >> 2) & 3, j1 & 3, vb ^ 1)
            aux = [[dk[0]], [dk[1]], [dv[0]], [dv[1]]]
            if nods: aux = [[], [], [], []]
            if sync == "flag" and t == 3:
                aux[0].append(f"s_add_u32 s{so}, s{so}, {CHUNK}")
                aux[1].append(f"s_add_u32 s{tgt}, s{tgt}, 1")
            if c == 3 and t == 3:
                aux[2].append(f"s_sub_u32 s{cnt}, s{cnt}, 1")
                aux[3].append(f"s_cmp_lg_u32 s{cnt}, 0")
            va = valu_stream(SB, PB, PA, lag)
            emit_phase_l(a, mf, aux, va, pat)
    if clk:
        a("s_mov_b32 s56, s52"); a("s_mov_b32 s57, s53")
        a("s_mov_b32 s52, s48"); a("s_mov_b32 s53, s49")
        a("s_mov_b32 s48, s44"); a("s_mov_b32 s49, s45")
        a("s_memtime s[44:45]"); a("s_memrealtime s[46:47]"); a("s_waitcnt lgkmcnt(0)"); a("s_mov_b32 s45, s46")
    a(f"s_cbranch_scc1 {tag}_loop")
    if lag:
        ep = E + 4
        a(f"v_cvt_pk_bf16_f32 {vr(PB+6)}, {vr(ep)}, {vr(ep+1)}")
        a(f"v_cvt_pk_bf16_f32 {vr(PB+7)}, {vr(ep+2)}, {vr(ep+3)}")
    a("s_nop 1")
    a(mfma32(OB, VV[1][0], PB, OB))
    a(mfma32(OB, VV[1][1], PB + 4, OB))

def attn_spins(a, S, tag):
    for c in range(4):
        a.label(f"{tag}_spin{c}")
        a(f"ds_read_b32 v{V_POLL}, v{V_PADDR}")
        a("s_waitcnt lgkmcnt(0)")
        a(f"v_cmp_gt_u32 vcc, s{S['tgt']}, v{V_POLL}")
        a("s_nop 4")
        a(f"s_cbranch_vccnz {tag}_spin{c}")
        a(f"s_branch {tag}_back{c}")

def emit_phase_l(a, mf, aux, valu, pat):
    p = 0
    for k in range(4):
        a(mf[k])
        for x in aux[k]:
            if x.startswith("LABEL "): a.label(x[6:])
            else: a(x)
        for x in valu[p:p + pat[k]]: a(x)
        p += pat[k]
    assert p == len(valu)

def attn_epilogue(a, S):
    srdw, oo, t0 = S["srdw"], S["oo"], S["t0"]
    a("s_waitcnt vmcnt(0) lgkmcnt(0)")
    a("s_nop 7")
    a("s_nop 3")
    for (O, t) in ((OA, E), (OB, E + 2)):
        a(f"v_mov_b32 v{t}, v{O+8}")
        a(f"v_mov_b32 v{t+1}, v{O+8}")
        a("s_nop 1")
        a(f"v_permlane32_swap_b32 v{t}, v{t+1}")
        a("s_nop 1")
        a(f"v_rcp_f32 v{t+1}, v{t+1}")
        a("s_nop 0")
        for i in range(12):
            a(f"v_mul_f32 v{O+i}, v{O+i}, v{t+1}")
    def pk(d, s):
        a(f"v_cvt_pk_bf16_f32 v{d}, v{s}, v{s+1}")
        a(f"v_cvt_pk_bf16_f32 v{d+1}, v{s+2}, v{s+3}")
    pk(TMP, OA); pk(TMP + 2, OA + 4); pk(TMP + 4, OA + 8)
    pk(TMP + 6, OB); pk(TMP + 12, OB + 4); pk(TMP + 10, OB + 8)
    a("s_nop 1")
    for i in range(2):
        a(f"v_permlane32_swap_b32 v{TMP+i}, v{TMP+2+i}")
    for i in range(2):
        a(f"v_permlane32_swap_b32 v{TMP+6+i}, v{TMP+12+i}")
    a("s_nop 1")
    for i in range(2):
        a(f"v_permlane32_swap_b32 v{TMP+4+i}, v{TMP+12+i}")
    a("s_nop 1")
    for i in range(2):
        a(f"v_permlane32_swap_b32 v{TMP+12+i}, v{TMP+8+i}")
    a("s_nop 1")
    a(f"buffer_store_dwordx4 {vr(TMP,4)}, v{V_T0+3}, {sr(srdw,4)}, s{oo} offen")
    a(f"s_add_u32 s{t0}, s{oo}, {2*32768}")
    a(f"buffer_store_dwordx4 {vr(TMP+4,4)}, v{V_T0+3}, {sr(srdw,4)}, s{t0} offen")
    a(f"s_add_u32 s{t0}, s{oo}, {4*32768}")
    a("s_mov_b32 exec_hi, 0")
    a(f"buffer_store_dwordx4 {vr(TMP+8,4)}, v{V_T0+3}, {sr(srdw,4)}, s{t0} offen")

def kd(name, nv, ns=102):
    nv4 = (nv + 3) // 4 * 4
    return f""".amdhsa_kernel {name}
  .amdhsa_next_free_vgpr {nv}
  .amdhsa_next_free_sgpr {ns}
  .amdhsa_accum_offset {nv4}
  .amdhsa_group_segment_fixed_size 0
  .amdhsa_kernarg_size 104
  .amdhsa_user_sgpr_count 2
  .amdhsa_user_sgpr_kernarg_segment_ptr 1
  .amdhsa_system_sgpr_workgroup_id_x 1
  .amdhsa_float_denorm_mode_32 3
.end_amdhsa_kernel
"""

SREG = dict(ws=4, w=6, wg=2, srdw=8, srdk=12, t0=16, t1=17, t2=18, soff=19, wb=20, qo=21, oo=22, cnt=23, tgt=24, flag_addr=4*CHUNK)

def attn_kernel(name, sync="barrier", stamp=False, **kw):
    a = Asm()
    S = SREG
    a.label(name)
    a(f"""
    s_cmp_ge_u32 s2, 256
    s_cbranch_scc1 {name}_end
    s_load_dwordx2 s[4:5], s[0:1], 96
    v_lshrrev_b32 v1, 6, v0
    s_nop 0
    v_readfirstlane_b32 s6, v1
    """)
    if stamp:
        a("s_memtime s[30:31]")
        a("s_memrealtime s[32:33]")
    a("s_waitcnt lgkmcnt(0)")
    attn_prologue(a, S, sync, name)
    a("s_barrier")
    if stamp:
        a("s_memtime s[34:35]")
    attn_main(a, S, sync, name, **kw)
    if stamp:
        a("s_memtime s[36:37]")
    attn_epilogue(a, S)
    if stamp:
        a(f"""
        s_mov_b64 exec, -1
        s_waitcnt vmcnt(0)
        s_memtime s[38:39]
        s_memrealtime s[40:41]
        s_waitcnt lgkmcnt(0)
        s_sub_u32 s34, s34, s30
        s_sub_u32 s36, s36, s30
        s_sub_u32 s38, s38, s30
        s_sub_u32 s40, s40, s32
        v_mov_b32 v8, s34
        v_mov_b32 v9, s36
        v_mov_b32 v10, s38
        v_mov_b32 v11, s40
        s_lshl_b32 s16, s2, 2
        s_add_u32 s16, s16, s6
        s_lshl_b32 s16, s16, 4
        s_add_u32 s16, s16, {WS_END - 65536}
        v_mov_b32 v12, 0
        buffer_store_dwordx4 v[8:11], v12, s[8:11], s16 offen
        """)
        if kw.get("clk"):
            a("s_sub_u32 s16, s16, 65536")
            for i, r in enumerate((56, 52, 48, 44)):
                a(f"s_sub_u32 s{r}, s{r}, s30"); a(f"s_sub_u32 s{r+1}, s{r+1}, s32")
            a("s_nop 2")
            a("v_mov_b32 v8, s56\nv_mov_b32 v9, s57\nv_mov_b32 v10, s52\nv_mov_b32 v11, s53")
            a("buffer_store_dwordx4 v[8:11], v12, s[8:11], s16 offen")
            a("s_sub_u32 s16, s16, 65536")
            a("s_nop 2")
            a("v_mov_b32 v8, s48\nv_mov_b32 v9, s49\nv_mov_b32 v10, s44\nv_mov_b32 v11, s45")
            a("buffer_store_dwordx4 v[8:11], v12, s[8:11], s16 offen")
    a.label(f"{name}_end")
    a("s_endpgm")
    if sync == "flag":
        attn_spins(a, S, name)
    errs = check_hazards(a.lines, name)
    for e in errs: print("HAZARD", e)
    return a.text(), kd(name, NV_ATT), (256, 256, 4 * CHUNK + 1024)
```

```python
HDR = """; Kernarg layout (104 bytes): A_x 0, A_wq 8, A_wk 16, A_wv 24, A_wo 32, B_x 40, B_w1 48, B_b1 56, B_w2 64, B_b2 72, out 80, debug 88, ws 96
"""
def build(kernels):
    s = HDR
    for name, text, kd, (g, b, l) in kernels:
        s += f"; @launch kernel={name} grid=({g},1,1) block=({b},1,1) lds={l}\n"
    s += '.amdgcn_target "amdgcn-amd-amdhsa--gfx950"\n.text\n'
    seen = set()
    for name, text, kd, _ in kernels:
        if name in seen: continue
        seen.add(name)
        s += f".globl {name}\n.p2align 8\n.type {name},@function\n" + text
    s += '.section .rodata,"a"\n'
    seen = set()
    for name, text, kd, _ in kernels:
        if name in seen: continue
        seen.add(name)
        s += ".p2align 6\n" + kd
    return s
```

```python
from asmlib import *
from layout import *

def mfma16(d, a, b, c):
    cs = "0" if c is None else vr(c, 4)
    return f"v_mfma_f32_16x16x32_bf16 {vr(d,4)}, {vr(a,4)}, {vr(b,4)}, {cs}"

def srd(a, d, lo, hi, off, size):
    if off:
        a(f"s_add_u32 s{d}, s{lo}, {off}")
        a(f"s_addc_u32 s{d+1}, s{hi}, 0")
        a(f"s_and_b32 s{d+1}, s{d+1}, 0xffff")
    else:
        a(f"s_mov_b32 s{d}, s{lo}")
        a(f"s_and_b32 s{d+1}, s{hi}, 0xffff")
    a(f"s_mov_b32 s{d+2}, {size}")
    a(f"s_mov_b32 s{d+3}, 0x20000")

class G:
    def __init__(self, NB=3, ff=False, vbase=8):
        self.NB = NB
        v = vbase
        self.ACC = v; v += 80
        self.FB = []
        for i in range(NB): self.FB.append(v); v += 20
        if ff:
            self.F2 = []
            for i in range(NB): self.F2.append(v); v += 16
            self.TB = self.F2[0]
        else:
            self.TB = v; v += 16
        self.vT = v; v += 1
        self.vF = v; v += 1
        self.vR = v; v += 4
        v += v & 1
        self.tmp = v; v += 12
        self.nv = v

RING = 4096
REGION = 15360

def setup_lane(a, g, S, ldsbase):
    w = S["w"]; t0 = S["t0"]; t = g.tmp
    a(f"""
    v_and_b32 v{t}, 63, v0
    v_and_b32 v{t+1}, 15, v0                 ; i4 / r
    v_bfe_u32 v{t+2}, v0, 4, 2               ; kg
    s_mul_i32 s{S['lb']}, s{w}, {REGION}
    s_add_u32 s{S['lb']}, s{S['lb']}, {ldsbase}
    """)
    a(f"""
    v_lshrrev_b32 v{t+3}, 1, v{t+2}
    v_lshlrev_b32 v{t+3}, 4, v{t+3}
    v_and_b32 v{t+4}, 1, v{t+2}
    v_lshl_add_u32 v{t+3}, v{t+4}, 2, v{t+3}
    v_lshrrev_b32 v{t+5}, 2, v{t+1}
    v_add_u32 v{t+3}, v{t+3}, v{t+5}
    v_lshlrev_b32 v{t+3}, 7, v{t+3}          ; slot*128
    v_and_b32 v{t+5}, 3, v{t+1}
    v_lshl_add_u32 v{t+3}, v{t+5}, 3, v{t+3} ; + (i4&3)*8
    v_add_u32 v{t+3}, s{S['lb']}, v{t+3}
    v_lshrrev_b32 v{t+5}, 3, v{t+1}
    v_lshl_add_u32 v{t+5}, v{t+4}, 1, v{t+5} ; swz
    """)
    for b in range(4):
        a(f"s_add_u32 s{t0}, s{w}, {b}")
        a(f"s_and_b32 s{t0}, s{t0}, 3")
        a(f"v_xor_b32 v{t+6}, s{t0}, v{t+5}")
        a(f"v_lshl_add_u32 v{g.vR+b}, v{t+6}, 5, v{t+3}")

def setup_T(a, g, stride):
    t = g.tmp
    a(f"""
    v_bfe_u32 v{t+6}, v0, 3, 2
    v_bfe_u32 v{t+7}, v0, 5, 1
    v_lshl_add_u32 v{t+6}, v{t+7}, 3, v{t+6}
    v_mul_u32_u24 v{g.vT}, {stride}, v{t+6}
    v_and_b32 v{t+6}, 7, v0
    v_lshlrev_b32 v{t+7}, 1, v{t+2}
    v_xor_b32 v{t+6}, v{t+6}, v{t+7}
    v_lshl_add_u32 v{g.vT}, v{t+6}, 4, v{g.vT}
    """)

def setup_F(a, g, vdst, plane):
    t = g.tmp
    a(f"""
    v_mul_u32_u24 v{vdst}, {plane}, v{t+2}
    v_lshl_add_u32 v{vdst}, v{t+1}, 4, v{vdst}
    """)

def issue(a, g, S, b, P):
    so4 = S["so4"]; sf = S["sf"]
    if P["mode"] == "TF":
        a(f"s_add_u32 m0, s{S['lb']}, {b*RING}")
        a(f"buffer_load_dwordx4 {vr(g.FB[b],4)}, v{g.vF}, {sr(P['srdF'],4)}, s{sf} offen")
        for i in range(4):
            a(f"buffer_load_dwordx4 v{g.vT}, {sr(P['srdT'],4)}, s{so4+i} offen offset:{i*1024} lds")
        for j in range(1, 5):
            a(f"buffer_load_dwordx4 {vr(g.FB[b]+4*j,4)}, v{g.vF}, {sr(P['srdF'],4)}, s{sf} offen offset:{j*256}")
        inc = 32 * P["W"] * P["strideT"]
    else:
        for i in range(4):
            a(f"buffer_load_dwordx4 {vr(g.F2[b]+4*i,4)}, v{g.vT}, {sr(P['srdT'],4)}, s{so4+i} offen")
        for j in range(5):
            a(f"buffer_load_dwordx4 {vr(g.FB[b]+4*j,4)}, v{g.vF}, {sr(P['srdF'],4)}, s{sf} offen offset:{j*256}")
        inc = 4 * P["W"] * P["plane2"]
    for i in range(4):
        a(f"s_add_u32 s{so4+i}, s{so4+i}, {inc}")
    a(f"s_add_u32 s{sf}, s{sf}, {4*P['W']*P['planeF']}")

def init_offsets(a, g, S, P, sTbase, sFbase):
    so4 = S["so4"]; sf = S["sf"]; w = S["w"]; t0 = S["t0"]
    if P["mode"] == "TF":
        st = P["strideT"]
        a(f"s_mul_i32 s{t0}, s{w}, {32*st}")
        a(f"s_add_u32 s{so4}, s{t0}, s{sTbase}")
        for i in range(1, 4):
            a(f"s_add_u32 s{so4+i}, s{so4}, {(16*(i>>1)+4*(i&1))*st - 1024*i}")
    else:
        a(f"s_mul_i32 s{sf}, s{w}, {4*P['plane2']}")
        a(f"s_add_u32 s{sf}, s{sf}, s{sTbase}")
        for i in range(4):
            a(f"s_add_u32 s{t0}, s{w}, {i}")
            a(f"s_and_b32 s{t0}, s{t0}, 3")
            a(f"s_lshl_b32 s{t0}, s{t0}, 8")
            a(f"s_add_u32 s{so4+i}, s{sf}, s{t0}")
    a(f"s_mul_i32 s{t0}, s{w}, {4*P['planeF']}")
    a(f"s_add_u32 s{sf}, s{t0}, s{sFbase}")

def prologue_loads(a, g, S, P):
    for b in range(g.NB - 1):
        issue(a, g, S, b, P)

def zero_acc(a, g):
    for i in range(80):
        a(f"v_mov_b32 v{g.ACC+i}, 0")

def main_loop(a, g, S, P, tag, nsteps, extra_vm=0):
    NB = g.NB; cnt = S["cnt"]
    a(f"s_mov_b32 s{cnt}, {nsteps}")
    a.label(f"{tag}_loop")
    for b in range(NB):
        issue(a, g, S, (b + NB - 1) % NB, P)
        a(f"s_waitcnt vmcnt({9*(NB-1)})")
        if P["mode"] == "TF":
            for tb in range(4):
                for t in range(2):
                    a(f"ds_read_b64_tr_b16 {vr(g.TB+4*tb+2*t,2)}, v{g.vR+tb} offset:{b*RING+t*1024}")
        for tb in range(4):
            if P["mode"] == "TF":
                a(f"s_waitcnt lgkmcnt({6-2*tb})")
                T = g.TB + 4 * tb
            else:
                T = g.F2[b] + 4 * tb
            for j in range(5):
                acc = g.ACC + (tb * 5 + j) * 4
                Fr = g.FB[b] + 4 * j
                if P["TisA"]: a(mfma16(acc, T, Fr, acc))
                else: a(mfma16(acc, Fr, T, acc))
        a(f"s_sub_u32 s{cnt}, s{cnt}, 1")
        a(f"s_cmp_eq_u32 s{cnt}, 0")
        if b < NB - 1:
            a(f"s_cbranch_scc1 {tag}_done")
        else:
            a(f"s_cbranch_scc0 {tag}_loop")
    a.label(f"{tag}_done")

def reduce4(a, g, S, ldsbase, sync):
    t = g.tmp; w = S["w"]; t0 = S["t0"]
    a("s_waitcnt vmcnt(0)")
    a(f"v_and_b32 v{t}, 63, v0")
    a(f"v_lshlrev_b32 v{t}, 4, v{t}")
    a(f"v_add_u32 v{t+1}, s{S['lb']}, v{t}")
    a("s_nop 4")
    for tb in range(1, 4):
        for j in range(5):
            a(f"ds_write_b128 v{t+1}, {vr(g.ACC+(tb*5+j)*4,4)} offset:{((tb-1)*5+j)*1024}")
    for tb in range(1, 4):
        a(f"s_sub_u32 s{t0}, s{w}, {tb}")
        a(f"s_and_b32 s{t0}, s{t0}, 3")
        a(f"s_mul_i32 s{t0}, s{t0}, {REGION}")
        a(f"s_add_u32 s{t0}, s{t0}, {ldsbase + (tb-1)*5120}")
        a(f"v_add_u32 v{t+1+tb}, s{t0}, v{t}")
    a("s_waitcnt lgkmcnt(0)")
    sync()
    for tb in range(1, 4):
        for j in range(5):
            a(f"ds_read_b128 {vr(g.ACC+(tb*5+j)*4,4)}, v{t+1+tb} offset:{j*1024}")
    for tb in range(1, 4):
        a(f"s_waitcnt lgkmcnt({15-5*tb})")
        for i in range(0, 20, 2):
            a(f"v_pk_add_f32 {vr(g.ACC+i,2)}, {vr(g.ACC+i,2)}, {vr(g.ACC+tb*20+i,2)}")

def f2u(x):
    import struct
    return struct.unpack("<I", struct.pack("<f", x))[0]

GC1 = -2.0 * 1.4426950408889634 * 0.7978845608028654
GC2 = GC1 * 0.044715

def b1_epilogue(a, g, S, srdU, sUo, vB, store_mod=""):
    t = g.tmp; A = g.ACC; X = g.ACC + 20
    c1, c2 = S["t0"], S["t1"]
    a(f"s_mov_b32 s{c1}, {hex(f2u(GC1))}")
    a(f"s_mov_b32 s{c2}, {hex(f2u(GC2))}")
    a(f"v_lshlrev_b32 v{t}, 16, v{vB}")
    a(f"v_and_b32 v{t+1}, 0xffff0000, v{vB}")
    a(f"v_lshlrev_b32 v{t+2}, 16, v{vB+1}")
    a(f"v_and_b32 v{t+3}, 0xffff0000, v{vB+1}")
    a(f"v_mov_b32 v{t+4}, s{c1}")
    for j in range(5):
        for i in (0, 2):
            a(f"v_pk_add_f32 {vr(A+4*j+i,2)}, {vr(A+4*j+i,2)}, {vr(t+i,2)}")
    for i in range(0, 20, 2):
        a(f"v_pk_mul_f32 {vr(X+i,2)}, {vr(A+i,2)}, {vr(A+i,2)}")
    for i in range(20):
        a(f"v_fma_f32 v{X+i}, v{X+i}, s{c2}, v{t+4}")
    for i in range(0, 20, 2):
        a(f"v_pk_mul_f32 {vr(X+i,2)}, {vr(X+i,2)}, {vr(A+i,2)}")
    for i in range(20):
        a(f"v_exp_f32 v{X+i}, v{X+i}")
    for i in range(20):
        a(f"v_add_f32 v{X+i}, 1.0, v{X+i}")
    for i in range(20):
        a(f"v_rcp_f32 v{X+i}, v{X+i}")
    for i in range(0, 20, 2):
        a(f"v_pk_mul_f32 {vr(X+i,2)}, {vr(X+i,2)}, {vr(A+i,2)}")
    pack_store(a, g, X, srdU, sUo, PLANE=10240, rowstride=16, mode="F", store_mod=store_mod)

def pack_store(a, g, X, srdO, sO, PLANE, rowstride, mode, store_mod=""):
    t = g.tmp; Pk = g.ACC + 40
    for j in range(5):
        a(f"v_cvt_pk_bf16_f32 v{Pk+2*j}, v{X+4*j}, v{X+4*j+1}")
        a(f"v_cvt_pk_bf16_f32 v{Pk+2*j+1}, v{X+4*j+2}, v{X+4*j+3}")
    a(f"v_mov_b32 v{Pk+10}, v{Pk+8}")
    a(f"v_mov_b32 v{Pk+11}, v{Pk+9}")
    a(f"v_and_b32 v{t}, 15, v0")
    a(f"v_bfe_u32 v{t+1}, v0, 4, 1")
    a(f"v_bfe_u32 v{t+2}, v0, 5, 1")
    if mode == "F":
        a(f"v_lshl_add_u32 v{t}, v{t+1}, 4, v{t}")
        a(f"v_lshlrev_b32 v{t}, 4, v{t}")
        a(f"v_mul_u32_u24 v{t+2}, {PLANE}, v{t+2}")
        a(f"v_add_u32 v{t}, v{t}, v{t+2}")
        step = 512
    else:
        a(f"v_mul_u32_u24 v{t}, {rowstride}, v{t}")
        a(f"v_lshl_add_u32 v{t}, v{t+1}, 5, v{t}")
        a(f"v_lshl_add_u32 v{t}, v{t+2}, 4, v{t}")
        step = 64
    for p in range(3):
        for i in range(2):
            a(f"v_permlane16_swap_b32 v{Pk+4*p+i}, v{Pk+4*p+2+i}")
    a("s_nop 1")
    for p in range(3):
        if p == 2:
            a("s_mov_b32 exec_lo, 0xffff")
            a("s_mov_b32 exec_hi, 0xffff")
        a(f"buffer_store_dwordx4 {vr(Pk+4*p,4)}, v{t}, {sr(srdO,4)}, s{sO} offen offset:{p*step}{store_mod}")
    a("s_mov_b64 exec, -1")

def transpose_task(a, vb, S, srdI, sIo, srdO, sOo, ldsaddr_s, body=None):
    X = vb + 8; t = vb
    a(f"""
    v_bfe_u32 v{t}, v0, 3, 3
    v_and_b32 v{t+1}, 7, v0
    v_mul_u32_u24 v{t+2}, 1280, v{t}
    v_lshl_add_u32 v{t+2}, v{t+1}, 4, v{t+2}
    """)
    for i in range(10):
        a(f"buffer_load_dwordx4 {vr(X+4*i,4)}, v{t+2}, {sr(srdI,4)}, s{sIo} offen offset:{i*128}")
    a(f"""
    v_mul_u32_u24 v{t+2}, 1344, v{t}
    v_lshl_add_u32 v{t+2}, v{t+1}, 4, v{t+2}
    v_add_u32 v{t+2}, s{ldsaddr_s}, v{t+2}
    v_bfe_u32 v{t+3}, v0, 2, 2
    v_mul_u32_u24 v{t+3}, 1344, v{t+3}
    v_bfe_u32 v{t+4}, v0, 4, 2
    v_lshl_add_u32 v{t+3}, v{t+4}, 5, v{t+3}
    v_and_b32 v{t+4}, 3, v0
    v_lshl_add_u32 v{t+3}, v{t+4}, 3, v{t+3}
    v_add_u32 v{t+3}, s{ldsaddr_s}, v{t+3}
    v_and_b32 v{t+4}, 63, v0
    v_lshlrev_b32 v{t+4}, 4, v{t+4}
    """)
    if body: body(a, X, t + 5)
    else: a("s_waitcnt vmcnt(0)")
    for i in range(10):
        a(f"ds_write_b128 v{t+2}, {vr(X+4*i,4)} offset:{i*128}")
    a("s_waitcnt lgkmcnt(0)")
    for j in range(10):
        a(f"ds_read_b64_tr_b16 {vr(X+4*j,2)}, v{t+3} offset:{j*128}")
        a(f"ds_read_b64_tr_b16 {vr(X+4*j+2,2)}, v{t+3} offset:{j*128+4*1344}")
    for j in range(10):
        if j in (0, 4, 8):
            a(f"s_waitcnt lgkmcnt({max(0, 20-2*(j+4))})")
        if j in (4, 8):
            a(f"s_add_u32 s{sOo}, s{sOo}, 4096")
        a(f"buffer_store_dwordx4 {vr(X+4*j,4)}, v{t+4}, {sr(srdO,4)}, s{sOo} offen offset:{(j%4)*1024}")
```

```python
from asmlib import *
from layout import *
from gemm import srd, transpose_task, f2u
from kernels import finish, stamp_begin, stamp_mid, stamp_end
import math

SLOT = 24576
NSL = 6
LDS_K1 = SLOT * NSL
QSCALE = math.log2(math.e) / math.sqrt(20.0)

def mfma32(d, a, b, c):
    cs = "0" if c is None else vr(c, 16)
    return f"v_mfma_f32_32x32x16_bf16 {vr(d,16)}, {vr(a,4)}, {vr(b,4)}, {cs}"
def mfma8(d, a, b, c):
    return f"v_mfma_f32_32x32x8_bf16 {vr(d,16)}, {vr(a,2)}, {vr(b,2)}, {vr(c,16)}"

def bf16r(a, v):
    a(f"v_cvt_pk_bf16_f32 v{v}, v{v}, v{v}")
    a(f"v_lshlrev_b32 v{v}, 16, v{v}")

def ln_stats(a, sx, sxx, t, sInv, sEps):
    a(f"v_mul_f32 v{sx}, s{sInv}, v{sx}")
    a(f"v_mul_f32 v{t}, v{sx}, v{sx}")
    a(f"v_fma_f32 v{sxx}, v{sxx}, s{sInv}, -v{t}")
    a(f"v_max_f32 v{sxx}, 0, v{sxx}")
    bf16r(a, sx); bf16r(a, sxx)
    a(f"v_add_f32 v{sxx}, s{sEps}, v{sxx}")
    bf16r(a, sxx)
    a(f"v_sqrt_f32 v{sxx}, v{sxx}")
    a("s_nop 0")
    bf16r(a, sxx)
    a(f"v_rcp_f32 v{sxx}, v{sxx}")
    a("s_nop 0")

def half_sum(a, v, t):
    a(f"v_mov_b32 v{t}, v{v}")
    a("s_nop 1")
    a(f"v_permlane32_swap_b32 v{v}, v{t}")
    a("s_nop 1")
    a(f"v_add_f32 v{v}, v{v}, v{t}")

def split3(a, cs, d, t, vccmask=True):
    a(f"v_cvt_pk_bf16_f32 v{d}, v{cs}, v{cs}")
    a(f"v_lshlrev_b32 v{t}, 16, v{d}")
    a(f"v_sub_f32 v{cs}, v{cs}, v{t}")
    a(f"v_cvt_pk_bf16_f32 v{d}, v{t}, v{cs}")
    a(f"v_and_b32 v{t}, 0xffff0000, v{d}")
    a(f"v_sub_f32 v{cs}, v{cs}, v{t}")
    a(f"v_cvt_pk_bf16_f32 v{d+1}, v{cs}, 0")
    a(f"v_cndmask_b32 v{d}, v{d}, 0, vcc")
    a(f"v_cndmask_b32 v{d+1}, v{d+1}, 0, vcc")

def k1_kernel(name="k1_kernel", stamp=False, nodot=False, nomfma=False, nord=False, noiss=False):
    a = Asm()
    a.label(name)
    a(f"""
    s_cmp_ge_u32 s2, 256
    s_cbranch_scc1 {name}_end
    s_load_dwordx2 s[4:5], s[0:1], 96
    s_load_dwordx4 s[40:43], s[0:1], 0
    s_load_dwordx4 s[56:59], s[0:1], 16
    v_lshrrev_b32 v1, 6, v0
    s_nop 0
    v_readfirstlane_b32 s6, v1
    """)
    if stamp: stamp_begin(a)
    a(f"""
    s_and_b32 s46, s2, 7
    s_bfe_u32 s47, s2, 0x30003
    s_lshr_b32 s48, s2, 6
    s_lshl_b32 s48, s48, 3
    s_add_u32 s48, s48, s46
    s_mov_b32 s60, 0x3f803f80
    s_mov_b32 s61, {hex(f2u(1.0/640))}
    s_mov_b32 s62, {hex(f2u(1e-5))}
    s_waitcnt lgkmcnt(0)
    """)
    srd(a, 8, 4, 5, 0, WS_END)
    srd(a, 12, 40, 41, 0, 2048 * 1280)
    a(f"""
    s_cmp_ge_u32 s47, 6
    s_cbranch_scc1 {name}_ln
    """)
    XE, XO = 1, 2
    T = 3
    AX = 10
    AW = 14
    WD = 16
    SX, SXX, CS0, CS1 = 20, 21, 22, 23
    XF = 24
    WF = 40
    ACC = 72
    PK = 104
    NV = 128
    a(f"""
    v_bfe_u32 v{T}, v0, 3, 3
    v_mul_u32_u24 v{XE}, 1280, v{T}
    v_and_b32 v{T}, 7, v0
    v_bfe_u32 v{T+1}, v0, 4, 2
    v_xor_b32 v{T}, v{T}, v{T+1}
    v_xor_b32 v{T+2}, 4, v{T}
    v_lshl_add_u32 v{XO}, v{T+2}, 4, v{XE}
    v_add_u32 v{XO}, {8*1280-1024}, v{XO}
    v_lshl_add_u32 v{XE}, v{T}, 4, v{XE}
    s_lshl_b32 s7, s48, 2
    s_add_u32 s7, s7, s6
    s_mul_i32 s20, s7, {16*1280}         ; x soffset
    s_lshl_b32 s21, s6, 11
    s_and_b32 s49, s6, 1                 ; wt
    s_lshr_b32 s50, s6, 1                ; wn
    """)
    a(f"""
    s_cmp_eq_u32 s47, 5
    s_cbranch_scc1 {name}_kv
    """)
    def xaddr(slotstride):
        a(f"""
        v_and_b32 v{T+3}, 31, v0
        v_bfe_u32 v{T+4}, v0, 5, 1
        v_bfe_u32 v{T+5}, v0, 1, 3
        v_xor_b32 v{T+5}, v{T+5}, v{T+4}
        s_lshl_b32 s7, s49, 12
        v_lshl_add_u32 v{T+6}, v{T+3}, 7, s7
        """)
        for ks in range(4):
            a(f"v_xor_b32 v{AX+ks}, {2*ks}, v{T+5}")
            a(f"v_lshl_add_u32 v{AX+ks}, v{AX+ks}, 4, v{T+6}")
    def xdma(slot_s):
        a(f"s_add_u32 m0, s{slot_s}, s21")
        a("s_nop 0")
        a(f"buffer_load_dwordx4 v{XE}, s[12:15], s20 offen lds")
        a(f"buffer_load_dwordx4 v{XO}, s[12:15], s20 offen offset:1024 lds")
    def stats_epi(ncs):
        a("s_nop 2")
        a(f"v_cmp_eq_u32 vcc, 1, v{T+4}")
        half_sum(a, SX, T); half_sum(a, SXX, T)
        for b in range(ncs): half_sum(a, CS0 + b, T)
        ln_stats(a, SX, SXX, T, 61, 62)
        a(f"v_sub_f32 v{SX}, 0, v{SX}")
        a(f"v_cvt_pk_bf16_f32 v{XF}, v{SX}, v{SX}")
        a(f"v_cvt_pk_bf16_f32 v{XF+1}, v{SX}, 0")
        a(f"v_cndmask_b32 v{XF}, v{XF}, 0, vcc")
        a(f"v_cndmask_b32 v{XF+1}, v{XF+1}, 0, vcc")
        for b in range(ncs): split3(a, CS0 + b, WF + 2 * b, T)
        a("s_nop 1")
        for b in range(ncs): a(mfma8(ACC + 16 * b, WF + 2 * b, XF, ACC + 16 * b))

    srd(a, 16, 42, 43, 0, 640 * 1280)
    a(f"""
    v_mul_u32_u24 v{WD}, 1280, v{T+1}
    v_and_b32 v{T}, 15, v0
    v_lshlrev_b32 v{T+2}, 2, v{T+1}
    v_xor_b32 v{T}, v{T}, v{T+2}
    v_lshl_add_u32 v{WD}, v{T}, 4, v{WD}
    v_add_u32 v{WD+1}, 4096, v{WD}
    v_add_u32 v{WD+2}, 8192, v{WD}
    v_add_u32 v{WD+3}, 12288, v{WD}
    s_mul_i32 s22, s6, {16*1280}
    s_lshl_b32 s7, s47, 8
    s_add_u32 s22, s22, s7
    s_lshl_b32 s23, s6, 12
    s_add_u32 s23, s23, 8192
    s_mov_b32 s24, 0
    """)
    def qissue():
        xdma(24)
        a("s_add_u32 m0, s24, s23")
        a("s_add_u32 s20, s20, 128")
        for q in range(4):
            a(f"buffer_load_dwordx4 v{WD+q}, s[16:19], s22 offen offset:{q*1024} lds")
        a(f"s_add_u32 s22, s22, {64*1280}")
    a("s_mov_b32 s25, 5")
    a.label(f"{name}_qpre")
    qissue()
    a(f"""
    s_add_u32 s24, s24, {SLOT}
    s_sub_u32 s25, s25, 1
    s_cmp_lg_u32 s25, 0
    s_cbranch_scc1 {name}_qpre
    """)
    xaddr(SLOT)
    a(f"""
    v_bfe_u32 v{T}, v0, 2, 2
    v_lshl_add_u32 v{T+1}, v{T+4}, 3, v{T}
    v_lshlrev_b32 v{T+1}, 8, v{T+1}
    v_bfe_u32 v{T+2}, v0, 4, 1
    v_lshl_add_u32 v{T+1}, v{T+2}, 5, v{T+1}
    v_and_b32 v{T+2}, 3, v0
    v_lshl_add_u32 v{T+1}, v{T+2}, 3, v{T+1}
    v_add_u32 v{T+1}, 8192, v{T+1}
    s_lshl_b32 s7, s50, 1
    v_xor_b32 v{T}, s7, v{T}
    v_lshl_add_u32 v{AW}, v{T}, 6, v{T+1}
    v_xor_b32 v{T}, 1, v{T}
    v_lshl_add_u32 v{AW+1}, v{T}, 6, v{T+1}
    """)
    for i in range(4): a(f"v_mov_b32 v{SX+i}, 0")
    for i in range(32): a(f"v_mov_b32 v{ACC+i}, 0")
    a("s_mov_b32 s25, 0")
    a("s_mov_b32 s26, 0")
    if stamp: stamp_mid(a, 0)
    def rd(ks, nb):
        if nord: return
        a(f"ds_read_b128 {vr(XF+4*ks,4)}, v{AX+ks}")
        for b in range(nb):
            for t in range(2):
                rs = 256 if nb == 2 else 64
                a(f"ds_read_b64_tr_b16 {vr(WF+8*ks+4*b+2*t,2)}, v{AW+b} offset:{(16*ks+4*t)*rs}")
    def comp(nb):
        n = 1 + 2 * nb
        rd(0, nb); rd(1, nb)
        for ks in range(4):
            a(f"s_waitcnt lgkmcnt({n if ks < 3 else 0})")
            if ks < 2: rd(ks + 2, nb)
            for b in range(nb):
                if not nomfma: a(mfma32(ACC + 16 * b, WF + 8 * ks + 4 * b, XF + 4 * ks, ACC + 16 * b))
            for i in range(0 if nodot else 4):
                a(f"v_dot2_f32_bf16 v{SX}, v{XF+4*ks+i}, s60, v{SX}")
                a(f"v_dot2_f32_bf16 v{CS0}, v{WF+8*ks+i}, s60, v{CS0}")
                a(f"v_dot2_f32_bf16 v{SXX}, v{XF+4*ks+i}, v{XF+4*ks+i}, v{SXX}")
                if nb == 2:
                    a(f"v_dot2_f32_bf16 v{CS1}, v{WF+8*ks+4+i}, s60, v{CS1}")
    a.label(f"{name}_qloop")
    a("s_waitcnt vmcnt(24)")
    a("s_barrier")
    a(f"""
    s_cmp_ge_u32 s25, 5
    s_cselect_b32 s20, 0x80000000, s20
    s_cselect_b32 s22, 0x80000000, s22
    """)
    if not noiss: qissue()
    a(f"""
    s_add_u32 s24, s24, {SLOT}
    s_cmp_eq_u32 s24, {LDS_K1}
    s_cselect_b32 s24, 0, s24
    """)
    comp(2)
    a(f"""
    s_add_u32 s26, s26, 1
    s_cmp_eq_u32 s26, {NSL}
    s_mov_b32 s27, {SLOT}
    s_cselect_b32 s27, {(-(NSL-1)*SLOT) & 0xffffffff}, s27
    s_cselect_b32 s26, 0, s26
    """)
    for i in range(6): a(f"v_add_u32 v{AX+i}, s27, v{AX+i}")
    a(f"""
    s_add_u32 s25, s25, 1
    s_cmp_lg_u32 s25, 10
    s_cbranch_scc1 {name}_qloop
    """)
    if stamp: stamp_mid(a, 1)
    stats_epi(2)
    a(f"""
    v_mul_f32 v{SXX}, {hex(f2u(QSCALE))}, v{SXX}
    v_lshlrev_b32 v{T}, 3, v{T+3}
    v_lshl_add_u32 v{T}, v{T+4}, 14, v{T}
    s_lshl_b32 s7, s47, 1
    s_add_u32 s7, s7, s50
    s_lshl_b32 s7, s7, 18
    s_lshl_b32 s20, s48, 1
    s_add_u32 s20, s20, s49
    s_lshl_b32 s20, s20, 8
    s_add_u32 s20, s20, s7
    s_nop 7
    """)
    for b in range(2):
        for rq in range(4):
            r = ACC + 16 * b + 4 * rq
            for i in range(4): a(f"v_mul_f32 v{r+i}, v{r+i}, v{SXX}")
            p = PK + 8 * b + 2 * rq
            a(f"v_cvt_pk_bf16_f32 v{p}, v{r}, v{r+1}")
            a(f"v_cvt_pk_bf16_f32 v{p+1}, v{r+2}, v{r+3}")
            a(f"buffer_store_dwordx2 {vr(p,2)}, v{T}, s[8:11], s20 offen")
            a(f"s_add_u32 s20, s20, 32768")
    if stamp: stamp_end(a, 8, 6, 2)
    a("s_endpgm")

    a.label(f"{name}_kv")
    KW = 49152
    srd(a, 16, 56, 57, 0, 25600)
    srd(a, 28, 58, 59, 0, 25600)
    a(f"v_lshlrev_b32 v{T+2}, 3, v0")
    for m, sd in ((0, 16), (1, 28)):
        for i in range(13):
            if i % 2 == 0 and i > 0:
                pass
            a(f"s_mov_b32 s7, {i*2048}")
            a(f"buffer_load_dwordx2 {vr(WF+2*i+26*m,2)}, v{T+2}, {sr(sd,4)}, s7 offen")
    a("s_mov_b32 s24, 0")
    for c in range(5):
        xdma(24)
        a("s_add_u32 s20, s20, 128")
        a("s_add_u32 s24, s24, 8192")
    xaddr(8192)
    a("s_waitcnt vmcnt(10)")
    for i in range(13):
        a(f"v_add_u32 v{T}, {256*i}, v0")
        a(f"v_mul_u32_u24 v{T+1}, 52429, v{T}")
        a(f"v_lshrrev_b32 v{T+1}, 18, v{T+1}")
        a(f"v_mul_u32_u24 v{T+1}, 24, v{T+1}")
        a(f"v_lshl_add_u32 v{T+1}, v{T}, 3, v{T+1}")
        if i == 12:
            a("s_cmp_ge_u32 s6, 2")
            a(f"s_cbranch_scc1 {name}_kvw")
        a(f"ds_write_b64 v{T+1}, {vr(WF+2*i,2)} offset:{KW}")
        a(f"v_add_u32 v{T+1}, 40960, v{T+1}")
        a(f"ds_write_b64 v{T+1}, {vr(WF+2*i+26,2)} offset:{KW}")
    a.label(f"{name}_kvw")
    a(f"""
    v_bfe_u32 v{T}, v0, 2, 2
    v_lshl_add_u32 v{T+1}, v{T+4}, 3, v{T}
    v_lshlrev_b32 v{T+1}, 6, v{T+1}
    v_bfe_u32 v{T+2}, v0, 4, 1
    v_lshl_add_u32 v{T+1}, v{T+2}, 5, v{T+1}
    v_and_b32 v{T+2}, 3, v0
    v_lshl_add_u32 v{T+1}, v{T+2}, 3, v{T+1}
    s_mul_i32 s7, s50, 40960
    s_add_u32 s7, s7, {KW}
    v_add_u32 v{AW}, s7, v{T+1}
    """)
    for i in range(4): a(f"v_mov_b32 v{SX+i}, 0")
    for i in range(16): a(f"v_mov_b32 v{ACC+i}, 0")
    a("s_mov_b32 s25, 0")
    a("s_mov_b32 s26, 0")
    a("s_waitcnt lgkmcnt(0)")
    a.label(f"{name}_kvloop")
    a("s_waitcnt vmcnt(8)")
    a("s_barrier")
    a(f"""
    s_cmp_ge_u32 s25, 5
    s_cselect_b32 s20, 0x80000000, s20
    """)
    xdma(24)
    a(f"""
    s_add_u32 s20, s20, 128
    s_add_u32 s24, s24, 8192
    s_cmp_eq_u32 s24, {6*8192}
    s_cselect_b32 s24, 0, s24
    """)
    comp(1)
    a(f"""
    s_add_u32 s26, s26, 1
    s_cmp_eq_u32 s26, {NSL}
    s_mov_b32 s27, 8192
    s_cselect_b32 s27, {(-(NSL-1)*8192) & 0xffffffff}, s27
    s_cselect_b32 s26, 0, s26
    """)
    for i in range(4): a(f"v_add_u32 v{AX+i}, s27, v{AX+i}")
    a(f"v_add_u32 v{AW}, 4096, v{AW}")
    a(f"""
    s_add_u32 s25, s25, 1
    s_cmp_lg_u32 s25, 10
    s_cbranch_scc1 {name}_kvloop
    """)
    stats_epi(1)
    a(f"""
    s_lshl_b32 s21, s48, 1
    s_add_u32 s21, s21, s49
    s_mul_i32 s20, s21, {TILE_B}
    s_add_u32 s20, s20, {KV_OFF}
    s_nop 7
    s_nop 1
    """)
    for i in range(12): a(f"v_mul_f32 v{ACC+i}, v{ACC+i}, v{SXX}")
    for i in range(6): a(f"v_cvt_pk_bf16_f32 v{PK+i}, v{ACC+2*i}, v{ACC+2*i+1}")
    a(f"""
    s_cmp_eq_u32 s50, 1
    s_cbranch_scc1 {name}_v
    v_and_b32 v{T}, 63, v0
    v_lshlrev_b32 v{T}, 4, v{T}
    buffer_store_dwordx4 {vr(PK,4)}, v{T}, s[8:11], s20 offen
    v_cndmask_b32 v{PK+4}, v{PK+4}, 0, vcc
    v_cndmask_b32 v{PK+5}, v{PK+5}, 0, vcc
    v_lshlrev_b32 v{T+1}, 3, v{T+3}
    s_mov_b32 exec_hi, 0
    buffer_store_dwordx2 {vr(PK+4,2)}, v{T+1}, s[8:11], s20 offen offset:{K1_OFF_T}
    s_mov_b32 exec_hi, -1
    v_dot2_f32_bf16 v{SX}, v{PK}, v{PK}, 0
    """)
    for i in range(1, 6): a(f"v_dot2_f32_bf16 v{SX}, v{PK+i}, v{PK+i}, v{SX}")
    a("s_nop 2")
    half_sum(a, SX, T)
    for r in (8, 4, 2, 1):
        a("s_nop 1")
        a(f"v_max_f32_dpp v{SX}, v{SX}, v{SX} row_ror:{r} row_mask:0xf bank_mask:0xf")
    a(f"""
    v_mov_b32 v{T}, v{SX}
    s_nop 1
    v_permlane16_swap_b32 v{SX}, v{T}
    s_nop 1
    v_max_f32 v{SX}, v{SX}, v{T}
    s_lshl_b32 s21, s21, 2
    s_add_u32 s21, s21, {KM_OFF}
    v_mov_b32 v{T}, 0
    s_mov_b64 exec, 1
    buffer_store_dword v{SX}, v{T}, s[8:11], s21 offen
    s_endpgm
    """)
    a.label(f"{name}_v")
    a(f"""
    s_lshl_b32 s7, s49, 12
    s_add_u32 s7, s7, {KW + 2*40960}
    v_lshlrev_b32 v{T}, 6, v{T+3}
    v_lshl_add_u32 v{T}, v{T+4}, 3, v{T}
    v_add_u32 v{T}, s7, v{T}
    ds_write_b64 v{T}, {vr(PK,2)}
    ds_write_b64 v{T}, {vr(PK+2,2)} offset:16
    ds_write_b64 v{T}, {vr(PK+4,2)} offset:32
    v_bfe_u32 v{T}, v0, 2, 2
    v_lshl_add_u32 v{T}, v{T+4}, 2, v{T}
    v_lshlrev_b32 v{T}, 6, v{T}
    v_bfe_u32 v{T+2}, v0, 4, 1
    v_lshl_add_u32 v{T}, v{T+2}, 5, v{T}
    v_and_b32 v{T+2}, 3, v0
    v_lshl_add_u32 v{T}, v{T+2}, 3, v{T}
    v_add_u32 v{T}, s7, v{T}
    s_waitcnt lgkmcnt(0)
    """)
    for t in range(2):
        for u in range(2):
            a(f"ds_read_b64_tr_b16 {vr(PK+4*t+2*u,2)}, v{T} offset:{(16*t+8*u)*64}")
    a(f"""
    v_cmp_eq_u32 vcc, 20, v{T+3}
    v_mov_b32 v{T+1}, s60
    s_nop 0
    v_cndmask_b32 v{T+1}, 0, v{T+1}, vcc
    v_cmp_gt_u32 vcc, 20, v{T+3}
    v_mul_u32_u24 v{T+2}, {V_PLANE}, v{T+4}
    v_lshl_add_u32 v{T+2}, v{T+3}, 4, v{T+2}
    s_waitcnt lgkmcnt(0)
    """)
    for i in range(8): a(f"v_cndmask_b32 v{PK+i}, v{T+1}, v{PK+i}, vcc")
    a(f"""
    s_mov_b32 exec_lo, 0x0fffffff
    s_mov_b32 exec_hi, 0x0fffffff
    buffer_store_dwordx4 {vr(PK,4)}, v{T+2}, s[8:11], s20 offen offset:{V_OFF_T}
    buffer_store_dwordx4 {vr(PK+4,4)}, v{T+2}, s[8:11], s20 offen offset:{V_OFF_T+2*V_PLANE}
    s_endpgm
    """)

    a.label(f"{name}_ln")
    a(f"""
    s_lshl_b32 s7, s48, 1
    s_add_u32 s7, s7, s47
    s_sub_u32 s7, s7, 6
    s_lshl_b32 s7, s7, 2
    s_add_u32 s7, s7, s6                 ; plane
    s_mul_i32 s20, s7, 10240
    s_add_u32 s21, s20, {HF_OFF}
    s_mul_i32 s22, s6, 16384
    """)
    def body(a, X, t):
        A0 = 64; U = 72
        for p in range(2):
            for i in range(4): a(f"v_mov_b32 v{A0+i}, 0")
            for i in range(40):
                if p == 0 and i % 4 == 0:
                    a(f"s_waitcnt vmcnt({9 - i//4})")
                a(f"v_dot2_f32_bf16 v{A0+(i&1)}, v{X+i}, s60, v{A0+(i&1)}")
                a(f"v_dot2_f32_bf16 v{A0+2+(i&1)}, v{X+i}, v{X+i}, v{A0+2+(i&1)}")
            a("s_nop 2")
            a(f"v_add_f32 v{A0}, v{A0}, v{A0+1}")
            a(f"v_add_f32 v{A0+2}, v{A0+2}, v{A0+3}")
            for dpp in ("quad_perm:[1,0,3,2]", "quad_perm:[2,3,0,1]", "row_half_mirror"):
                a("s_nop 0")
                a(f"v_add_f32_dpp v{A0}, v{A0}, v{A0} {dpp} row_mask:0xf bank_mask:0xf")
                a(f"v_add_f32_dpp v{A0+2}, v{A0+2}, v{A0+2} {dpp} row_mask:0xf bank_mask:0xf")
            ln_stats(a, A0, A0 + 2, A0 + 1, 61, 62)
            a(f"v_mul_f32 v{A0}, v{A0}, v{A0+2}")
            for i in range(40):
                u = U + 2 * (i & 3)
                a(f"v_lshlrev_b32 v{u}, 16, v{X+i}")
                a(f"v_and_b32 v{u+1}, 0xffff0000, v{X+i}")
                a(f"v_pk_fma_f32 {vr(u,2)}, {vr(u,2)}, {vr(A0+2,2)}, {vr(A0,2)} op_sel_hi:[1,0,0] neg_lo:[0,0,1] neg_hi:[0,0,1]")
                a(f"v_cvt_pk_bf16_f32 v{X+i}, v{u}, v{u+1}")
    transpose_task(a, 8, None, 12, 20, 8, 21, 22, body=body)
    if stamp:
        a("s_mov_b32 s94, s90"); a("s_mov_b32 s96, s90")
        stamp_end(a, 8, 6, 3)
    a.label(f"{name}_end")
    a("s_endpgm")
    return finish(a, name, NV, (256, 256, LDS_K1))
```

```python
from asmlib import *
from layout import *
from gemm import *
from attn import kd

def stamp_begin(a):
    a("s_memtime s[90:91]")
    a("s_memrealtime s[92:93]")
def stamp_mid(a, i):
    a(f"s_memtime s[{94+2*i}:{95+2*i}]")
def stamp_end(a, srdw, wave_s, slot, nw=4):
    a(f"""
    s_mov_b64 exec, -1
    s_waitcnt vmcnt(0)
    s_memtime s[98:99]
    s_memrealtime s[100:101]
    s_waitcnt lgkmcnt(0)
    s_sub_u32 s94, s94, s90
    s_sub_u32 s96, s96, s90
    s_sub_u32 s98, s98, s90
    s_sub_u32 s100, s100, s92
    v_mov_b32 v8, s94
    v_mov_b32 v9, s96
    v_mov_b32 v10, s98
    v_mov_b32 v11, s100
    s_mul_i32 s94, s2, {nw}
    s_add_u32 s94, s94, s{wave_s}
    s_lshl_b32 s94, s94, 4
    s_add_u32 s94, s94, {WS_END - 65536*(slot+1)}
    v_mov_b32 v12, 0
    buffer_store_dwordx4 v[8:11], v12, {sr(srdw,4)}, s94 offen
    """)

GS = dict(w=6, t0=7, t1=3, lb=28, so4=32, sf=36, cnt=37)

def finish(a, name, nv, geom):
    errs = check_hazards(a.lines, name)
    for e in errs: print("HAZARD", e)
    return name, a.text(), kd(name, nv), geom

def b1_kernel(name="b1_kernel", stamp=False, NB=3):
    a = Asm(); S = GS; g = G(NB=NB)
    a.label(name)
    a(f"""
    s_cmp_ge_u32 s2, 256
    s_cbranch_scc1 {name}_end
    s_load_dwordx2 s[4:5], s[0:1], 96
    s_load_dwordx4 s[40:43], s[0:1], 48
    s_load_dwordx2 s[44:45], s[0:1], 32
    v_lshrrev_b32 v1, 6, v0
    s_nop 0
    v_readfirstlane_b32 s6, v1
    """)
    if stamp: stamp_begin(a)
    a(f"""
    s_and_b32 s46, s2, 7
    s_lshr_b32 s47, s2, 3
    s_and_b32 s48, s46, 1
    s_lshl_b32 s48, s48, 2
    s_and_b32 s49, s47, 3
    s_add_u32 s48, s48, s49          ; db
    s_lshr_b32 s49, s46, 1
    s_mul_i32 s49, s49, 7
    s_lshr_b32 s50, s47, 2
    s_add_u32 s49, s49, s50          ; fb
    s_waitcnt lgkmcnt(0)
    """)
    srd(a, 8, 4, 5, 0, WS_END)
    a(f"""
    s_cmp_eq_u32 s50, 7
    s_cbranch_scc1 {name}_wo
    s_cmp_ge_u32 s49, 27
    s_cbranch_scc1 {name}_end
    """)
    srd(a, 12, 40, 41, 0, 2048 * 3456)
    srd(a, 16, 4, 5, HF_OFF, HF_SZ)
    srd(a, 20, 42, 43, 0, 1728 * 2)
    P = dict(mode="TF", srdT=12, srdF=16, strideT=3456, planeF=10240, W=4, TisA=True)
    setup_lane(a, g, S, 0)
    setup_T(a, g, 3456)
    setup_F(a, g, g.vF, 10240)
    a("s_lshl_b32 s51, s49, 7")
    a("s_mul_i32 s52, s48, 1280")
    init_offsets(a, g, S, P, 51, 52)
    prologue_loads(a, g, S, P)
    a(f"s_lshl_b32 s53, s6, 5")
    a(f"s_add_u32 s53, s53, s51")
    a(f"v_lshlrev_b32 v1, 3, v{g.tmp+2}")
    a(f"buffer_load_dwordx2 v[2:3], v1, s[20:23], s53 offen")
    a(f"s_lshl_b32 s54, s49, 3")
    a(f"s_lshl_b32 s55, s6, 1")
    a(f"s_add_u32 s54, s54, s55")
    a(f"s_mul_i32 s54, s54, 10240")
    a(f"s_add_u32 s54, s54, s52")
    a(f"s_add_u32 s54, s54, {UF_OFF}")
    zero_acc(a, g)
    if stamp: stamp_mid(a, 0)
    main_loop(a, g, S, P, name, 16)
    if stamp: stamp_mid(a, 1)
    reduce4(a, g, S, 0, lambda: a("s_barrier"))
    b1_epilogue(a, g, S, 8, 54, 2)
    if stamp: stamp_end(a, 8, 6, 0)
    a("s_endpgm")
    a.label(f"{name}_wo")
    a(f"""
    s_and_b32 s47, s47, 3
    s_lshl_b32 s47, s47, 3
    s_add_u32 s47, s47, s46
    s_lshl_b32 s47, s47, 2
    s_add_u32 s47, s47, s6           ; task
    s_cmp_ge_u32 s47, 80
    s_cbranch_scc1 {name}_end
    s_mul_i32 s51, s47, 10240
    s_add_u32 s52, s51, {WOF_OFF}
    s_mul_i32 s53, s6, {REGION}
    """)
    srd(a, 12, 44, 45, 0, 640 * 1280)
    transpose_task(a, 8, S, 12, 51, 8, 52, 53)
    a.label(f"{name}_end")
    a("s_endpgm")
    return finish(a, name, g.nv, (256, 256, 4 * REGION))

def k3_kernel(name="k3_kernel", stamp=False, NB=3, with_b2=True):
    a = Asm(); S = GS; g = G(NB=NB, ff=True)
    XR = g.nv; nv = XR + 12
    a.label(name)
    a(f"""
    s_cmp_ge_u32 s2, 256
    s_cbranch_scc1 {name}_end
    s_load_dwordx2 s[4:5], s[0:1], 96
    s_load_dwordx4 s[40:43], s[0:1], 64
    s_load_dwordx2 s[44:45], s[0:1], 0
    s_load_dwordx2 s[56:57], s[0:1], 80
    v_lshrrev_b32 v1, 6, v0
    s_nop 0
    v_readfirstlane_b32 s6, v1
    """)
    if stamp: stamp_begin(a)
    a(f"""
    s_and_b32 s46, s2, 7
    s_lshr_b32 s47, s2, 3
    s_and_b32 s48, s46, 1
    s_lshl_b32 s48, s48, 2
    s_and_b32 s49, s47, 3
    s_add_u32 s48, s48, s49          ; db
    s_lshr_b32 s49, s46, 1
    s_lshl_b32 s49, s49, 3
    s_lshr_b32 s50, s47, 2
    s_add_u32 s49, s49, s50          ; sb
    s_waitcnt lgkmcnt(0)
    """)
    srd(a, 8, 4, 5, 0, WS_END)
    srd(a, 12, 4, 5, OF_OFF, OF_SZ)
    srd(a, 16, 4, 5, WOF_OFF, WOF_SZ)
    setup_lane(a, g, S, 0)
    P1 = dict(mode="FF", srdT=12, srdF=16, plane2=32768, planeF=10240, W=4, TisA=False)
    setup_F(a, g, g.vT, 32768)
    setup_F(a, g, g.vF, 10240)
    a("s_lshl_b32 s51, s49, 10")
    a("s_mul_i32 s52, s48, 1280")
    init_offsets(a, g, S, P1, 51, 52)
    prologue_loads(a, g, S, P1)
    srd(a, 20, 44, 45, 0, 2048 * 1280)
    srd(a, 24, 42, 43, 0, 4096)
    srd(a, 60, 56, 57, 0, 2048 * 1280)
    a(f"""
    s_lshl_b32 s53, s49, 2
    s_add_u32 s53, s53, s6
    s_lshl_b32 s55, s53, 5               ; (s0+16w)*2
    s_mul_i32 s53, s53, {16*1280}
    s_mul_i32 s54, s48, 160
    s_add_u32 s53, s53, s54
    v_mul_u32_u24 v1, 1280, v{g.tmp+1}
    v_lshl_add_u32 v1, v{g.tmp+2}, 3, v1
    v_lshlrev_b32 v2, 1, v{g.tmp+1}
    """)
    for j in range(5):
        a(f"buffer_load_dwordx2 {vr(XR+2*j,2)}, v1, s[20:23], s53 offen offset:{j*32}")
    a(f"buffer_load_ushort v{XR+10}, v2, s[24:27], s55 offen")
    zero_acc(a, g)
    if stamp: stamp_mid(a, 0)
    main_loop(a, g, S, P1, name + "_a", 5)
    if with_b2:
        srd(a, 12, 40, 41, 0, 1728 * 4096)
        srd(a, 16, 4, 5, UF_OFF, UF_SZ)
        P2 = dict(mode="TF", srdT=12, srdF=16, strideT=4096, planeF=10240, W=4, TisA=False)
        setup_T(a, g, 4096)
        a("s_lshl_b32 s51, s49, 7")
        init_offsets(a, g, S, P2, 51, 52)
        prologue_loads(a, g, S, P2)
        main_loop(a, g, S, P2, name + "_b", 14)
    if stamp: stamp_mid(a, 1)
    reduce4(a, g, S, 0, lambda: a("s_barrier"))
    A = g.ACC; t = g.tmp
    a(f"v_lshlrev_b32 v{t+4}, 16, v{XR+10}")
    for j in range(5):
        a(f"v_lshlrev_b32 v{t}, 16, v{XR+2*j}")
        a(f"v_and_b32 v{t+1}, 0xffff0000, v{XR+2*j}")
        a(f"v_lshlrev_b32 v{t+2}, 16, v{XR+2*j+1}")
        a(f"v_and_b32 v{t+3}, 0xffff0000, v{XR+2*j+1}")
        for i in range(4):
            a(f"v_add_f32 v{A+4*j+i}, v{A+4*j+i}, v{t+4}")
        a(f"v_pk_add_f32 {vr(A+4*j,2)}, {vr(A+4*j,2)}, {vr(t,2)}")
        a(f"v_pk_add_f32 {vr(A+4*j+2,2)}, {vr(A+4*j+2,2)}, {vr(t+2,2)}")
    pack_store(a, g, A, 60, 53, PLANE=0, rowstride=1280, mode="R")
    if stamp: stamp_end(a, 8, 6, 1)
    a.label(f"{name}_end")
    a("s_endpgm")
    return finish(a, name, nv, (256, 256, 4 * REGION))
```

```python
S = 2048; D = 640; H = 32; DH = 20; F = 1728
QP_OFF  = 0
QP_SZ   = 160 * 2048 * 8
KV_OFF  = QP_OFF + QP_SZ
KV_SZ   = 64 * 3072
KM_OFF  = KV_OFF + KV_SZ
KM_SZ   = 8192
FL_OFF  = KM_OFF + 4096
FL_SZ = 4096
HF_OFF  = KM_OFF + KM_SZ
HF_SZ   = 256 * 640 * 16
UF_OFF  = HF_OFF + HF_SZ
UF_SZ   = 216 * 640 * 16
OF_OFF  = UF_OFF + UF_SZ
OF_SZ   = 80 * 2048 * 16
WOF_OFF = OF_OFF + OF_SZ
WOF_SZ  = 80 * 640 * 16
Y_OFF   = WOF_OFF + WOF_SZ
Y_SZ    = 2048 * 640 * 4
WS_END  = Y_OFF + Y_SZ + 4 * 65536
TILE_B = 3072
V_OFF_T = 1280
V_PLANE = 448
K1_OFF_T = 1024
if __name__ == "__main__":
    for k, v in list(globals().items()):
        if k.endswith("_OFF") or k == "WS_END": print(k, v, hex(v), v % 4096)
```

```python
import sys
from k1 import k1_kernel
from kernels import *
import attn
from build import build
def full(stamp=False):
    t, k, g = attn.attn_kernel("attn_kernel", sync="barrier", stamp=stamp)
    return build([k1_kernel(stamp=stamp), ("attn_kernel", t, k, g), b1_kernel(stamp=stamp), k3_kernel(stamp=stamp)])
open("parallel_sum__grouped_kv_mqa__mixer_token_mlp__prompt.s", "w").write(full())
```

```python
import sys
from k1 import k1_kernel
from kernels import *
import attn
from build import build
def nopk(name="nop_kernel"):
    a = Asm(); a.label(name); a("s_endpgm")
    return name, a.text(), kd(name, 8), (256, 256, 0)
t, k, g = attn.attn_kernel("attn_kernel", sync="barrier")
base = [k1_kernel(), ("attn_kernel", t, k, g), b1_kernel(), k3_kernel()]
import os
os.makedirs("var", exist_ok=True)
open("base.s", "w").write(build(base))
open("nop4end.s", "w").write(build(base + [nopk()] * 4))
open("nop4beg.s", "w").write(build([nopk()] * 4 + base))
open("twice.s", "w").write(build(base + base))
from dbgstamp import stamped
open("dbg.s", "w").write(build(stamped(base)))
```

```python
import re
def add_stamps(name, text, idx):
    lines = text.split("\n")
    out = []
    for l in lines:
        if l.strip() == name + ":":
            out.append(l)
            out.append("    s_memrealtime s[84:85]")
            out.append("    s_load_dwordx2 s[86:87], s[0:1], 88")
            out.append("    s_mov_b32 s88, s2")
            continue
        if l.strip() == "s_endpgm":
            out.append(f"    s_branch {name}_dbg")
            continue
        out.append(l)
    out.append(f"""{name}_dbg:
    s_cmp_ge_u32 s88, 256
    s_cbranch_scc1 {name}_dbgx
    s_and_b32 s88, s88, 0x18
    s_cmp_lg_u32 s88, 0
    s_cbranch_scc1 {name}_dbgx
    s_waitcnt vmcnt(0) lgkmcnt(0)
    s_memrealtime s[88:89]
    s_sub_u32 s86, s86, {512*idx}
    s_subb_u32 s87, s87, 0
    s_waitcnt lgkmcnt(0)
    s_mov_b64 exec, 1
    s_not_b32 s84, s84
    v_mov_b32 v0, 0
    v_mov_b32 v1, s84
    v_mov_b32 v2, s88
    global_atomic_umax v0, v1, s[86:87] offset:{8*idx}
    global_atomic_umax v0, v2, s[86:87] offset:{8*idx+4}
{name}_dbgx:
    s_endpgm
""")
    return "\n".join(out)
def stamped(kernels):
    return [(n, add_stamps(n, t, i), k, g) for i, (n, t, k, g) in enumerate(kernels)]
```

```python
import re
def add_stamps(name, text, idx, n):
    lines = text.split("\n")
    out = []
    for l in lines:
        if l.strip() == name + ":":
            out.append(l)
            out.append("    s_memrealtime s[84:85]")
            out.append("    s_load_dwordx2 s[86:87], s[0:1], 88")
            out.append("    s_mov_b32 s88, s2")
            continue
        if l.strip() == "s_endpgm":
            out.append(f"    s_branch {name}_dbg")
            continue
        out.append(l)
    out.append(f"""{name}_dbg:
    s_cmp_ge_u32 s88, 256
    s_cbranch_scc1 {name}_dbgx
    s_and_b32 s88, s88, 0x78
    s_cmp_lg_u32 s88, 0
    s_cbranch_scc1 {name}_dbgx
    v_readfirstlane_b32 s89, v0
    s_waitcnt vmcnt(0) lgkmcnt(0)
    s_memrealtime s[88:89]
    s_add_u32 s86, s86, {512*(n-1-idx)}
    s_addc_u32 s87, s87, 0
    s_waitcnt lgkmcnt(0)
    s_mov_b64 exec, 1
    s_not_b32 s84, s84
    v_mov_b32 v0, 0
    v_mov_b32 v1, s84
    v_mov_b32 v2, s88
    global_atomic_umax v0, v1, s[86:87] offset:{8*idx}
    global_atomic_umax v0, v2, s[86:87] offset:{8*idx+4}
{name}_dbgx:
    s_endpgm
""")
    return "\n".join(out)
def stamped(kernels):
    return [(n, add_stamps(n, t, i, len(kernels)), k, g) for i, (n, t, k, g) in enumerate(kernels)]
```

```python
from asmlib import *
from layout import *

V_L16 = 1
V_AV  = 2
V_AK1 = 3
V_T0  = 4
QA0, QA1, QB0, QB1 = 8, 12, 16, 20
K0 = [24, 32]; K1 = [28, 36]
VV = [[40, 44], [48, 52]]
PA, PB = 56, 64
SA, SB, OA, OB = 72, 88, 104, 120
E = 136
TMP = 144
V_FLAG = 160
V_ONE = 161
V_POLL = 162
V_PADDR = 163
NV_ATT = 164

CHUNK = 12288
T_BOUND = 48.0

def f2u(x):
    import struct
    return struct.unpack("<I", struct.pack("<f", x))[0]

def mfma32(d, a, b, c):
    cs = "0" if c is None else vr(c, 16)
    return f"v_mfma_f32_32x32x16_bf16 {vr(d,16)}, {vr(a,4)}, {vr(b,4)}, {cs}"

def valu_stream(S_, P_, Pprev, lag):
    out = []
    if not lag:
        for k in range(4):
            for i in range(4):
                out.append(f"v_exp_f32 {vr(S_+4*k+i)}, {vr(S_+4*k+i)}")
            out.append(f"v_cvt_pk_bf16_f32 {vr(P_+2*k)}, {vr(S_+4*k)}, {vr(S_+4*k+1)}")
            out.append(f"v_cvt_pk_bf16_f32 {vr(P_+2*k+1)}, {vr(S_+4*k+2)}, {vr(S_+4*k+3)}")
    else:
        for k in range(4):
            e = E + 4 * (k & 1)
            ep = E + 4 * ((k + 1) & 1)
            for i in range(4):
                out.append(f"v_exp_f32 {vr(e+i)}, {vr(S_+4*k+i)}")
            pp = (Pprev + 6) if k == 0 else (P_ + 2 * (k - 1))
            out.append(f"v_cvt_pk_bf16_f32 {vr(pp)}, {vr(ep)}, {vr(ep+1)}")
            out.append(f"v_cvt_pk_bf16_f32 {vr(pp+1)}, {vr(ep+2)}, {vr(ep+3)}")
    return out

def emit_phase(a, mf, aux, valu, pat):
    p = 0
    for k in range(4):
        a(mf[k])
        for x in aux[k]: a(x)
        for x in valu[p:p + pat[k]]: a(x)
        p += pat[k]
    assert p == len(valu)

def attn_flaginit(a, S):
    t0, w = S["t0"], S["w"]
    a(f"s_lshl_b32 s{t0}, s{w}, 8")
    a(f"s_add_u32 s{t0}, s{t0}, {S['flag_addr']}")
    a(f"v_and_b32 v{V_T0}, 63, v0")
    a(f"v_lshl_add_u32 v{V_FLAG}, v{V_T0}, 2, s{t0}")
    a(f"v_mov_b32 v{V_ONE}, 0")
    a(f"ds_write_b32 v{V_FLAG}, v{V_ONE}")
    a(f"v_and_b32 v{V_PADDR}, 3, v0")
    a(f"v_mul_u32_u24 v{V_PADDR}, 260, v{V_PADDR}")
    a(f"v_add_u32 v{V_PADDR}, {S['flag_addr']}, v{V_PADDR}")
    a(f"v_mov_b32 v{V_ONE}, 1")

def attn_firstsync(a, S, tag):
    a(f"ds_add_u32 v{V_FLAG}, v{V_ONE}")
    a.label(f"{tag}_fs")
    a(f"ds_read_b32 v{V_POLL}, v{V_PADDR}")
    a("s_waitcnt lgkmcnt(0)")
    a(f"v_cmp_gt_u32 vcc, 1, v{V_POLL}")
    a("s_nop 4")
    a(f"s_cbranch_vccnz {tag}_fs")

def attn_prologue(a, S, sync, tag):
    ws, w, wg = S["ws"], S["w"], S["wg"]
    srdw, srdk = S["srdw"], S["srdk"]
    t0, t1, t2 = S["t0"], S["t1"], S["t2"]
    so = S["soff"]; wb = S["wb"]
    a(f"""
    v_and_b32 v{V_T0}, 63, v0
    v_lshlrev_b32 v{V_L16}, 4, v{V_T0}
    s_add_u32 s{srdk}, s{ws}, {KV_OFF}
    s_addc_u32 s{srdk+1}, s{ws+1}, 0
    s_and_b32 s{srdk+1}, s{srdk+1}, 0xffff
    s_mov_b32 s{srdk+2}, {KV_SZ}
    s_mov_b32 s{srdk+3}, 0x20000
    s_mul_i32 s{wb}, s{w}, 3072
    s_mov_b32 s{so}, s{wb}
    """)
    a(f"""
    s_mov_b32 s{srdw}, s{ws}
    s_and_b32 s{srdw+1}, s{ws+1}, 0xffff
    s_mov_b32 s{srdw+2}, {WS_END}
    s_mov_b32 s{srdw+3}, 0x20000
    v_and_b32 v{V_T0+1}, 31, v0
    v_bfe_u32 v{V_T0+2}, v0, 5, 1          ; hf
    v_lshlrev_b32 v{TMP}, 3, v{V_T0+1}
    v_lshl_add_u32 v{TMP+1}, v{V_T0+2}, 14, v{TMP}
    v_lshl_add_u32 v{TMP+2}, v{V_T0+2}, 30, v{TMP}
    s_and_b32 s{t0}, s{wg}, 3
    s_lshl_b32 s{t0}, s{t0}, 2
    s_add_u32 s{t0}, s{t0}, s{w}
    s_lshr_b32 s{t1}, s{wg}, 2
    s_mul_i32 s{t2}, s{t0}, {10*16384}
    s_lshl_b32 s{S['qo']}, s{t1}, 8
    s_add_u32 s{t2}, s{t2}, s{S['qo']}
    s_mul_i32 s{S['oo']}, s{t0}, {5*32768}
    s_lshl_b32 s{t1}, s{t1}, 9
    s_add_u32 s{S['oo']}, s{S['oo']}, s{t1}
    s_add_u32 s{S['oo']}, s{S['oo']}, {OF_OFF}
    """)
    assert QP_OFF == 0
    for (q0, q1, hoff) in ((QA0, QA1, 0), (QB0, QB1, 5)):
        a(f"s_add_u32 s{t0}, s{t2}, {hoff*16384}")
        a(f"buffer_load_dwordx2 {vr(q0,2)}, v{TMP+1}, {sr(srdw,4)}, s{t0} offen")
        a(f"s_add_u32 s{t0}, s{t2}, {(hoff+2)*16384}")
        a(f"buffer_load_dwordx2 {vr(q0+2,2)}, v{TMP+1}, {sr(srdw,4)}, s{t0} offen")
        a(f"s_add_u32 s{t0}, s{t2}, {(hoff+4)*16384}")
        a(f"buffer_load_dwordx2 {vr(q1,2)}, v{TMP+2}, {sr(srdw,4)}, s{t0} offen")
    a(f"""
    v_lshlrev_b32 v{TMP+3}, 2, v{V_T0}
    s_mov_b32 s{t0}, {KM_OFF}
    buffer_load_dword v{TMP+4}, v{TMP+3}, {sr(srdw,4)}, s{t0} offen
    """)
    for c in range(3):
        a(f"s_add_u32 m0, s{wb}, {c*CHUNK}")
        a("s_nop 0")
        for i in range(3):
            a(f"buffer_load_dwordx4 v{V_L16}, {sr(srdk,4)}, s{so} offen offset:{i*1024} lds")
        a(f"s_add_u32 s{so}, s{so}, {CHUNK}")
    a(f"""
    v_min_u32 v{V_AV}, 27, v{V_T0+1}
    v_lshlrev_b32 v{V_AV}, 4, v{V_AV}
    v_mul_u32_u24 v{TMP+5}, {V_PLANE}, v{V_T0+2}
    v_add_u32 v{V_AV}, v{V_AV}, v{TMP+5}
    v_add_u32 v{V_AV}, {V_OFF_T}, v{V_AV}
    v_add_u32 v{V_AK1}, {K1_OFF_T}, v{TMP}
    v_cmp_eq_u32 vcc, 1, v{V_T0+2}
    v_mov_b32 v{TMP+5}, {V_OFF_T + 27*16}
    v_mov_b32 v{K1[0]+2}, 0x3f80
    v_cndmask_b32 v{V_AK1}, v{V_AK1}, v{TMP+5}, vcc
    v_mov_b32 v{K1[0]+3}, 0
    v_mov_b32 v{K1[1]+2}, 0x3f80
    v_mov_b32 v{K1[1]+3}, 0
    v_lshlrev_b32 v{V_T0+3}, 4, v{V_T0+1}
    v_lshl_add_u32 v{V_T0+3}, v{V_T0+2}, 15, v{V_T0+3}
    """)
    for i in range(16):
        a(f"v_mov_b32 v{OA+i}, 0")
        a(f"v_mov_b32 v{OB+i}, 0")
    for i in range(8):
        a(f"v_mov_b32 v{PB+i}, 0")
        a(f"v_mov_b32 v{VV[1][0]+i}, 0")
        a(f"v_mov_b32 v{E+i}, 0")
    a("s_waitcnt vmcnt(9)")
    km = TMP + 4
    for r in (8, 4, 2, 1):
        a(f"s_nop 1")
        a(f"v_max_f32_dpp v{km}, v{km}, v{km} row_ror:{r} row_mask:0xf bank_mask:0xf")
    for sw in ("v_permlane16_swap_b32", "v_permlane32_swap_b32"):
        a(f"v_mov_b32 v{km+1}, v{km}")
        a("s_nop 1")
        a(f"{sw} v{km}, v{km+1}")
        a("s_nop 1")
        a(f"v_max_f32 v{km}, v{km}, v{km+1}")
    for (q0, q1, t) in ((QA0, QA1, TMP + 6), (QB0, QB1, TMP + 8)):
        a(f"v_dot2_f32_bf16 v{t}, v{q0}, v{q0}, 0")
        for r in (q0 + 1, q0 + 2, q0 + 3, q1, q1 + 1):
            a(f"v_dot2_f32_bf16 v{t}, v{r}, v{r}, v{t}")
        a("s_nop 2")
        a(f"v_mov_b32 v{t+1}, v{t}")
        a("s_nop 1")
        a(f"v_permlane32_swap_b32 v{t}, v{t+1}")
        a("s_nop 1")
        a(f"v_add_f32 v{t}, v{t}, v{t+1}")
        a(f"v_mul_f32 v{t}, v{t}, v{km}")
        a(f"v_sqrt_f32 v{t}, v{t}")
        a("s_nop 0")
        a(f"v_sub_f32 v{t+1}, 0, v{t}")
        a(f"v_cvt_pk_bf16_f32 v{t+1}, v{t+1}, 0")
        a(f"v_cndmask_b32 v{q1+2}, v{t+1}, 0, vcc")
        a(f"v_mov_b32 v{q1+3}, 0")
    a(f"v_max_f32 v{TMP+6}, v{TMP+6}, v{TMP+8}")
    a(f"v_mov_b32 v{TMP+7}, {hex(f2u(T_BOUND))}")
    a(f"v_cmp_nle_f32 vcc, v{TMP+6}, v{TMP+7}")
    a("s_waitcnt vmcnt(6)")

def ds_k(slot, tile, buf):
    o = slot * CHUNK + tile * TILE_B
    return [f"ds_read_b128 {vr(K0[buf],4)}, v{V_L16} offset:{o}",
            f"ds_read_b64 {vr(K1[buf],2)}, v{V_AK1} offset:{o}"]
def ds_v(slot, tile, buf):
    o = slot * CHUNK + tile * TILE_B
    return [f"ds_read_b128 {vr(VV[buf][0],4)}, v{V_AV} offset:{o}",
            f"ds_read_b128 {vr(VV[buf][1],4)}, v{V_AV} offset:{o+2*V_PLANE}"]

def attn_main(a, S, sync, tag, pat=(6,6,6,6), lag=False, prio=None, nods=False, nodma=False, nowait=False, clk=False):
    srdk, so, wb = S["srdk"], S["soff"], S["wb"]
    cnt, tgt = S["cnt"], S["tgt"]
    for x in ds_k(0, 0, 0): a(x)
    a("s_waitcnt lgkmcnt(0)")
    a(mfma32(SA, K0[0], QA0, None))
    a(mfma32(SA, K1[0], QA1, SA))
    for x in ds_k(0, 1, 1): a(x)
    for x in ds_v(0, 0, 0): a(x)
    a(f"s_mov_b32 s{cnt}, 4")
    a(f"s_mov_b32 s{tgt}, 2")
    a("s_nop 7")
    a(".p2align 6")
    a.label(f"{tag}_loop")
    for c in range(4):
        for t in range(4):
            j = 4 * c + t
            kb, vb = j & 1, j & 1
            mf = [mfma32(SB, K0[kb], QB0, None), mfma32(SB, K1[kb], QB1, SB),
                  mfma32(OB, VV[vb ^ 1][0], PB, OB), mfma32(OB, VV[vb ^ 1][1], PB + 4, OB)]
            aux = [[], [], [], ["s_waitcnt lgkmcnt(0)"]]
            dslot = (c + 3) & 3
            dma = [f"buffer_load_dwordx4 v{V_L16}, {sr(srdk,4)}, s{so} offen offset:{i*1024} lds" for i in range(3)]
            if sync == "barrier":
                if t == 0:
                    aux[0] = ["s_waitcnt vmcnt(3)"]
                    aux[1] = ["s_barrier"]
                    aux[2] = [f"s_add_u32 m0, s{wb}, {dslot*CHUNK}"]
                if t == 1:
                    aux[0] = [dma[0]]; aux[1] = [dma[1]]; aux[2] = [dma[2]]
                if t == 2:
                    aux[0] = [f"s_add_u32 s{so}, s{so}, {CHUNK}"]
            else:
                if t == 0:
                    aux[0] = ["s_waitcnt vmcnt(3)"]
                    aux[1] = [f"ds_add_u32 v{V_FLAG}, v{V_ONE}"]
                    aux[2] = [f"s_add_u32 m0, s{wb}, {dslot*CHUNK}"]
                if t == 1:
                    aux[2] = [f"ds_read_b32 v{V_POLL}, v{V_PADDR}"]
                if t == 2:
                    aux[0] = [f"v_cmp_gt_u32 vcc, s{tgt}, v{V_POLL}"]
                    aux[2] = [f"s_cbranch_vccnz {tag}_spin{c}", f"LABEL {tag}_back{c}"]
                if t == 3:
                    aux[0] = [dma[0]]; aux[1] = [dma[1]]; aux[2] = [dma[2]]
            if nodma: aux = [[], [], [], ["s_waitcnt lgkmcnt(0)"]]
            if nowait: aux[3] = []
            va = valu_stream(SA, PA, PB, lag)
            emit_phase_l(a, mf, aux, va, pat)
            mf = [mfma32(SA, K0[kb ^ 1], QA0, None), mfma32(SA, K1[kb ^ 1], QA1, SA),
                  mfma32(OA, VV[vb][0], PA, OA), mfma32(OA, VV[vb][1], PA + 4, OA)]
            j2 = j + 2; j1 = j + 1
            dk = ds_k((j2 >> 2) & 3, j2 & 3, kb)
            dv = ds_v((j1 >> 2) & 3, j1 & 3, vb ^ 1)
            aux = [[dk[0]], [dk[1]], [dv[0]], [dv[1]]]
            if nods: aux = [[], [], [], []]
            if sync == "flag" and t == 3:
                aux[0].append(f"s_add_u32 s{so}, s{so}, {CHUNK}")
                aux[1].append(f"s_add_u32 s{tgt}, s{tgt}, 1")
            if c == 3 and t == 3:
                aux[2].append(f"s_sub_u32 s{cnt}, s{cnt}, 1")
                aux[3].append(f"s_cmp_lg_u32 s{cnt}, 0")
            va = valu_stream(SB, PB, PA, lag)
            emit_phase_l(a, mf, aux, va, pat)
    if clk:
        a("s_mov_b32 s56, s52"); a("s_mov_b32 s57, s53")
        a("s_mov_b32 s52, s48"); a("s_mov_b32 s53, s49")
        a("s_mov_b32 s48, s44"); a("s_mov_b32 s49, s45")
        a("s_memtime s[44:45]"); a("s_memrealtime s[46:47]"); a("s_waitcnt lgkmcnt(0)"); a("s_mov_b32 s45, s46")
    a(f"s_cbranch_scc1 {tag}_loop")
    if lag:
        ep = E + 4
        a(f"v_cvt_pk_bf16_f32 {vr(PB+6)}, {vr(ep)}, {vr(ep+1)}")
        a(f"v_cvt_pk_bf16_f32 {vr(PB+7)}, {vr(ep+2)}, {vr(ep+3)}")
    a("s_nop 1")
    a(mfma32(OB, VV[1][0], PB, OB))
    a(mfma32(OB, VV[1][1], PB + 4, OB))

def attn_spins(a, S, tag):
    for c in range(4):
        a.label(f"{tag}_spin{c}")
        a(f"ds_read_b32 v{V_POLL}, v{V_PADDR}")
        a("s_waitcnt lgkmcnt(0)")
        a(f"v_cmp_gt_u32 vcc, s{S['tgt']}, v{V_POLL}")
        a("s_nop 4")
        a(f"s_cbranch_vccnz {tag}_spin{c}")
        a(f"s_branch {tag}_back{c}")

def emit_phase_l(a, mf, aux, valu, pat):
    p = 0
    for k in range(4):
        a(mf[k])
        for x in aux[k]:
            if x.startswith("LABEL "): a.label(x[6:])
            else: a(x)
        for x in valu[p:p + pat[k]]: a(x)
        p += pat[k]
    assert p == len(valu)

def attn_epilogue(a, S):
    srdw, oo, t0 = S["srdw"], S["oo"], S["t0"]
    a("s_waitcnt vmcnt(0) lgkmcnt(0)")
    a("s_nop 7")
    a("s_nop 3")
    for (O, t) in ((OA, E), (OB, E + 2)):
        a(f"v_mov_b32 v{t}, v{O+8}")
        a(f"v_mov_b32 v{t+1}, v{O+8}")
        a("s_nop 1")
        a(f"v_permlane32_swap_b32 v{t}, v{t+1}")
        a("s_nop 1")
        a(f"v_rcp_f32 v{t+1}, v{t+1}")
        a("s_nop 0")
        for i in range(12):
            a(f"v_mul_f32 v{O+i}, v{O+i}, v{t+1}")
    def pk(d, s):
        a(f"v_cvt_pk_bf16_f32 v{d}, v{s}, v{s+1}")
        a(f"v_cvt_pk_bf16_f32 v{d+1}, v{s+2}, v{s+3}")
    pk(TMP, OA); pk(TMP + 2, OA + 4); pk(TMP + 4, OA + 8)
    pk(TMP + 6, OB); pk(TMP + 12, OB + 4); pk(TMP + 10, OB + 8)
    a("s_nop 1")
    for i in range(2):
        a(f"v_permlane32_swap_b32 v{TMP+i}, v{TMP+2+i}")
    for i in range(2):
        a(f"v_permlane32_swap_b32 v{TMP+6+i}, v{TMP+12+i}")
    a("s_nop 1")
    for i in range(2):
        a(f"v_permlane32_swap_b32 v{TMP+4+i}, v{TMP+12+i}")
    a("s_nop 1")
    for i in range(2):
        a(f"v_permlane32_swap_b32 v{TMP+12+i}, v{TMP+8+i}")
    a("s_nop 1")
    a(f"buffer_store_dwordx4 {vr(TMP,4)}, v{V_T0+3}, {sr(srdw,4)}, s{oo} offen")
    a(f"s_add_u32 s{t0}, s{oo}, {2*32768}")
    a(f"buffer_store_dwordx4 {vr(TMP+4,4)}, v{V_T0+3}, {sr(srdw,4)}, s{t0} offen")
    a(f"s_add_u32 s{t0}, s{oo}, {4*32768}")
    a("s_mov_b32 exec_hi, 0")
    a(f"buffer_store_dwordx4 {vr(TMP+8,4)}, v{V_T0+3}, {sr(srdw,4)}, s{t0} offen")

def kd(name, nv, ns=102):
    nv4 = (nv + 3) // 4 * 4
    return f""".amdhsa_kernel {name}
  .amdhsa_next_free_vgpr {nv}
  .amdhsa_next_free_sgpr {ns}
  .amdhsa_accum_offset {nv4}
  .amdhsa_group_segment_fixed_size 0
  .amdhsa_kernarg_size 104
  .amdhsa_user_sgpr_count 2
  .amdhsa_user_sgpr_kernarg_segment_ptr 1
  .amdhsa_system_sgpr_workgroup_id_x 1
  .amdhsa_float_denorm_mode_32 3
.end_amdhsa_kernel
"""

SREG = dict(ws=4, w=6, wg=2, srdw=8, srdk=12, t0=16, t1=17, t2=18, soff=19, wb=20, qo=21, oo=22, cnt=23, tgt=24, flag_addr=4*CHUNK)

def attn_kernel(name, sync="barrier", stamp=False, **kw):
    a = Asm()
    S = SREG
    a.label(name)
    a(f"""
    s_cmp_ge_u32 s2, 256
    s_cbranch_scc1 {name}_end
    s_load_dwordx2 s[4:5], s[0:1], 96
    v_lshrrev_b32 v1, 6, v0
    s_nop 0
    v_readfirstlane_b32 s6, v1
    """)
    if stamp:
        a("s_memtime s[30:31]")
        a("s_memrealtime s[32:33]")
    if sync == "flag": attn_flaginit(a, S)
    a("s_waitcnt lgkmcnt(0)")
    if sync == "flag": a("s_barrier")
    attn_prologue(a, S, sync, name)
    if sync == "flag":
        a("s_mov_b64 s[26:27], vcc")
        attn_firstsync(a, S, name)
    else: a("s_barrier")
    if stamp:
        a("s_memtime s[34:35]")
    attn_main(a, S, sync, name, **kw)
    if stamp:
        a("s_memtime s[36:37]")
    attn_epilogue(a, S)
    if stamp:
        a(f"""
        s_mov_b64 exec, -1
        s_waitcnt vmcnt(0)
        s_memtime s[38:39]
        s_memrealtime s[40:41]
        s_waitcnt lgkmcnt(0)
        s_sub_u32 s34, s34, s30
        s_sub_u32 s36, s36, s30
        s_sub_u32 s38, s38, s30
        s_sub_u32 s40, s40, s32
        v_mov_b32 v8, s34
        v_mov_b32 v9, s36
        v_mov_b32 v10, s38
        v_mov_b32 v11, s40
        s_lshl_b32 s16, s2, 2
        s_add_u32 s16, s16, s6
        s_lshl_b32 s16, s16, 4
        s_add_u32 s16, s16, {WS_END - 65536}
        v_mov_b32 v12, 0
        buffer_store_dwordx4 v[8:11], v12, s[8:11], s16 offen
        """)
        if kw.get("clk"):
            a("s_sub_u32 s16, s16, 65536")
            for i, r in enumerate((56, 52, 48, 44)):
                a(f"s_sub_u32 s{r}, s{r}, s30"); a(f"s_sub_u32 s{r+1}, s{r+1}, s32")
            a("s_nop 2")
            a("v_mov_b32 v8, s56\nv_mov_b32 v9, s57\nv_mov_b32 v10, s52\nv_mov_b32 v11, s53")
            a("buffer_store_dwordx4 v[8:11], v12, s[8:11], s16 offen")
            a("s_sub_u32 s16, s16, 65536")
            a("s_nop 2")
            a("v_mov_b32 v8, s48\nv_mov_b32 v9, s49\nv_mov_b32 v10, s44\nv_mov_b32 v11, s45")
            a("buffer_store_dwordx4 v[8:11], v12, s[8:11], s16 offen")
    a.label(f"{name}_end")
    a("s_endpgm")
    if sync == "flag":
        attn_spins(a, S, name)
    errs = check_hazards(a.lines, name)
    for e in errs: print("HAZARD", e)
    return a.text(), kd(name, NV_ATT), (256, 256, 4 * CHUNK + 1024)
```

```python
from asmlib import *
from layout import *

def mfma16(d, a, b, c):
    cs = "0" if c is None else vr(c, 4)
    return f"v_mfma_f32_16x16x32_bf16 {vr(d,4)}, {vr(a,4)}, {vr(b,4)}, {cs}"

def srd(a, d, lo, hi, off, size):
    if off:
        a(f"s_add_u32 s{d}, s{lo}, {off}")
        a(f"s_addc_u32 s{d+1}, s{hi}, 0")
        a(f"s_and_b32 s{d+1}, s{d+1}, 0xffff")
    else:
        a(f"s_mov_b32 s{d}, s{lo}")
        a(f"s_and_b32 s{d+1}, s{hi}, 0xffff")
    a(f"s_mov_b32 s{d+2}, {size}")
    a(f"s_mov_b32 s{d+3}, 0x20000")

class G:
    def __init__(self, NB=3, ff=False, vbase=8):
        self.NB = NB
        v = vbase
        self.ACC = v; v += 80
        self.FB = []
        for i in range(NB): self.FB.append(v); v += 20
        if ff:
            self.F2 = []
            for i in range(NB): self.F2.append(v); v += 16
            self.TB = self.F2[0]
        else:
            self.TB = v; v += 16
        self.vT = v; v += 1
        self.vF = v; v += 1
        self.vR = v; v += 4
        v += v & 1
        self.tmp = v; v += 12
        self.nv = v

RING = 4096
REGION = 16384

def setup_lane(a, g, S, ldsbase):
    w = S["w"]; t0 = S["t0"]; t = g.tmp
    a(f"""
    v_and_b32 v{t}, 63, v0
    v_and_b32 v{t+1}, 15, v0                 ; i4 / r
    v_bfe_u32 v{t+2}, v0, 4, 2               ; kg
    s_mul_i32 s{S['lb']}, s{w}, {REGION}
    s_add_u32 s{S['lb']}, s{S['lb']}, {ldsbase}
    """)
    a(f"""
    v_lshrrev_b32 v{t+3}, 1, v{t+2}
    v_lshlrev_b32 v{t+3}, 4, v{t+3}
    v_and_b32 v{t+4}, 1, v{t+2}
    v_lshl_add_u32 v{t+3}, v{t+4}, 2, v{t+3}
    v_lshrrev_b32 v{t+5}, 2, v{t+1}
    v_add_u32 v{t+3}, v{t+3}, v{t+5}
    v_lshlrev_b32 v{t+3}, 7, v{t+3}          ; slot*128
    v_and_b32 v{t+5}, 3, v{t+1}
    v_lshl_add_u32 v{t+3}, v{t+5}, 3, v{t+3} ; + (i4&3)*8
    v_add_u32 v{t+3}, s{S['lb']}, v{t+3}
    v_lshrrev_b32 v{t+5}, 3, v{t+1}
    v_lshl_add_u32 v{t+5}, v{t+4}, 1, v{t+5} ; swz
    """)
    for b in range(4):
        a(f"s_add_u32 s{t0}, s{w}, {b}")
        a(f"s_and_b32 s{t0}, s{t0}, 3")
        a(f"v_xor_b32 v{t+6}, s{t0}, v{t+5}")
        a(f"v_lshl_add_u32 v{g.vR+b}, v{t+6}, 5, v{t+3}")

def setup_T(a, g, stride):
    t = g.tmp
    a(f"""
    v_bfe_u32 v{t+6}, v0, 3, 2
    v_bfe_u32 v{t+7}, v0, 5, 1
    v_lshl_add_u32 v{t+6}, v{t+7}, 3, v{t+6}
    v_mul_u32_u24 v{g.vT}, {stride}, v{t+6}
    v_and_b32 v{t+6}, 7, v0
    v_lshlrev_b32 v{t+7}, 1, v{t+2}
    v_xor_b32 v{t+6}, v{t+6}, v{t+7}
    v_lshl_add_u32 v{g.vT}, v{t+6}, 4, v{g.vT}
    """)

def setup_F(a, g, vdst, plane):
    t = g.tmp
    a(f"""
    v_mul_u32_u24 v{vdst}, {plane}, v{t+2}
    v_lshl_add_u32 v{vdst}, v{t+1}, 4, v{vdst}
    """)

def issue(a, g, S, b, P, part="TF"):
    so4 = S["so4"]; sf = S["sf"]
    if part == "T":
        a(f"s_add_u32 m0, s{S['lb']}, {b*RING}")
        a("s_nop 0")
        for i in range(4):
            a(f"buffer_load_dwordx4 v{g.vT}, {sr(P['srdT'],4)}, s{so4+i} offen offset:{i*1024} lds")
        for i in range(4):
            a(f"s_add_u32 s{so4+i}, s{so4+i}, {32 * P['W'] * P['strideT']}")
        return
    if part == "F":
        for j in range(5):
            a(f"buffer_load_dwordx4 {vr(g.FB[b]+4*j,4)}, v{g.vF}, {sr(P['srdF'],4)}, s{sf} offen offset:{j*256}{P.get('fmod','')}")
        a(f"s_add_u32 s{sf}, s{sf}, {4*P['W']*P['planeF']}")
        return
    if P["mode"] == "TF":
        a(f"s_add_u32 m0, s{S['lb']}, {b*RING}")
        fm = P.get("fmod", "")
        a(f"buffer_load_dwordx4 {vr(g.FB[b],4)}, v{g.vF}, {sr(P['srdF'],4)}, s{sf} offen{fm}")
        for i in range(4):
            a(f"buffer_load_dwordx4 v{g.vT}, {sr(P['srdT'],4)}, s{so4+i} offen offset:{i*1024} lds")
        for j in range(1, 5):
            a(f"buffer_load_dwordx4 {vr(g.FB[b]+4*j,4)}, v{g.vF}, {sr(P['srdF'],4)}, s{sf} offen offset:{j*256}{fm}")
        inc = 32 * P["W"] * P["strideT"]
    else:
        for i in range(4):
            a(f"buffer_load_dwordx4 {vr(g.F2[b]+4*i,4)}, v{g.vT}, {sr(P['srdT'],4)}, s{so4+i} offen")
        for j in range(5):
            a(f"buffer_load_dwordx4 {vr(g.FB[b]+4*j,4)}, v{g.vF}, {sr(P['srdF'],4)}, s{sf} offen offset:{j*256}")
        inc = 4 * P["W"] * P["plane2"]
    for i in range(4):
        a(f"s_add_u32 s{so4+i}, s{so4+i}, {inc}")
    a(f"s_add_u32 s{sf}, s{sf}, {4*P['W']*P['planeF']}")

def init_offsets(a, g, S, P, sTbase, sFbase):
    so4 = S["so4"]; sf = S["sf"]; w = S["w"]; t0 = S["t0"]
    if P["mode"] == "TF":
        st = P["strideT"]
        a(f"s_mul_i32 s{t0}, s{w}, {32*st}")
        a(f"s_add_u32 s{so4}, s{t0}, s{sTbase}")
        for i in range(1, 4):
            a(f"s_add_u32 s{so4+i}, s{so4}, {(16*(i>>1)+4*(i&1))*st - 1024*i}")
    else:
        a(f"s_mul_i32 s{sf}, s{w}, {4*P['plane2']}")
        a(f"s_add_u32 s{sf}, s{sf}, s{sTbase}")
        for i in range(4):
            a(f"s_add_u32 s{t0}, s{w}, {i}")
            a(f"s_and_b32 s{t0}, s{t0}, 3")
            a(f"s_lshl_b32 s{t0}, s{t0}, 8")
            a(f"s_add_u32 s{so4+i}, s{sf}, s{t0}")
    a(f"s_mul_i32 s{t0}, s{w}, {4*P['planeF']}")
    a(f"s_add_u32 s{sf}, s{t0}, s{sFbase}")

def prologue_loads(a, g, S, P):
    for b in range(g.NB - 1):
        issue(a, g, S, b, P)

def zero_acc(a, g):
    for i in range(80):
        a(f"v_mov_b32 v{g.ACC+i}, 0")

def main_loop(a, g, S, P, tag, nsteps, midentry=False):
    NB = g.NB; cnt = S["cnt"]
    a(f"s_mov_b32 s{cnt}, {nsteps}")
    if midentry:
        issue(a, g, S, NB - 1, P)
        a(f"s_waitcnt vmcnt({9+5*(NB-2)})")
        a(f"s_branch {tag}_mid")
    a.label(f"{tag}_loop")
    for b in range(NB):
        issue(a, g, S, (b + NB - 1) % NB, P)
        a(f"s_waitcnt vmcnt({9*(NB-1)})")
        if b == 0 and midentry: a.label(f"{tag}_mid")
        if P["mode"] == "TF":
            for tb in range(4):
                for t in range(2):
                    a(f"ds_read_b64_tr_b16 {vr(g.TB+4*tb+2*t,2)}, v{g.vR+tb} offset:{b*RING+t*1024}")
        for tb in range(4):
            if P["mode"] == "TF":
                a(f"s_waitcnt lgkmcnt({6-2*tb})")
                T = g.TB + 4 * tb
            else:
                T = g.F2[b] + 4 * tb
            for j in range(5):
                acc = g.ACC + (tb * 5 + j) * 4
                Fr = g.FB[b] + 4 * j
                if P["TisA"]: a(mfma16(acc, T, Fr, acc))
                else: a(mfma16(acc, Fr, T, acc))
        a(f"s_sub_u32 s{cnt}, s{cnt}, 1")
        a(f"s_cmp_eq_u32 s{cnt}, 0")
        if b < NB - 1:
            a(f"s_cbranch_scc1 {tag}_done")
        else:
            a(f"s_cbranch_scc0 {tag}_loop")
    a.label(f"{tag}_done")

def reduce4(a, g, S, ldsbase, sync):
    t = g.tmp; w = S["w"]; t0 = S["t0"]
    a("s_waitcnt vmcnt(0)")
    a(f"v_and_b32 v{t}, 63, v0")
    a(f"v_lshlrev_b32 v{t}, 4, v{t}")
    a(f"v_add_u32 v{t+1}, s{S['lb']}, v{t}")
    a("s_nop 4")
    for tb in range(1, 4):
        for j in range(5):
            a(f"ds_write_b128 v{t+1}, {vr(g.ACC+(tb*5+j)*4,4)} offset:{((tb-1)*5+j)*1024}")
    for tb in range(1, 4):
        a(f"s_sub_u32 s{t0}, s{w}, {tb}")
        a(f"s_and_b32 s{t0}, s{t0}, 3")
        a(f"s_mul_i32 s{t0}, s{t0}, {REGION}")
        a(f"s_add_u32 s{t0}, s{t0}, {ldsbase + (tb-1)*5120}")
        a(f"v_add_u32 v{t+1+tb}, s{t0}, v{t}")
    a("s_waitcnt lgkmcnt(0)")
    sync()
    for tb in range(1, 4):
        for j in range(5):
            a(f"ds_read_b128 {vr(g.ACC+(tb*5+j)*4,4)}, v{t+1+tb} offset:{j*1024}")
    for tb in range(1, 4):
        a(f"s_waitcnt lgkmcnt({15-5*tb})")
        for i in range(0, 20, 2):
            a(f"v_pk_add_f32 {vr(g.ACC+i,2)}, {vr(g.ACC+i,2)}, {vr(g.ACC+tb*20+i,2)}")

def f2u(x):
    import struct
    return struct.unpack("<I", struct.pack("<f", x))[0]

GC1 = -2.0 * 1.4426950408889634 * 0.7978845608028654
GC2 = GC1 * 0.044715

def b1_epilogue(a, g, S, srdU, sUo, vB, store_mod=""):
    t = g.tmp; A = g.ACC; X = g.ACC + 20
    c1, c2 = S["t0"], S["t1"]
    a(f"s_mov_b32 s{c1}, {hex(f2u(GC1))}")
    a(f"s_mov_b32 s{c2}, {hex(f2u(GC2))}")
    a(f"v_lshlrev_b32 v{t}, 16, v{vB}")
    a(f"v_and_b32 v{t+1}, 0xffff0000, v{vB}")
    a(f"v_lshlrev_b32 v{t+2}, 16, v{vB+1}")
    a(f"v_and_b32 v{t+3}, 0xffff0000, v{vB+1}")
    a(f"v_mov_b32 v{t+4}, s{c1}")
    for j in range(5):
        for i in (0, 2):
            a(f"v_pk_add_f32 {vr(A+4*j+i,2)}, {vr(A+4*j+i,2)}, {vr(t+i,2)}")
    for i in range(0, 20, 2):
        a(f"v_pk_mul_f32 {vr(X+i,2)}, {vr(A+i,2)}, {vr(A+i,2)}")
    for i in range(20):
        a(f"v_fma_f32 v{X+i}, v{X+i}, s{c2}, v{t+4}")
    for i in range(0, 20, 2):
        a(f"v_pk_mul_f32 {vr(X+i,2)}, {vr(X+i,2)}, {vr(A+i,2)}")
    for i in range(20):
        a(f"v_exp_f32 v{X+i}, v{X+i}")
    for i in range(20):
        a(f"v_add_f32 v{X+i}, 1.0, v{X+i}")
    for i in range(20):
        a(f"v_rcp_f32 v{X+i}, v{X+i}")
    for i in range(0, 20, 2):
        a(f"v_pk_mul_f32 {vr(X+i,2)}, {vr(X+i,2)}, {vr(A+i,2)}")
    pack_store(a, g, X, srdU, sUo, PLANE=10240, rowstride=16, mode="F", store_mod=store_mod)

def pack_store(a, g, X, srdO, sO, PLANE, rowstride, mode, store_mod=""):
    t = g.tmp; Pk = g.ACC + 40
    for j in range(5):
        a(f"v_cvt_pk_bf16_f32 v{Pk+2*j}, v{X+4*j}, v{X+4*j+1}")
        a(f"v_cvt_pk_bf16_f32 v{Pk+2*j+1}, v{X+4*j+2}, v{X+4*j+3}")
    a(f"v_mov_b32 v{Pk+10}, v{Pk+8}")
    a(f"v_mov_b32 v{Pk+11}, v{Pk+9}")
    a(f"v_and_b32 v{t}, 15, v0")
    a(f"v_bfe_u32 v{t+1}, v0, 4, 1")
    a(f"v_bfe_u32 v{t+2}, v0, 5, 1")
    if mode == "F":
        a(f"v_lshl_add_u32 v{t}, v{t+1}, 4, v{t}")
        a(f"v_lshlrev_b32 v{t}, 4, v{t}")
        a(f"v_mul_u32_u24 v{t+2}, {PLANE}, v{t+2}")
        a(f"v_add_u32 v{t}, v{t}, v{t+2}")
        step = 512
    else:
        a(f"v_mul_u32_u24 v{t}, {rowstride}, v{t}")
        a(f"v_lshl_add_u32 v{t}, v{t+1}, 5, v{t}")
        a(f"v_lshl_add_u32 v{t}, v{t+2}, 4, v{t}")
        step = 64
    for p in range(3):
        for i in range(2):
            a(f"v_permlane16_swap_b32 v{Pk+4*p+i}, v{Pk+4*p+2+i}")
    a("s_nop 1")
    for p in range(3):
        if p == 2:
            a("s_mov_b32 exec_lo, 0xffff")
            a("s_mov_b32 exec_hi, 0xffff")
        a(f"buffer_store_dwordx4 {vr(Pk+4*p,4)}, v{t}, {sr(srdO,4)}, s{sO} offen offset:{p*step}{store_mod}")
    a("s_mov_b64 exec, -1")

def transpose_task(a, vb, S, srdI, sIo, srdO, sOo, ldsaddr_s, body=None, store_mod=""):
    X = vb + 8; t = vb
    a(f"""
    v_bfe_u32 v{t}, v0, 3, 3
    v_and_b32 v{t+1}, 7, v0
    v_mul_u32_u24 v{t+2}, 1280, v{t}
    v_lshl_add_u32 v{t+2}, v{t+1}, 4, v{t+2}
    """)
    for i in range(10):
        a(f"buffer_load_dwordx4 {vr(X+4*i,4)}, v{t+2}, {sr(srdI,4)}, s{sIo} offen offset:{i*128}")
    a(f"""
    v_mul_u32_u24 v{t+2}, 1344, v{t}
    v_lshl_add_u32 v{t+2}, v{t+1}, 4, v{t+2}
    v_add_u32 v{t+2}, s{ldsaddr_s}, v{t+2}
    v_bfe_u32 v{t+3}, v0, 2, 2
    v_mul_u32_u24 v{t+3}, 1344, v{t+3}
    v_bfe_u32 v{t+4}, v0, 4, 2
    v_lshl_add_u32 v{t+3}, v{t+4}, 5, v{t+3}
    v_and_b32 v{t+4}, 3, v0
    v_lshl_add_u32 v{t+3}, v{t+4}, 3, v{t+3}
    v_add_u32 v{t+3}, s{ldsaddr_s}, v{t+3}
    v_and_b32 v{t+4}, 63, v0
    v_lshlrev_b32 v{t+4}, 4, v{t+4}
    """)
    if body: body(a, X, t + 5)
    else: a("s_waitcnt vmcnt(0)")
    for i in range(10):
        a(f"ds_write_b128 v{t+2}, {vr(X+4*i,4)} offset:{i*128}")
    a("s_waitcnt lgkmcnt(0)")
    for j in range(10):
        a(f"ds_read_b64_tr_b16 {vr(X+4*j,2)}, v{t+3} offset:{j*128}")
        a(f"ds_read_b64_tr_b16 {vr(X+4*j+2,2)}, v{t+3} offset:{j*128+4*1344}")
    for j in range(10):
        if j in (0, 4, 8):
            a(f"s_waitcnt lgkmcnt({max(0, 20-2*(j+4))})")
        if j in (4, 8):
            a(f"s_add_u32 s{sOo}, s{sOo}, 4096")
        a(f"buffer_store_dwordx4 {vr(X+4*j,4)}, v{t+4}, {sr(srdO,4)}, s{sOo} offen offset:{(j%4)*1024}{store_mod}")
```

```python
from asmlib import *
from layout import *
from gemm import srd, transpose_task, f2u
from kernels import finish, stamp_begin, stamp_mid, stamp_end
import math

SLOT = 24576
NSL = 6
LDS_K1 = SLOT * NSL
QSCALE = math.log2(math.e) / math.sqrt(20.0)

def mfma32(d, a, b, c):
    cs = "0" if c is None else vr(c, 16)
    return f"v_mfma_f32_32x32x16_bf16 {vr(d,16)}, {vr(a,4)}, {vr(b,4)}, {cs}"
def mfma8(d, a, b, c):
    return f"v_mfma_f32_32x32x8_bf16 {vr(d,16)}, {vr(a,2)}, {vr(b,2)}, {vr(c,16)}"

def bf16r(a, v):
    a(f"v_cvt_pk_bf16_f32 v{v}, v{v}, v{v}")
    a(f"v_lshlrev_b32 v{v}, 16, v{v}")

def ln_stats(a, sx, sxx, t, sInv, sEps):
    a(f"v_mul_f32 v{sx}, s{sInv}, v{sx}")
    a(f"v_mul_f32 v{t}, v{sx}, v{sx}")
    a(f"v_fma_f32 v{sxx}, v{sxx}, s{sInv}, -v{t}")
    a(f"v_max_f32 v{sxx}, 0, v{sxx}")
    bf16r(a, sx); bf16r(a, sxx)
    a(f"v_add_f32 v{sxx}, s{sEps}, v{sxx}")
    bf16r(a, sxx)
    a(f"v_sqrt_f32 v{sxx}, v{sxx}")
    a("s_nop 0")
    bf16r(a, sxx)
    a(f"v_rcp_f32 v{sxx}, v{sxx}")
    a("s_nop 0")

def half_sum(a, v, t):
    a(f"v_mov_b32 v{t}, v{v}")
    a("s_nop 1")
    a(f"v_permlane32_swap_b32 v{v}, v{t}")
    a("s_nop 1")
    a(f"v_add_f32 v{v}, v{v}, v{t}")

def split3(a, cs, d, t, vccmask=True):
    a(f"v_cvt_pk_bf16_f32 v{d}, v{cs}, v{cs}")
    a(f"v_lshlrev_b32 v{t}, 16, v{d}")
    a(f"v_sub_f32 v{cs}, v{cs}, v{t}")
    a(f"v_cvt_pk_bf16_f32 v{d}, v{t}, v{cs}")
    a(f"v_and_b32 v{t}, 0xffff0000, v{d}")
    a(f"v_sub_f32 v{cs}, v{cs}, v{t}")
    a(f"v_cvt_pk_bf16_f32 v{d+1}, v{cs}, 0")
    a(f"v_cndmask_b32 v{d}, v{d}, 0, vcc")
    a(f"v_cndmask_b32 v{d+1}, v{d+1}, 0, vcc")

def k1_kernel(name="k1_kernel", stamp=False, nodot=False, nomfma=False, nord=False, noiss=False):
    a = Asm()
    a.label(name)
    a(f"""
    s_cmp_ge_u32 s2, 256
    s_cbranch_scc1 {name}_end
    s_load_dwordx2 s[4:5], s[0:1], 96
    s_load_dwordx4 s[40:43], s[0:1], 0
    s_load_dwordx4 s[56:59], s[0:1], 16
    v_lshrrev_b32 v1, 6, v0
    s_nop 0
    v_readfirstlane_b32 s6, v1
    """)
    if stamp: stamp_begin(a)
    a(f"""
    s_and_b32 s46, s2, 7
    s_bfe_u32 s47, s2, 0x30003
    s_lshr_b32 s48, s2, 6
    s_lshl_b32 s48, s48, 3
    s_add_u32 s48, s48, s46
    s_mov_b32 s60, 0x3f803f80
    s_mov_b32 s61, {hex(f2u(1.0/640))}
    s_mov_b32 s62, {hex(f2u(1e-5))}
    s_waitcnt lgkmcnt(0)
    """)
    srd(a, 8, 4, 5, 0, WS_END)
    srd(a, 12, 40, 41, 0, 2048 * 1280)
    a(f"""
    s_cmp_ge_u32 s47, 6
    s_cbranch_scc1 {name}_ln
    """)
    XE, XO = 1, 2
    T = 3
    AX = 10
    AW = 14
    WD = 16
    SX, SXX, CS0, CS1 = 20, 21, 22, 23
    XF = 24
    WF = 40
    ACC = 72
    PK = 104
    NV = 128
    a(f"""
    v_bfe_u32 v{T}, v0, 3, 3
    v_mul_u32_u24 v{XE}, 1280, v{T}
    v_and_b32 v{T}, 7, v0
    v_bfe_u32 v{T+1}, v0, 4, 2
    v_xor_b32 v{T}, v{T}, v{T+1}
    v_xor_b32 v{T+2}, 4, v{T}
    v_lshl_add_u32 v{XO}, v{T+2}, 4, v{XE}
    v_add_u32 v{XO}, {8*1280-1024}, v{XO}
    v_lshl_add_u32 v{XE}, v{T}, 4, v{XE}
    s_lshl_b32 s7, s48, 2
    s_add_u32 s7, s7, s6
    s_mul_i32 s20, s7, {16*1280}         ; x soffset
    s_lshl_b32 s21, s6, 11
    s_and_b32 s49, s6, 1                 ; wt
    s_lshr_b32 s50, s6, 1                ; wn
    """)
    a(f"""
    s_cmp_eq_u32 s47, 5
    s_cbranch_scc1 {name}_kv
    """)
    def xaddr(slotstride):
        a(f"""
        v_and_b32 v{T+3}, 31, v0
        v_bfe_u32 v{T+4}, v0, 5, 1
        v_bfe_u32 v{T+5}, v0, 1, 3
        v_xor_b32 v{T+5}, v{T+5}, v{T+4}
        s_lshl_b32 s7, s49, 12
        v_lshl_add_u32 v{T+6}, v{T+3}, 7, s7
        """)
        for ks in range(4):
            a(f"v_xor_b32 v{AX+ks}, {2*ks}, v{T+5}")
            a(f"v_lshl_add_u32 v{AX+ks}, v{AX+ks}, 4, v{T+6}")
    def xdma(slot_s):
        a(f"s_add_u32 m0, s{slot_s}, s21")
        a("s_nop 0")
        a(f"buffer_load_dwordx4 v{XE}, s[12:15], s20 offen lds")
        a(f"buffer_load_dwordx4 v{XO}, s[12:15], s20 offen offset:1024 lds")
    def stats_epi(ncs):
        a("s_nop 2")
        a(f"v_cmp_eq_u32 vcc, 1, v{T+4}")
        half_sum(a, SX, T); half_sum(a, SXX, T)
        for b in range(ncs): half_sum(a, CS0 + b, T)
        ln_stats(a, SX, SXX, T, 61, 62)
        a(f"v_sub_f32 v{SX}, 0, v{SX}")
        a(f"v_cvt_pk_bf16_f32 v{XF}, v{SX}, v{SX}")
        a(f"v_cvt_pk_bf16_f32 v{XF+1}, v{SX}, 0")
        a(f"v_cndmask_b32 v{XF}, v{XF}, 0, vcc")
        a(f"v_cndmask_b32 v{XF+1}, v{XF+1}, 0, vcc")
        for b in range(ncs): split3(a, CS0 + b, WF + 2 * b, T)
        a("s_nop 1")
        for b in range(ncs): a(mfma8(ACC + 16 * b, WF + 2 * b, XF, ACC + 16 * b))

    srd(a, 16, 42, 43, 0, 640 * 1280)
    a(f"""
    v_mul_u32_u24 v{WD}, 1280, v{T+1}
    v_and_b32 v{T}, 15, v0
    v_lshlrev_b32 v{T+2}, 2, v{T+1}
    v_xor_b32 v{T}, v{T}, v{T+2}
    v_lshl_add_u32 v{WD}, v{T}, 4, v{WD}
    v_add_u32 v{WD+1}, 4096, v{WD}
    v_add_u32 v{WD+2}, 8192, v{WD}
    v_add_u32 v{WD+3}, 12288, v{WD}
    s_mul_i32 s22, s6, {16*1280}
    s_lshl_b32 s7, s47, 8
    s_add_u32 s22, s22, s7
    s_lshl_b32 s23, s6, 12
    s_add_u32 s23, s23, 8192
    s_mov_b32 s24, 0
    """)
    def qissue():
        xdma(24)
        a("s_add_u32 m0, s24, s23")
        a("s_add_u32 s20, s20, 128")
        for q in range(4):
            a(f"buffer_load_dwordx4 v{WD+q}, s[16:19], s22 offen offset:{q*1024} lds")
        a(f"s_add_u32 s22, s22, {64*1280}")
    a("s_mov_b32 s25, 5")
    a.label(f"{name}_qpre")
    qissue()
    a(f"""
    s_add_u32 s24, s24, {SLOT}
    s_sub_u32 s25, s25, 1
    s_cmp_lg_u32 s25, 0
    s_cbranch_scc1 {name}_qpre
    """)
    xaddr(SLOT)
    a(f"""
    v_bfe_u32 v{T}, v0, 2, 2
    v_lshl_add_u32 v{T+1}, v{T+4}, 3, v{T}
    v_lshlrev_b32 v{T+1}, 8, v{T+1}
    v_bfe_u32 v{T+2}, v0, 4, 1
    v_lshl_add_u32 v{T+1}, v{T+2}, 5, v{T+1}
    v_and_b32 v{T+2}, 3, v0
    v_lshl_add_u32 v{T+1}, v{T+2}, 3, v{T+1}
    v_add_u32 v{T+1}, 8192, v{T+1}
    s_lshl_b32 s7, s50, 1
    v_xor_b32 v{T}, s7, v{T}
    v_lshl_add_u32 v{AW}, v{T}, 6, v{T+1}
    v_xor_b32 v{T}, 1, v{T}
    v_lshl_add_u32 v{AW+1}, v{T}, 6, v{T+1}
    """)
    for i in range(4): a(f"v_mov_b32 v{SX+i}, 0")
    for i in range(32): a(f"v_mov_b32 v{ACC+i}, 0")
    a("s_mov_b32 s25, 0")
    a("s_mov_b32 s26, 0")
    if stamp: stamp_mid(a, 0)
    def rd(ks, nb):
        if nord: return
        a(f"ds_read_b128 {vr(XF+4*ks,4)}, v{AX+ks}")
        for b in range(nb):
            for t in range(2):
                rs = 256 if nb == 2 else 64
                a(f"ds_read_b64_tr_b16 {vr(WF+8*ks+4*b+2*t,2)}, v{AW+b} offset:{(16*ks+4*t)*rs}")
    def comp(nb):
        n = 1 + 2 * nb
        rd(0, nb); rd(1, nb)
        for ks in range(4):
            a(f"s_waitcnt lgkmcnt({n if ks < 3 else 0})")
            if ks < 2: rd(ks + 2, nb)
            for b in range(nb):
                if not nomfma: a(mfma32(ACC + 16 * b, WF + 8 * ks + 4 * b, XF + 4 * ks, ACC + 16 * b))
            for i in range(0 if nodot else 4):
                a(f"v_dot2_f32_bf16 v{SX}, v{XF+4*ks+i}, s60, v{SX}")
                a(f"v_dot2_f32_bf16 v{CS0}, v{WF+8*ks+i}, s60, v{CS0}")
                a(f"v_dot2_f32_bf16 v{SXX}, v{XF+4*ks+i}, v{XF+4*ks+i}, v{SXX}")
                if nb == 2:
                    a(f"v_dot2_f32_bf16 v{CS1}, v{WF+8*ks+4+i}, s60, v{CS1}")
    a.label(f"{name}_qloop")
    a("s_waitcnt vmcnt(24)")
    a("s_barrier")
    a(f"""
    s_cmp_ge_u32 s25, 5
    s_cselect_b32 s20, 0x80000000, s20
    s_cselect_b32 s22, 0x80000000, s22
    """)
    if not noiss: qissue()
    a(f"""
    s_add_u32 s24, s24, {SLOT}
    s_cmp_eq_u32 s24, {LDS_K1}
    s_cselect_b32 s24, 0, s24
    """)
    comp(2)
    a(f"""
    s_add_u32 s26, s26, 1
    s_cmp_eq_u32 s26, {NSL}
    s_mov_b32 s27, {SLOT}
    s_cselect_b32 s27, {(-(NSL-1)*SLOT) & 0xffffffff}, s27
    s_cselect_b32 s26, 0, s26
    """)
    for i in range(6): a(f"v_add_u32 v{AX+i}, s27, v{AX+i}")
    a(f"""
    s_add_u32 s25, s25, 1
    s_cmp_lg_u32 s25, 10
    s_cbranch_scc1 {name}_qloop
    """)
    if stamp: stamp_mid(a, 1)
    stats_epi(2)
    a(f"""
    v_mul_f32 v{SXX}, {hex(f2u(QSCALE))}, v{SXX}
    v_lshlrev_b32 v{T}, 3, v{T+3}
    v_lshl_add_u32 v{T}, v{T+4}, 14, v{T}
    s_lshl_b32 s7, s47, 1
    s_add_u32 s7, s7, s50
    s_lshl_b32 s7, s7, 18
    s_lshl_b32 s20, s48, 1
    s_add_u32 s20, s20, s49
    s_lshl_b32 s20, s20, 8
    s_add_u32 s20, s20, s7
    s_nop 7
    """)
    for b in range(2):
        for rq in range(4):
            r = ACC + 16 * b + 4 * rq
            for i in range(4): a(f"v_mul_f32 v{r+i}, v{r+i}, v{SXX}")
            p = PK + 8 * b + 2 * rq
            a(f"v_cvt_pk_bf16_f32 v{p}, v{r}, v{r+1}")
            a(f"v_cvt_pk_bf16_f32 v{p+1}, v{r+2}, v{r+3}")
            a(f"buffer_store_dwordx2 {vr(p,2)}, v{T}, s[8:11], s20 offen")
            a(f"s_add_u32 s20, s20, 32768")
    if stamp: stamp_end(a, 8, 6, 2)
    a("s_endpgm")

    a.label(f"{name}_kv")
    KW = 49152
    srd(a, 16, 56, 57, 0, 25600)
    srd(a, 28, 58, 59, 0, 25600)
    a(f"v_lshlrev_b32 v{T+2}, 3, v0")
    for m, sd in ((0, 16), (1, 28)):
        for i in range(13):
            if i % 2 == 0 and i > 0:
                pass
            a(f"s_mov_b32 s7, {i*2048}")
            a(f"buffer_load_dwordx2 {vr(WF+2*i+26*m,2)}, v{T+2}, {sr(sd,4)}, s7 offen")
    a("s_mov_b32 s24, 0")
    for c in range(5):
        xdma(24)
        a("s_add_u32 s20, s20, 128")
        a("s_add_u32 s24, s24, 8192")
    xaddr(8192)
    a("s_waitcnt vmcnt(10)")
    for i in range(13):
        a(f"v_add_u32 v{T}, {256*i}, v0")
        a(f"v_mul_u32_u24 v{T+1}, 52429, v{T}")
        a(f"v_lshrrev_b32 v{T+1}, 18, v{T+1}")
        a(f"v_mul_u32_u24 v{T+1}, 24, v{T+1}")
        a(f"v_lshl_add_u32 v{T+1}, v{T}, 3, v{T+1}")
        if i == 12:
            a("s_cmp_ge_u32 s6, 2")
            a(f"s_cbranch_scc1 {name}_kvw")
        a(f"ds_write_b64 v{T+1}, {vr(WF+2*i,2)} offset:{KW}")
        a(f"v_add_u32 v{T+1}, 40960, v{T+1}")
        a(f"ds_write_b64 v{T+1}, {vr(WF+2*i+26,2)} offset:{KW}")
    a.label(f"{name}_kvw")
    a(f"""
    v_bfe_u32 v{T}, v0, 2, 2
    v_lshl_add_u32 v{T+1}, v{T+4}, 3, v{T}
    v_lshlrev_b32 v{T+1}, 6, v{T+1}
    v_bfe_u32 v{T+2}, v0, 4, 1
    v_lshl_add_u32 v{T+1}, v{T+2}, 5, v{T+1}
    v_and_b32 v{T+2}, 3, v0
    v_lshl_add_u32 v{T+1}, v{T+2}, 3, v{T+1}
    s_mul_i32 s7, s50, 40960
    s_add_u32 s7, s7, {KW}
    v_add_u32 v{AW}, s7, v{T+1}
    """)
    for i in range(4): a(f"v_mov_b32 v{SX+i}, 0")
    for i in range(16): a(f"v_mov_b32 v{ACC+i}, 0")
    a("s_mov_b32 s25, 0")
    a("s_mov_b32 s26, 0")
    a("s_waitcnt lgkmcnt(0)")
    a.label(f"{name}_kvloop")
    a("s_waitcnt vmcnt(8)")
    a("s_barrier")
    a(f"""
    s_cmp_ge_u32 s25, 5
    s_cselect_b32 s20, 0x80000000, s20
    """)
    xdma(24)
    a(f"""
    s_add_u32 s20, s20, 128
    s_add_u32 s24, s24, 8192
    s_cmp_eq_u32 s24, {6*8192}
    s_cselect_b32 s24, 0, s24
    """)
    comp(1)
    a(f"""
    s_add_u32 s26, s26, 1
    s_cmp_eq_u32 s26, {NSL}
    s_mov_b32 s27, 8192
    s_cselect_b32 s27, {(-(NSL-1)*8192) & 0xffffffff}, s27
    s_cselect_b32 s26, 0, s26
    """)
    for i in range(4): a(f"v_add_u32 v{AX+i}, s27, v{AX+i}")
    a(f"v_add_u32 v{AW}, 4096, v{AW}")
    a(f"""
    s_add_u32 s25, s25, 1
    s_cmp_lg_u32 s25, 10
    s_cbranch_scc1 {name}_kvloop
    """)
    stats_epi(1)
    a(f"""
    s_lshl_b32 s21, s48, 1
    s_add_u32 s21, s21, s49
    s_mul_i32 s20, s21, {TILE_B}
    s_add_u32 s20, s20, {KV_OFF}
    s_nop 7
    s_nop 1
    """)
    for i in range(12): a(f"v_mul_f32 v{ACC+i}, v{ACC+i}, v{SXX}")
    for i in range(6): a(f"v_cvt_pk_bf16_f32 v{PK+i}, v{ACC+2*i}, v{ACC+2*i+1}")
    a(f"""
    s_cmp_eq_u32 s50, 1
    s_cbranch_scc1 {name}_v
    v_and_b32 v{T}, 63, v0
    v_lshlrev_b32 v{T}, 4, v{T}
    buffer_store_dwordx4 {vr(PK,4)}, v{T}, s[8:11], s20 offen
    v_cndmask_b32 v{PK+4}, v{PK+4}, 0, vcc
    v_cndmask_b32 v{PK+5}, v{PK+5}, 0, vcc
    v_lshlrev_b32 v{T+1}, 3, v{T+3}
    s_mov_b32 exec_hi, 0
    buffer_store_dwordx2 {vr(PK+4,2)}, v{T+1}, s[8:11], s20 offen offset:{K1_OFF_T}
    s_mov_b32 exec_hi, -1
    v_dot2_f32_bf16 v{SX}, v{PK}, v{PK}, 0
    """)
    for i in range(1, 6): a(f"v_dot2_f32_bf16 v{SX}, v{PK+i}, v{PK+i}, v{SX}")
    a("s_nop 2")
    half_sum(a, SX, T)
    for r in (8, 4, 2, 1):
        a("s_nop 1")
        a(f"v_max_f32_dpp v{SX}, v{SX}, v{SX} row_ror:{r} row_mask:0xf bank_mask:0xf")
    a(f"""
    v_mov_b32 v{T}, v{SX}
    s_nop 1
    v_permlane16_swap_b32 v{SX}, v{T}
    s_nop 1
    v_max_f32 v{SX}, v{SX}, v{T}
    s_lshl_b32 s21, s21, 2
    s_add_u32 s21, s21, {KM_OFF}
    v_mov_b32 v{T}, 0
    s_mov_b64 exec, 1
    buffer_store_dword v{SX}, v{T}, s[8:11], s21 offen
    s_endpgm
    """)
    a.label(f"{name}_v")
    a(f"""
    s_lshl_b32 s7, s49, 12
    s_add_u32 s7, s7, {KW + 2*40960}
    v_lshlrev_b32 v{T}, 6, v{T+3}
    v_lshl_add_u32 v{T}, v{T+4}, 3, v{T}
    v_add_u32 v{T}, s7, v{T}
    ds_write_b64 v{T}, {vr(PK,2)}
    ds_write_b64 v{T}, {vr(PK+2,2)} offset:16
    ds_write_b64 v{T}, {vr(PK+4,2)} offset:32
    v_bfe_u32 v{T}, v0, 2, 2
    v_lshl_add_u32 v{T}, v{T+4}, 2, v{T}
    v_lshlrev_b32 v{T}, 6, v{T}
    v_bfe_u32 v{T+2}, v0, 4, 1
    v_lshl_add_u32 v{T}, v{T+2}, 5, v{T}
    v_and_b32 v{T+2}, 3, v0
    v_lshl_add_u32 v{T}, v{T+2}, 3, v{T}
    v_add_u32 v{T}, s7, v{T}
    s_waitcnt lgkmcnt(0)
    """)
    for t in range(2):
        for u in range(2):
            a(f"ds_read_b64_tr_b16 {vr(PK+4*t+2*u,2)}, v{T} offset:{(16*t+8*u)*64}")
    a(f"""
    v_cmp_eq_u32 vcc, 20, v{T+3}
    v_mov_b32 v{T+1}, s60
    s_nop 0
    v_cndmask_b32 v{T+1}, 0, v{T+1}, vcc
    v_cmp_gt_u32 vcc, 20, v{T+3}
    v_mul_u32_u24 v{T+2}, {V_PLANE}, v{T+4}
    v_lshl_add_u32 v{T+2}, v{T+3}, 4, v{T+2}
    s_waitcnt lgkmcnt(0)
    """)
    for i in range(8): a(f"v_cndmask_b32 v{PK+i}, v{T+1}, v{PK+i}, vcc")
    a(f"""
    s_mov_b32 exec_lo, 0x0fffffff
    s_mov_b32 exec_hi, 0x0fffffff
    buffer_store_dwordx4 {vr(PK,4)}, v{T+2}, s[8:11], s20 offen offset:{V_OFF_T}
    buffer_store_dwordx4 {vr(PK+4,4)}, v{T+2}, s[8:11], s20 offen offset:{V_OFF_T+2*V_PLANE}
    s_endpgm
    """)

    a.label(f"{name}_ln")
    a(f"""
    s_lshl_b32 s7, s48, 1
    s_add_u32 s7, s7, s47
    s_sub_u32 s7, s7, 6
    s_lshl_b32 s7, s7, 2
    s_add_u32 s7, s7, s6                 ; plane
    s_cmp_lg_u32 s7, 0
    s_cbranch_scc1 {name}_nz
    v_lshlrev_b32 v1, 4, v0
    v_mov_b32 v4, 0
    v_mov_b32 v5, 0
    v_mov_b32 v6, 0
    v_mov_b32 v7, 0
    s_mov_b32 s20, {FL_OFF}
    buffer_store_dwordx4 v[4:7], v1, s[8:11], s20 offen
    """)
    a.label(f"{name}_nz")
    a(f"""
    s_mul_i32 s20, s7, 10240
    s_add_u32 s21, s20, {HF_OFF}
    s_mul_i32 s22, s6, 16384
    """)
    def body(a, X, t):
        A0 = 64; U = 72
        for p in range(2):
            for i in range(4): a(f"v_mov_b32 v{A0+i}, 0")
            for i in range(40):
                if p == 0 and i % 4 == 0:
                    a(f"s_waitcnt vmcnt({9 - i//4})")
                a(f"v_dot2_f32_bf16 v{A0+(i&1)}, v{X+i}, s60, v{A0+(i&1)}")
                a(f"v_dot2_f32_bf16 v{A0+2+(i&1)}, v{X+i}, v{X+i}, v{A0+2+(i&1)}")
            a("s_nop 2")
            a(f"v_add_f32 v{A0}, v{A0}, v{A0+1}")
            a(f"v_add_f32 v{A0+2}, v{A0+2}, v{A0+3}")
            for dpp in ("quad_perm:[1,0,3,2]", "quad_perm:[2,3,0,1]", "row_half_mirror"):
                a("s_nop 0")
                a(f"v_add_f32_dpp v{A0}, v{A0}, v{A0} {dpp} row_mask:0xf bank_mask:0xf")
                a(f"v_add_f32_dpp v{A0+2}, v{A0+2}, v{A0+2} {dpp} row_mask:0xf bank_mask:0xf")
            ln_stats(a, A0, A0 + 2, A0 + 1, 61, 62)
            a(f"v_mul_f32 v{A0}, v{A0}, v{A0+2}")
            for i in range(40):
                u = U + 2 * (i & 3)
                a(f"v_lshlrev_b32 v{u}, 16, v{X+i}")
                a(f"v_and_b32 v{u+1}, 0xffff0000, v{X+i}")
                a(f"v_pk_fma_f32 {vr(u,2)}, {vr(u,2)}, {vr(A0+2,2)}, {vr(A0,2)} op_sel_hi:[1,0,0] neg_lo:[0,0,1] neg_hi:[0,0,1]")
                a(f"v_cvt_pk_bf16_f32 v{X+i}, v{u}, v{u+1}")
    transpose_task(a, 8, None, 12, 20, 8, 21, 22, body=body)
    if stamp:
        a("s_mov_b32 s94, s90"); a("s_mov_b32 s96, s90")
        stamp_end(a, 8, 6, 3)
    a.label(f"{name}_end")
    a("s_endpgm")
    return finish(a, name, NV, (256, 256, LDS_K1))
```

```python
from asmlib import *
from layout import *
from gemm import *
import attn
from attn import kd, CHUNK
from kernels import finish, stamp_begin, stamp_mid, stamp_end, GS

AFLAG = 4 * CHUNK
GFLAG = AFLAG + 1024
GBASE = GFLAG + 1024
LDS_K2 = GBASE + 4 * REGION

def k2_kernel(name="k2_kernel", stamp=False, NB=3, with_b1=True, with_b2=True, gprio=0, eprio=2, aprio=0, sprio=0, nb2=14, akw={}, gkw={}):
    a = Asm()
    a.label(name)
    a(f"""
    s_cmp_ge_u32 s2, 256
    s_cbranch_scc1 {name}_end
    s_load_dwordx2 s[4:5], s[0:1], 96
    s_load_dwordx4 s[40:43], s[0:1], 48
    s_load_dwordx2 s[44:45], s[0:1], 32
    s_load_dwordx2 s[56:57], s[0:1], 64
    s_load_dwordx2 s[58:59], s[0:1], 88
    v_lshrrev_b32 v1, 6, v0
    s_nop 0
    v_readfirstlane_b32 s6, v1
    """)
    if stamp: stamp_begin(a)
    a(f"""
    s_nop 1
    s_cmp_ge_u32 s6, 4
    s_cbranch_scc1 {name}_g
    """)
    S = dict(attn.SREG)
    if aprio: a(f"s_setprio {aprio}")
    attn.attn_flaginit(a, S)
    a("s_waitcnt lgkmcnt(0)")
    a("s_barrier")
    attn.attn_prologue(a, S, "flag", name)
    a("s_mov_b64 s[26:27], vcc")
    attn.attn_firstsync(a, S, name)
    if stamp: stamp_mid(a, 0)
    attn.attn_main(a, S, "flag", name, **akw)
    if stamp: stamp_mid(a, 1)
    attn.attn_epilogue(a, S)
    if stamp: stamp_end(a, 8, 6, 0, nw=8)
    a("s_endpgm")
    attn.attn_spins(a, S, name)
    a.label(f"{name}_g")
    S = dict(GS); g = G(NB=NB)
    VFA, VPA, VONE, VPOLL = 4, 5, 6, 7
    a(f"""
    s_mov_b32 s63, s6
    s_sub_u32 s6, s6, 4
    s_and_b32 s46, s2, 7
    s_lshr_b32 s47, s2, 3
    s_and_b32 s48, s46, 1
    s_lshl_b32 s48, s48, 2
    s_and_b32 s49, s47, 3
    s_add_u32 s48, s48, s49          ; db
    s_lshr_b32 s49, s46, 1
    s_lshr_b32 s50, s47, 2
    s_lshl_b32 s60, s49, 3
    s_add_u32 s60, s60, s50          ; sb
    s_mul_i32 s49, s49, 7
    s_add_u32 s49, s49, s50          ; fb
    s_mul_i32 s52, s48, 1280         ; db*80*16
    s_mov_b32 s61, 1
    s_lshl_b32 s7, s6, 8
    s_add_u32 s7, s7, {GFLAG}
    v_and_b32 v{VFA}, 63, v0
    v_lshl_add_u32 v{VFA}, v{VFA}, 2, s7
    v_and_b32 v{VPA}, 3, v0
    v_mul_u32_u24 v{VPA}, 260, v{VPA}
    v_add_u32 v{VPA}, {GFLAG}, v{VPA}
    v_mov_b32 v{VONE}, 0
    ds_write_b32 v{VFA}, v{VONE}
    v_mov_b32 v{VONE}, 1
    s_waitcnt lgkmcnt(0)
    s_barrier
    """)
    if sprio: a(f"s_setprio {sprio}")
    nsync = [0]
    def sync4():
        i = nsync[0]; nsync[0] += 1
        a(f"ds_add_u32 v{VFA}, v{VONE}")
        a.label(f"{name}_sy{i}")
        a(f"""
        ds_read_b32 v{VPOLL}, v{VPA}
        s_waitcnt lgkmcnt(0)
        v_cmp_gt_u32 vcc, s61, v{VPOLL}
        s_nop 4
        s_cbranch_vccz {name}_sz{i}
        s_sleep 2
        s_branch {name}_sy{i}
        """)
        a.label(f"{name}_sz{i}")
        a("s_add_u32 s61, s61, 1")
    srd(a, 8, 4, 5, 0, WS_END)
    setup_lane(a, g, S, GBASE)
    setup_F(a, g, g.vF, 10240)
    a(f"""
    s_cmp_eq_u32 s50, 7
    s_cbranch_scc1 {name}_wo
    s_cmp_ge_u32 s49, 27
    s_cbranch_scc1 {name}_nob1
    """)
    if with_b1:
        srd(a, 12, 40, 41, 0, 2048 * 3456)
        srd(a, 16, 4, 5, HF_OFF, HF_SZ)
        srd(a, 20, 42, 43, 0, 1728 * 2)
        P = dict(mode="TF", srdT=12, srdF=16, strideT=3456, planeF=10240, W=4, TisA=True)
        setup_T(a, g, 3456)
        a("s_lshl_b32 s51, s49, 7")
        init_offsets(a, g, S, P, 51, 52)
        prologue_loads(a, g, S, P)
        a(f"""
        s_lshl_b32 s53, s6, 5
        s_add_u32 s53, s53, s51
        v_lshlrev_b32 v1, 3, v{g.tmp+2}
        buffer_load_dwordx2 v[2:3], v1, s[20:23], s53 offen
        s_lshl_b32 s54, s49, 3
        s_lshl_b32 s55, s6, 1
        s_add_u32 s54, s54, s55
        s_mul_i32 s54, s54, 10240
        s_add_u32 s54, s54, s52
        s_add_u32 s54, s54, {UF_OFF}
        """)
        zero_acc(a, g)
        a(f"s_setprio {gprio}")
        main_loop(a, g, S, P, name + "_b1", 16, **gkw)
        a(f"s_setprio {eprio}")
        if stamp: stamp_mid(a, 0)
        reduce4(a, g, S, GBASE, sync4)
        b1_epilogue(a, g, S, 8, 54, 2, store_mod=" sc1" if with_b2 else "")
        if with_b2:
            a("s_waitcnt vmcnt(0)")
            sync4()
            a(f"""
            s_cmp_lg_u32 s6, 0
            s_cbranch_scc1 {name}_b2
            s_lshl_b32 s7, s48, 7
            s_add_u32 s7, s7, {FL_OFF}
            v_mov_b32 v1, s7
            s_mov_b64 exec, 1
            global_atomic_add v1, v{VONE}, s[4:5] sc1
            s_mov_b64 exec, -1
            """)
        a(f"s_branch {name}_b2")
    else:
        a(f"s_branch {name}_b2")
    a.label(f"{name}_wo")
    a(f"""
    s_setprio {eprio}
    s_and_b32 s47, s47, 3
    s_lshl_b32 s47, s47, 3
    s_add_u32 s47, s47, s46
    s_lshl_b32 s47, s47, 2
    s_add_u32 s47, s47, s6           ; task
    s_cmp_ge_u32 s47, 80
    s_cbranch_scc1 {name}_b2
    s_mul_i32 s51, s47, 10240
    s_add_u32 s53, s51, {WOF_OFF}
    """)
    srd(a, 12, 44, 45, 0, 640 * 1280)
    transpose_task(a, 8, S, 12, 51, 8, 53, S["lb"])
    a(f"s_branch {name}_b2")
    a.label(f"{name}_nob1")
    a(f"s_setprio {eprio}")
    a.label(f"{name}_b2")
    if with_b2:
        srd(a, 12, 56, 57, 0, 1728 * 4096)
        srd(a, 16, 4, 5, UF_OFF, UF_SZ)
        P2 = dict(mode="TF", srdT=12, srdF=16, strideT=4096, planeF=10240, W=4, TisA=False, fmod=" sc1")
        a(f"v_bfe_u32 v{g.tmp+2}, v0, 4, 2")
        setup_T(a, g, 4096)
        a("s_lshl_b32 s51, s60, 7")
        init_offsets(a, g, S, P2, 51, 52)
        for b in range(NB - 1): issue(a, g, S, b, P2, part="T")
        zero_acc(a, g)
        a(f"""
        s_cmp_lg_u32 s6, 0
        s_cbranch_scc1 {name}_go
        s_lshl_b32 s7, s48, 7
        s_add_u32 s7, s7, {FL_OFF}
        v_mov_b32 v1, s7
        s_mov_b32 s62, 0
        """)
        a.label(f"{name}_poll")
        a(f"""
        global_load_dword v2, v1, s[4:5] sc1
        s_waitcnt vmcnt(0)
        v_readfirstlane_b32 s7, v2
        s_add_u32 s62, s62, 1
        s_cmp_ge_u32 s62, 0x100000
        s_cbranch_scc1 {name}_go
        s_cmp_ge_u32 s7, 27
        s_cbranch_scc1 {name}_go
        s_sleep 8
        s_branch {name}_poll
        """)
        a.label(f"{name}_go")
        sync4()
        if stamp: stamp_mid(a, 1)
        for b in range(NB - 1): issue(a, g, S, b, P2, part="F")
        a(f"s_setprio {gprio}")
        main_loop(a, g, S, P2, name + "_b2l", nb2, midentry=True, **gkw)
        a(f"s_setprio {eprio}")
        reduce4(a, g, S, GBASE, sync4)
        a(f"""
        s_lshl_b32 s7, s2, 2
        s_add_u32 s7, s7, s6
        s_mul_i32 s7, s7, 5120
        s_add_u32 s7, s7, {Y_OFF}
        s_add_u32 s53, s7, 4096
        """)
        for j in range(4):
            a(f"buffer_store_dwordx4 {vr(g.ACC+4*j,4)}, v{g.tmp}, s[8:11], s7 offen offset:{j*1024}")
        a(f"buffer_store_dwordx4 {vr(g.ACC+16,4)}, v{g.tmp}, s[8:11], s53 offen")
    elif stamp:
        stamp_mid(a, 1)
    if stamp: stamp_end(a, 8, 63, 0, nw=8)
    a.label(f"{name}_end")
    a("s_endpgm")
    return finish(a, name, max(g.nv, attn.NV_ATT), (256, 512, LDS_K2))
```

```python
from asmlib import *
from layout import *
from gemm import *
from attn import kd

def stamp_begin(a):
    a("s_memtime s[90:91]")
    a("s_memrealtime s[92:93]")
def stamp_mid(a, i):
    a(f"s_memtime s[{94+2*i}:{95+2*i}]")
def stamp_end(a, srdw, wave_s, slot, nw=4):
    a(f"""
    s_mov_b64 exec, -1
    s_waitcnt vmcnt(0)
    s_memtime s[98:99]
    s_memrealtime s[100:101]
    s_waitcnt lgkmcnt(0)
    s_sub_u32 s94, s94, s90
    s_sub_u32 s96, s96, s90
    s_sub_u32 s98, s98, s90
    s_sub_u32 s100, s100, s92
    v_mov_b32 v8, s94
    v_mov_b32 v9, s96
    v_mov_b32 v10, s98
    v_mov_b32 v11, s100
    s_mul_i32 s94, s2, {nw}
    s_add_u32 s94, s94, s{wave_s}
    s_lshl_b32 s94, s94, 4
    s_add_u32 s94, s94, {WS_END - 65536*(slot+1)}
    v_mov_b32 v12, 0
    buffer_store_dwordx4 v[8:11], v12, {sr(srdw,4)}, s94 offen
    """)

GS = dict(w=6, t0=7, t1=3, lb=28, so4=32, sf=36, cnt=37)

def finish(a, name, nv, geom):
    errs = check_hazards(a.lines, name)
    for e in errs: print("HAZARD", e)
    return name, a.text(), kd(name, nv), geom

def b1_kernel(name="b1_kernel", stamp=False, NB=3):
    a = Asm(); S = GS; g = G(NB=NB)
    a.label(name)
    a(f"""
    s_cmp_ge_u32 s2, 256
    s_cbranch_scc1 {name}_end
    s_load_dwordx2 s[4:5], s[0:1], 96
    s_load_dwordx4 s[40:43], s[0:1], 48
    s_load_dwordx2 s[44:45], s[0:1], 32
    v_lshrrev_b32 v1, 6, v0
    s_nop 0
    v_readfirstlane_b32 s6, v1
    """)
    if stamp: stamp_begin(a)
    a(f"""
    s_and_b32 s46, s2, 7
    s_lshr_b32 s47, s2, 3
    s_and_b32 s48, s46, 1
    s_lshl_b32 s48, s48, 2
    s_and_b32 s49, s47, 3
    s_add_u32 s48, s48, s49          ; db
    s_lshr_b32 s49, s46, 1
    s_mul_i32 s49, s49, 7
    s_lshr_b32 s50, s47, 2
    s_add_u32 s49, s49, s50          ; fb
    s_waitcnt lgkmcnt(0)
    """)
    srd(a, 8, 4, 5, 0, WS_END)
    a(f"""
    s_cmp_eq_u32 s50, 7
    s_cbranch_scc1 {name}_wo
    s_cmp_ge_u32 s49, 27
    s_cbranch_scc1 {name}_end
    """)
    srd(a, 12, 40, 41, 0, 2048 * 3456)
    srd(a, 16, 4, 5, HF_OFF, HF_SZ)
    srd(a, 20, 42, 43, 0, 1728 * 2)
    P = dict(mode="TF", srdT=12, srdF=16, strideT=3456, planeF=10240, W=4, TisA=True)
    setup_lane(a, g, S, 0)
    setup_T(a, g, 3456)
    setup_F(a, g, g.vF, 10240)
    a("s_lshl_b32 s51, s49, 7")
    a("s_mul_i32 s52, s48, 1280")
    init_offsets(a, g, S, P, 51, 52)
    prologue_loads(a, g, S, P)
    a(f"s_lshl_b32 s53, s6, 5")
    a(f"s_add_u32 s53, s53, s51")
    a(f"v_lshlrev_b32 v1, 3, v{g.tmp+2}")
    a(f"buffer_load_dwordx2 v[2:3], v1, s[20:23], s53 offen")
    a(f"s_lshl_b32 s54, s49, 3")
    a(f"s_lshl_b32 s55, s6, 1")
    a(f"s_add_u32 s54, s54, s55")
    a(f"s_mul_i32 s54, s54, 10240")
    a(f"s_add_u32 s54, s54, s52")
    a(f"s_add_u32 s54, s54, {UF_OFF}")
    zero_acc(a, g)
    if stamp: stamp_mid(a, 0)
    main_loop(a, g, S, P, name, 16)
    if stamp: stamp_mid(a, 1)
    reduce4(a, g, S, 0, lambda: a("s_barrier"))
    b1_epilogue(a, g, S, 8, 54, 2)
    if stamp: stamp_end(a, 8, 6, 0)
    a("s_endpgm")
    a.label(f"{name}_wo")
    a(f"""
    s_and_b32 s47, s47, 3
    s_lshl_b32 s47, s47, 3
    s_add_u32 s47, s47, s46
    s_lshl_b32 s47, s47, 2
    s_add_u32 s47, s47, s6           ; task
    s_cmp_ge_u32 s47, 80
    s_cbranch_scc1 {name}_end
    s_mul_i32 s51, s47, 10240
    s_add_u32 s52, s51, {WOF_OFF}
    s_mul_i32 s53, s6, {REGION}
    """)
    srd(a, 12, 44, 45, 0, 640 * 1280)
    transpose_task(a, 8, S, 12, 51, 8, 52, 53)
    a.label(f"{name}_end")
    a("s_endpgm")
    return finish(a, name, g.nv, (256, 256, 4 * REGION))

def k3_kernel(name="k3_kernel", stamp=False, NB=3, with_b2=True):
    a = Asm(); S = GS; g = G(NB=NB, ff=True)
    XR = g.nv; nv = XR + 12
    a.label(name)
    a(f"""
    s_cmp_ge_u32 s2, 256
    s_cbranch_scc1 {name}_end
    s_load_dwordx2 s[4:5], s[0:1], 96
    s_load_dwordx4 s[40:43], s[0:1], 64
    s_load_dwordx2 s[44:45], s[0:1], 0
    s_load_dwordx2 s[56:57], s[0:1], 80
    v_lshrrev_b32 v1, 6, v0
    s_nop 0
    v_readfirstlane_b32 s6, v1
    """)
    if stamp: stamp_begin(a)
    a(f"""
    s_and_b32 s46, s2, 7
    s_lshr_b32 s47, s2, 3
    s_and_b32 s48, s46, 1
    s_lshl_b32 s48, s48, 2
    s_and_b32 s49, s47, 3
    s_add_u32 s48, s48, s49          ; db
    s_lshr_b32 s49, s46, 1
    s_lshl_b32 s49, s49, 3
    s_lshr_b32 s50, s47, 2
    s_add_u32 s49, s49, s50          ; sb
    s_waitcnt lgkmcnt(0)
    """)
    srd(a, 8, 4, 5, 0, WS_END)
    srd(a, 12, 4, 5, OF_OFF, OF_SZ)
    srd(a, 16, 4, 5, WOF_OFF, WOF_SZ)
    setup_lane(a, g, S, 0)
    P1 = dict(mode="FF", srdT=12, srdF=16, plane2=32768, planeF=10240, W=4, TisA=False)
    setup_F(a, g, g.vT, 32768)
    setup_F(a, g, g.vF, 10240)
    a("s_lshl_b32 s51, s49, 10")
    a("s_mul_i32 s52, s48, 1280")
    init_offsets(a, g, S, P1, 51, 52)
    prologue_loads(a, g, S, P1)
    srd(a, 20, 44, 45, 0, 2048 * 1280)
    srd(a, 24, 42, 43, 0, 4096)
    srd(a, 60, 56, 57, 0, 2048 * 1280)
    a(f"""
    s_lshl_b32 s53, s49, 2
    s_add_u32 s53, s53, s6
    s_lshl_b32 s55, s53, 5               ; (s0+16w)*2
    s_mul_i32 s53, s53, {16*1280}
    s_mul_i32 s54, s48, 160
    s_add_u32 s53, s53, s54
    v_mul_u32_u24 v1, 1280, v{g.tmp+1}
    v_lshl_add_u32 v1, v{g.tmp+2}, 3, v1
    v_lshlrev_b32 v2, 1, v{g.tmp+1}
    """)
    for j in range(5):
        a(f"buffer_load_dwordx2 {vr(XR+2*j,2)}, v1, s[20:23], s53 offen offset:{j*32}")
    a(f"buffer_load_ushort v{XR+10}, v2, s[24:27], s55 offen")
    if not with_b2:
        YR = nv; nv += 20
        a(f"""
        s_lshl_b32 s7, s2, 2
        s_add_u32 s7, s7, s6
        s_mul_i32 s7, s7, 5120
        s_add_u32 s7, s7, {Y_OFF}
        s_add_u32 s58, s7, 4096
        v_lshlrev_b32 v3, 4, v{g.tmp}
        """)
        for j in range(4):
            a(f"buffer_load_dwordx4 {vr(YR+4*j,4)}, v3, s[8:11], s7 offen offset:{j*1024}")
        a(f"buffer_load_dwordx4 {vr(YR+16,4)}, v3, s[8:11], s58 offen")
    zero_acc(a, g)
    if stamp: stamp_mid(a, 0)
    main_loop(a, g, S, P1, name + "_a", 5)
    if with_b2:
        srd(a, 12, 40, 41, 0, 1728 * 4096)
        srd(a, 16, 4, 5, UF_OFF, UF_SZ)
        P2 = dict(mode="TF", srdT=12, srdF=16, strideT=4096, planeF=10240, W=4, TisA=False)
        setup_T(a, g, 4096)
        a("s_lshl_b32 s51, s49, 7")
        init_offsets(a, g, S, P2, 51, 52)
        prologue_loads(a, g, S, P2)
        main_loop(a, g, S, P2, name + "_b", 14)
    if stamp: stamp_mid(a, 1)
    reduce4(a, g, S, 0, lambda: a("s_barrier"))
    A = g.ACC; t = g.tmp
    if not with_b2:
        for i in range(0, 20, 2):
            a(f"v_pk_add_f32 {vr(A+i,2)}, {vr(A+i,2)}, {vr(YR+i,2)}")
    a(f"v_lshlrev_b32 v{t+4}, 16, v{XR+10}")
    for j in range(5):
        a(f"v_lshlrev_b32 v{t}, 16, v{XR+2*j}")
        a(f"v_and_b32 v{t+1}, 0xffff0000, v{XR+2*j}")
        a(f"v_lshlrev_b32 v{t+2}, 16, v{XR+2*j+1}")
        a(f"v_and_b32 v{t+3}, 0xffff0000, v{XR+2*j+1}")
        for i in range(4):
            a(f"v_add_f32 v{A+4*j+i}, v{A+4*j+i}, v{t+4}")
        a(f"v_pk_add_f32 {vr(A+4*j,2)}, {vr(A+4*j,2)}, {vr(t,2)}")
        a(f"v_pk_add_f32 {vr(A+4*j+2,2)}, {vr(A+4*j+2,2)}, {vr(t+2,2)}")
    pack_store(a, g, A, 60, 53, PLANE=0, rowstride=1280, mode="R")
    if stamp: stamp_end(a, 8, 6, 1)
    a.label(f"{name}_end")
    a("s_endpgm")
    return finish(a, name, nv, (256, 256, 4 * REGION))
```

```python
from asmlib import *
from layout import *
from attn import kd
PO = WS_END + 4096
def add_start(name, text, idx):
    lines = text.split("\n")
    out = []
    for l in lines:
        out.append(l)
        if l.strip() == name + ":":
            out.append(f"""    s_memrealtime s[84:85]
    s_load_dwordx2 s[86:87], s[0:1], 96
    s_cmp_lg_u32 s2, 0
    s_cbranch_scc1 {name}_nost
    s_waitcnt lgkmcnt(0)
    s_add_u32 s86, s86, {PO}
    s_addc_u32 s87, s87, 0
    v_mov_b32 v1, 0
    v_mov_b32 v2, s84
    global_store_dword v1, v2, s[86:87] offset:{4*idx}
{name}_nost:""")
    return "\n".join(out)
def probe(a_idx, b_idx, mult, n, name="probe_kernel"):
    a = Asm(); a.label(name)
    a(f"""
    s_memrealtime s[4:5]
    s_cmp_lg_u32 s2, 0
    s_cbranch_scc1 {name}_end
    s_load_dwordx2 s[6:7], s[0:1], 96
    s_waitcnt lgkmcnt(0)
    s_add_u32 s6, s6, {PO}
    s_addc_u32 s7, s7, 0
    s_load_dword s8, s[6:7], {4*a_idx}
    s_load_dword s9, s[6:7], {4*min(b_idx, n-1)}
    s_waitcnt lgkmcnt(0)
    """)
    if b_idx == n: a("s_mov_b32 s9, s4")
    a(f"""
    s_sub_u32 s8, s9, s8
    s_min_u32 s8, s8, 20000
    s_mul_i32 s8, s8, {mult}
    """)
    a.label(f"{name}_sp")
    a(f"""
    s_memrealtime s[10:11]
    s_waitcnt lgkmcnt(0)
    s_sub_u32 s10, s10, s4
    s_cmp_lt_u32 s10, s8
    s_cbranch_scc1 {name}_sp
    """)
    a.label(f"{name}_end")
    a("s_endpgm")
    return name, a.text(), kd(name, 8), (1, 64, 0)
def probes(kernels, build, prefix):
    n = len(kernels)
    ks = [(nm, add_start(nm, t, i), k, g) for i, (nm, t, k, g) in enumerate(kernels)]
    open(f"{prefix}_p0.s", "w").write(build(ks + [probe(0, n, 0, n)]))
    for i in range(n):
        open(f"{prefix}_p{i+1}.s", "w").write(build(ks + [probe(i, i + 1, 4, n)]))
```

```python
import sys
from k1 import k1_kernel
from kernels import *
from k2 import k2_kernel
from build import build
from probe import probes
ks = [k1_kernel(), k2_kernel(), k3_kernel(with_b2=False, NB=3)]
open("parallel_sum__grouped_kv_mqa__mixer_token_mlp__prompt.s", "w").write(build(ks))
open("v2.s", "w").write(build(ks))
probes(ks, build, "v2")
ks = [k1_kernel(), k2_kernel(with_b2=False), k3_kernel(with_b2=True, NB=3)]
open("v2nob2.s", "w").write(build(ks))
```

```python
from asmlib import *
from layout import *
from gemm import *
from attn import kd

def stamp_begin(a):
    a("s_memtime s[90:91]")
    a("s_memrealtime s[92:93]")
def stamp_mid(a, i):
    a(f"s_memtime s[{94+2*i}:{95+2*i}]")
def stamp_end(a, srdw, wave_s, slot, nw=4):
    a(f"""
    s_mov_b64 exec, -1
    s_waitcnt vmcnt(0)
    s_memtime s[98:99]
    s_memrealtime s[100:101]
    s_waitcnt lgkmcnt(0)
    s_sub_u32 s94, s94, s90
    s_sub_u32 s96, s96, s90
    s_sub_u32 s98, s98, s90
    s_sub_u32 s100, s100, s92
    v_mov_b32 v8, s94
    v_mov_b32 v9, s96
    v_mov_b32 v10, s98
    v_mov_b32 v11, s100
    s_mul_i32 s94, s2, {nw}
    s_add_u32 s94, s94, s{wave_s}
    s_lshl_b32 s94, s94, 4
    s_add_u32 s94, s94, {WS_END - 65536*(slot+1)}
    v_mov_b32 v12, 0
    buffer_store_dwordx4 v[8:11], v12, {sr(srdw,4)}, s94 offen
    """)

GS = dict(w=6, t0=7, t1=3, lb=28, so4=32, sf=36, cnt=37)

def finish(a, name, nv, geom):
    errs = check_hazards(a.lines, name)
    for e in errs: print("HAZARD", e)
    return name, a.text(), kd(name, nv), geom

def b1_kernel(name="b1_kernel", stamp=False, NB=3):
    a = Asm(); S = GS; g = G(NB=NB)
    a.label(name)
    a(f"""
    s_cmp_ge_u32 s2, 256
    s_cbranch_scc1 {name}_end
    s_load_dwordx2 s[4:5], s[0:1], 96
    s_load_dwordx4 s[40:43], s[0:1], 48
    s_load_dwordx2 s[44:45], s[0:1], 32
    v_lshrrev_b32 v1, 6, v0
    s_nop 0
    v_readfirstlane_b32 s6, v1
    """)
    if stamp: stamp_begin(a)
    a(f"""
    s_and_b32 s46, s2, 7
    s_lshr_b32 s47, s2, 3
    s_and_b32 s48, s46, 1
    s_lshl_b32 s48, s48, 2
    s_and_b32 s49, s47, 3
    s_add_u32 s48, s48, s49          ; db
    s_lshr_b32 s49, s46, 1
    s_mul_i32 s49, s49, 7
    s_lshr_b32 s50, s47, 2
    s_add_u32 s49, s49, s50          ; fb
    s_waitcnt lgkmcnt(0)
    """)
    srd(a, 8, 4, 5, 0, WS_END)
    a(f"""
    s_cmp_eq_u32 s50, 7
    s_cbranch_scc1 {name}_wo
    s_cmp_ge_u32 s49, 27
    s_cbranch_scc1 {name}_end
    """)
    srd(a, 12, 40, 41, 0, 2048 * 3456)
    srd(a, 16, 4, 5, HF_OFF, HF_SZ)
    srd(a, 20, 42, 43, 0, 1728 * 2)
    P = dict(mode="TF", srdT=12, srdF=16, strideT=3456, planeF=10240, W=4, TisA=True)
    setup_lane(a, g, S, 0)
    setup_T(a, g, 3456)
    setup_F(a, g, g.vF, 10240)
    a("s_lshl_b32 s51, s49, 7")
    a("s_mul_i32 s52, s48, 1280")
    init_offsets(a, g, S, P, 51, 52)
    prologue_loads(a, g, S, P)
    a(f"s_lshl_b32 s53, s6, 5")
    a(f"s_add_u32 s53, s53, s51")
    a(f"v_lshlrev_b32 v1, 3, v{g.tmp+2}")
    a(f"buffer_load_dwordx2 v[2:3], v1, s[20:23], s53 offen")
    a(f"s_lshl_b32 s54, s49, 3")
    a(f"s_lshl_b32 s55, s6, 1")
    a(f"s_add_u32 s54, s54, s55")
    a(f"s_mul_i32 s54, s54, 10240")
    a(f"s_add_u32 s54, s54, s52")
    a(f"s_add_u32 s54, s54, {UF_OFF}")
    zero_acc(a, g)
    if stamp: stamp_mid(a, 0)
    main_loop(a, g, S, P, name, 16)
    if stamp: stamp_mid(a, 1)
    reduce4(a, g, S, 0, lambda: a("s_barrier"))
    b1_epilogue(a, g, S, 8, 54, 2)
    if stamp: stamp_end(a, 8, 6, 0)
    a("s_endpgm")
    a.label(f"{name}_wo")
    a(f"""
    s_and_b32 s47, s47, 3
    s_lshl_b32 s47, s47, 3
    s_add_u32 s47, s47, s46
    s_lshl_b32 s47, s47, 2
    s_add_u32 s47, s47, s6           ; task
    s_cmp_ge_u32 s47, 80
    s_cbranch_scc1 {name}_end
    s_mul_i32 s51, s47, 10240
    s_add_u32 s52, s51, {WOF_OFF}
    s_mul_i32 s53, s6, {REGION}
    """)
    srd(a, 12, 44, 45, 0, 640 * 1280)
    transpose_task(a, 8, S, 12, 51, 8, 52, 53)
    a.label(f"{name}_end")
    a("s_endpgm")
    return finish(a, name, g.nv, (256, 256, 4 * REGION))

def k3_kernel(name="k3_kernel", stamp=False, NB=3, with_b2=True):
    a = Asm(); S = GS; g = G(NB=NB, ff=True)
    XR = g.nv; nv = XR + 12
    a.label(name)
    a(f"""
    s_cmp_ge_u32 s2, 256
    s_cbranch_scc1 {name}_end
    s_load_dwordx2 s[4:5], s[0:1], 96
    s_load_dwordx4 s[40:43], s[0:1], 64
    s_load_dwordx2 s[44:45], s[0:1], 0
    s_load_dwordx2 s[56:57], s[0:1], 80
    v_lshrrev_b32 v1, 6, v0
    s_nop 0
    v_readfirstlane_b32 s6, v1
    """)
    if stamp: stamp_begin(a)
    a(f"""
    s_and_b32 s46, s2, 7
    s_lshr_b32 s47, s2, 3
    s_and_b32 s48, s46, 1
    s_lshl_b32 s48, s48, 2
    s_and_b32 s49, s47, 3
    s_add_u32 s48, s48, s49          ; db
    s_lshr_b32 s49, s46, 1
    s_lshl_b32 s49, s49, 3
    s_lshr_b32 s50, s47, 2
    s_add_u32 s49, s49, s50          ; sb
    s_waitcnt lgkmcnt(0)
    """)
    srd(a, 8, 4, 5, 0, WS_END)
    srd(a, 12, 4, 5, OF_OFF, OF_SZ)
    srd(a, 16, 4, 5, WOF_OFF, WOF_SZ)
    setup_lane(a, g, S, 0)
    P1 = dict(mode="FF", srdT=12, srdF=16, plane2=32768, planeF=10240, W=4, TisA=False)
    setup_F(a, g, g.vT, 32768)
    setup_F(a, g, g.vF, 10240)
    a("s_lshl_b32 s51, s49, 10")
    a("s_mul_i32 s52, s48, 1280")
    init_offsets(a, g, S, P1, 51, 52)
    if not with_b2:
        YR = g.ACC
        a(f"""
        s_lshl_b32 s7, s2, 2
        s_add_u32 s7, s7, s6
        s_mul_i32 s7, s7, 5120
        s_add_u32 s7, s7, {Y_OFF}
        s_add_u32 s58, s7, 4096
        v_lshlrev_b32 v3, 4, v{g.tmp}
        """)
        for j in range(4):
            a(f"buffer_load_dwordx4 {vr(YR+4*j,4)}, v3, s[8:11], s7 offen offset:{j*1024}")
        a(f"buffer_load_dwordx4 {vr(YR+16,4)}, v3, s[8:11], s58 offen")
    prologue_loads(a, g, S, P1)
    srd(a, 20, 44, 45, 0, 2048 * 1280)
    srd(a, 24, 42, 43, 0, 4096)
    srd(a, 60, 56, 57, 0, 2048 * 1280)
    a(f"""
    s_lshl_b32 s53, s49, 2
    s_add_u32 s53, s53, s6
    s_lshl_b32 s55, s53, 5               ; (s0+16w)*2
    s_mul_i32 s53, s53, {16*1280}
    s_mul_i32 s54, s48, 160
    s_add_u32 s53, s53, s54
    v_mul_u32_u24 v1, 1280, v{g.tmp+1}
    v_lshl_add_u32 v1, v{g.tmp+2}, 3, v1
    v_lshlrev_b32 v2, 1, v{g.tmp+1}
    """)
    for j in range(5):
        a(f"buffer_load_dwordx2 {vr(XR+2*j,2)}, v1, s[20:23], s53 offen offset:{j*32}")
    a(f"buffer_load_ushort v{XR+10}, v2, s[24:27], s55 offen")
    if not with_b2:
        for i in range(20, 80): a(f"v_mov_b32 v{g.ACC+i}, 0")
    else:
        zero_acc(a, g)
    if stamp: stamp_mid(a, 0)
    main_loop(a, g, S, P1, name + "_a", 5)
    if with_b2:
        srd(a, 12, 40, 41, 0, 1728 * 4096)
        srd(a, 16, 4, 5, UF_OFF, UF_SZ)
        P2 = dict(mode="TF", srdT=12, srdF=16, strideT=4096, planeF=10240, W=4, TisA=False)
        setup_T(a, g, 4096)
        a("s_lshl_b32 s51, s49, 7")
        init_offsets(a, g, S, P2, 51, 52)
        prologue_loads(a, g, S, P2)
        main_loop(a, g, S, P2, name + "_b", 14)
    if stamp: stamp_mid(a, 1)
    reduce4(a, g, S, 0, lambda: a("s_barrier"))
    A = g.ACC; t = g.tmp
    a(f"v_lshlrev_b32 v{t+4}, 16, v{XR+10}")
    for j in range(5):
        a(f"v_lshlrev_b32 v{t}, 16, v{XR+2*j}")
        a(f"v_and_b32 v{t+1}, 0xffff0000, v{XR+2*j}")
        a(f"v_lshlrev_b32 v{t+2}, 16, v{XR+2*j+1}")
        a(f"v_and_b32 v{t+3}, 0xffff0000, v{XR+2*j+1}")
        for i in range(4):
            a(f"v_add_f32 v{A+4*j+i}, v{A+4*j+i}, v{t+4}")
        a(f"v_pk_add_f32 {vr(A+4*j,2)}, {vr(A+4*j,2)}, {vr(t,2)}")
        a(f"v_pk_add_f32 {vr(A+4*j+2,2)}, {vr(A+4*j+2,2)}, {vr(t+2,2)}")
    pack_store(a, g, A, 60, 53, PLANE=0, rowstride=1280, mode="R")
    if stamp: stamp_end(a, 8, 6, 1)
    a.label(f"{name}_end")
    a("s_endpgm")
    return finish(a, name, nv, (256, 256, 4 * REGION))
```

```python
from asmlib import *
from layout import *

V_L16 = 1
V_AV  = 2
V_AK1 = 3
V_T0  = 4
QA0, QA1, QB0, QB1 = 8, 12, 16, 20
K0 = [24, 32]; K1 = [28, 36]
VV = [[40, 44], [48, 52]]
PA, PB = 56, 64
SA, SB, OA, OB = 72, 88, 104, 120
E = 136
TMP = 144
V_FLAG = 160
V_ONE = 161
V_POLL = 162
V_PADDR = 163
NV_ATT = 164

CHUNK = 12288
T_BOUND = 48.0

def f2u(x):
    import struct
    return struct.unpack("<I", struct.pack("<f", x))[0]

def mfma32(d, a, b, c):
    cs = "0" if c is None else vr(c, 16)
    return f"v_mfma_f32_32x32x16_bf16 {vr(d,16)}, {vr(a,4)}, {vr(b,4)}, {cs}"

def valu_stream(S_, P_, Pprev, lag):
    out = []
    if not lag:
        for k in range(4):
            for i in range(4):
                out.append(f"v_exp_f32 {vr(S_+4*k+i)}, {vr(S_+4*k+i)}")
            out.append(f"v_cvt_pk_bf16_f32 {vr(P_+2*k)}, {vr(S_+4*k)}, {vr(S_+4*k+1)}")
            out.append(f"v_cvt_pk_bf16_f32 {vr(P_+2*k+1)}, {vr(S_+4*k+2)}, {vr(S_+4*k+3)}")
    else:
        for k in range(4):
            e = E + 4 * (k & 1)
            ep = E + 4 * ((k + 1) & 1)
            for i in range(4):
                out.append(f"v_exp_f32 {vr(e+i)}, {vr(S_+4*k+i)}")
            pp = (Pprev + 6) if k == 0 else (P_ + 2 * (k - 1))
            out.append(f"v_cvt_pk_bf16_f32 {vr(pp)}, {vr(ep)}, {vr(ep+1)}")
            out.append(f"v_cvt_pk_bf16_f32 {vr(pp+1)}, {vr(ep+2)}, {vr(ep+3)}")
    return out

def emit_phase(a, mf, aux, valu, pat):
    p = 0
    for k in range(4):
        a(mf[k])
        for x in aux[k]: a(x)
        for x in valu[p:p + pat[k]]: a(x)
        p += pat[k]
    assert p == len(valu)

def attn_flaginit(a, S):
    t0, w = S["t0"], S["w"]
    a(f"s_lshl_b32 s{t0}, s{w}, 8")
    a(f"s_add_u32 s{t0}, s{t0}, {S['flag_addr']}")
    a(f"v_and_b32 v{V_T0}, 63, v0")
    a(f"v_lshl_add_u32 v{V_FLAG}, v{V_T0}, 2, s{t0}")
    a(f"v_mov_b32 v{V_ONE}, 0")
    a(f"ds_write_b32 v{V_FLAG}, v{V_ONE}")
    a(f"v_and_b32 v{V_PADDR}, 3, v0")
    a(f"v_mul_u32_u24 v{V_PADDR}, 260, v{V_PADDR}")
    a(f"v_add_u32 v{V_PADDR}, {S['flag_addr']}, v{V_PADDR}")
    a(f"v_mov_b32 v{V_ONE}, 1")

def attn_firstsync(a, S, tag):
    a(f"ds_add_u32 v{V_FLAG}, v{V_ONE}")
    a.label(f"{tag}_fs")
    a(f"ds_read_b32 v{V_POLL}, v{V_PADDR}")
    a("s_waitcnt lgkmcnt(0)")
    a(f"v_cmp_gt_u32 vcc, 1, v{V_POLL}")
    a("s_nop 4")
    a(f"s_cbranch_vccnz {tag}_fs")

def attn_prologue(a, S, sync, tag):
    ws, w, wg = S["ws"], S["w"], S["wg"]
    srdw, srdk = S["srdw"], S["srdk"]
    t0, t1, t2 = S["t0"], S["t1"], S["t2"]
    so = S["soff"]; wb = S["wb"]
    a(f"""
    v_and_b32 v{V_T0}, 63, v0
    v_lshlrev_b32 v{V_L16}, 4, v{V_T0}
    s_add_u32 s{srdk}, s{ws}, {KV_OFF}
    s_addc_u32 s{srdk+1}, s{ws+1}, 0
    s_and_b32 s{srdk+1}, s{srdk+1}, 0xffff
    s_mov_b32 s{srdk+2}, {KV_SZ}
    s_mov_b32 s{srdk+3}, 0x20000
    s_mul_i32 s{wb}, s{w}, 3072
    s_mov_b32 s{so}, s{wb}
    """)
    a(f"""
    s_mov_b32 s{srdw}, s{ws}
    s_and_b32 s{srdw+1}, s{ws+1}, 0xffff
    s_mov_b32 s{srdw+2}, {WS_END}
    s_mov_b32 s{srdw+3}, 0x20000
    v_and_b32 v{V_T0+1}, 31, v0
    v_bfe_u32 v{V_T0+2}, v0, 5, 1          ; hf
    v_lshlrev_b32 v{TMP}, 3, v{V_T0+1}
    v_lshl_add_u32 v{TMP+1}, v{V_T0+2}, 14, v{TMP}
    v_lshl_add_u32 v{TMP+2}, v{V_T0+2}, 30, v{TMP}
    s_bfe_u32 s{t0}, s{wg}, 0x20003
    s_lshl_b32 s{t0}, s{t0}, 2
    s_add_u32 s{t0}, s{t0}, s{w}
    s_and_b32 s{t1}, s{wg}, 7
    s_lshl_b32 s{t1}, s{t1}, 3
    s_lshr_b32 s{t2}, s{wg}, 5
    s_add_u32 s{t1}, s{t1}, s{t2}
    s_mul_i32 s{t2}, s{t0}, {10*16384}
    s_lshl_b32 s{S['qo']}, s{t1}, 8
    s_add_u32 s{t2}, s{t2}, s{S['qo']}
    s_mul_i32 s{S['oo']}, s{t0}, {5*32768}
    s_lshl_b32 s{t1}, s{t1}, 9
    s_add_u32 s{S['oo']}, s{S['oo']}, s{t1}
    s_add_u32 s{S['oo']}, s{S['oo']}, {OF_OFF}
    """)
    assert QP_OFF == 0
    for (q0, q1, hoff) in ((QA0, QA1, 0), (QB0, QB1, 5)):
        a(f"s_add_u32 s{t0}, s{t2}, {hoff*16384}")
        a(f"buffer_load_dwordx2 {vr(q0,2)}, v{TMP+1}, {sr(srdw,4)}, s{t0} offen")
        a(f"s_add_u32 s{t0}, s{t2}, {(hoff+2)*16384}")
        a(f"buffer_load_dwordx2 {vr(q0+2,2)}, v{TMP+1}, {sr(srdw,4)}, s{t0} offen")
        a(f"s_add_u32 s{t0}, s{t2}, {(hoff+4)*16384}")
        a(f"buffer_load_dwordx2 {vr(q1,2)}, v{TMP+2}, {sr(srdw,4)}, s{t0} offen")
    a(f"""
    v_lshlrev_b32 v{TMP+3}, 2, v{V_T0}
    s_mov_b32 s{t0}, {KM_OFF}
    buffer_load_dword v{TMP+4}, v{TMP+3}, {sr(srdw,4)}, s{t0} offen
    """)
    for c in range(3):
        a(f"s_add_u32 m0, s{wb}, {c*CHUNK}")
        a("s_nop 0")
        for i in range(3):
            a(f"buffer_load_dwordx4 v{V_L16}, {sr(srdk,4)}, s{so} offen offset:{i*1024} lds")
        a(f"s_add_u32 s{so}, s{so}, {CHUNK}")
    a(f"""
    v_min_u32 v{V_AV}, 27, v{V_T0+1}
    v_lshlrev_b32 v{V_AV}, 4, v{V_AV}
    v_mul_u32_u24 v{TMP+5}, {V_PLANE}, v{V_T0+2}
    v_add_u32 v{V_AV}, v{V_AV}, v{TMP+5}
    v_add_u32 v{V_AV}, {V_OFF_T}, v{V_AV}
    v_add_u32 v{V_AK1}, {K1_OFF_T}, v{TMP}
    v_cmp_eq_u32 vcc, 1, v{V_T0+2}
    v_mov_b32 v{TMP+5}, {V_OFF_T + 27*16}
    v_mov_b32 v{K1[0]+2}, 0x3f80
    v_cndmask_b32_e64 v{V_AK1}, v{V_AK1}, v{TMP+5}, vcc
    v_mov_b32 v{K1[0]+3}, 0
    v_mov_b32 v{K1[1]+2}, 0x3f80
    v_mov_b32 v{K1[1]+3}, 0
    v_lshlrev_b32 v{V_T0+3}, 4, v{V_T0+1}
    v_lshl_add_u32 v{V_T0+3}, v{V_T0+2}, 15, v{V_T0+3}
    """)
    for i in range(16):
        a(f"v_mov_b32 v{OA+i}, 0")
        a(f"v_mov_b32 v{OB+i}, 0")
    for i in range(8):
        a(f"v_mov_b32 v{PB+i}, 0")
        a(f"v_mov_b32 v{VV[1][0]+i}, 0")
        a(f"v_mov_b32 v{E+i}, 0")
    a("s_waitcnt vmcnt(9)")
    km = TMP + 4
    for r in (8, 4, 2, 1):
        a(f"s_nop 1")
        a(f"v_max_f32_dpp v{km}, v{km}, v{km} row_ror:{r} row_mask:0xf bank_mask:0xf")
    for sw in ("v_permlane16_swap_b32", "v_permlane32_swap_b32"):
        a(f"v_mov_b32 v{km+1}, v{km}")
        a("s_nop 1")
        a(f"{sw} v{km}, v{km+1}")
        a("s_nop 1")
        a(f"v_max_f32 v{km}, v{km}, v{km+1}")
    for (q0, q1, t) in ((QA0, QA1, TMP + 6), (QB0, QB1, TMP + 8)):
        a(f"v_dot2_f32_bf16 v{t}, v{q0}, v{q0}, 0")
        for r in (q0 + 1, q0 + 2, q0 + 3, q1, q1 + 1):
            a(f"v_dot2_f32_bf16 v{t}, v{r}, v{r}, v{t}")
        a("s_nop 2")
        a(f"v_mov_b32 v{t+1}, v{t}")
        a("s_nop 1")
        a(f"v_permlane32_swap_b32 v{t}, v{t+1}")
        a("s_nop 1")
        a(f"v_add_f32 v{t}, v{t}, v{t+1}")
        a(f"v_mul_f32 v{t}, v{t}, v{km}")
        a(f"v_sqrt_f32 v{t}, v{t}")
        a("s_nop 0")
        a(f"v_sub_f32 v{t+1}, 0, v{t}")
        a(f"v_cvt_pk_bf16_f32 v{t+1}, v{t+1}, 0")
        a(f"v_cndmask_b32_e64 v{q1+2}, v{t+1}, 0, vcc")
        a(f"v_mov_b32 v{q1+3}, 0")
    a(f"v_max_f32 v{TMP+6}, v{TMP+6}, v{TMP+8}")
    a(f"v_mov_b32 v{TMP+7}, {hex(f2u(T_BOUND))}")
    a(f"v_cmp_nle_f32 vcc, v{TMP+6}, v{TMP+7}")
    a("s_waitcnt vmcnt(6)")

def ds_k(slot, tile, buf):
    o = slot * CHUNK + tile * TILE_B
    return [f"ds_read_b128 {vr(K0[buf],4)}, v{V_L16} offset:{o}",
            f"ds_read_b64 {vr(K1[buf],2)}, v{V_AK1} offset:{o}"]
def ds_v(slot, tile, buf):
    o = slot * CHUNK + tile * TILE_B
    return [f"ds_read_b128 {vr(VV[buf][0],4)}, v{V_AV} offset:{o}",
            f"ds_read_b128 {vr(VV[buf][1],4)}, v{V_AV} offset:{o+2*V_PLANE}"]

def attn_main(a, S, sync, tag, pat=(6,6,6,6), lag=False, prio=None, nods=False, nodma=False, nowait=False, clk=False):
    srdk, so, wb = S["srdk"], S["soff"], S["wb"]
    cnt, tgt = S["cnt"], S["tgt"]
    for x in ds_k(0, 0, 0): a(x)
    a("s_waitcnt lgkmcnt(0)")
    a(mfma32(SA, K0[0], QA0, None))
    a(mfma32(SA, K1[0], QA1, SA))
    for x in ds_k(0, 1, 1): a(x)
    for x in ds_v(0, 0, 0): a(x)
    a(f"s_mov_b32 s{cnt}, 4")
    a(f"s_mov_b32 s{tgt}, 2")
    a("s_nop 7")
    a(".p2align 6")
    a.label(f"{tag}_loop")
    for c in range(4):
        for t in range(4):
            j = 4 * c + t
            kb, vb = j & 1, j & 1
            mf = [mfma32(SB, K0[kb], QB0, None), mfma32(SB, K1[kb], QB1, SB),
                  mfma32(OB, VV[vb ^ 1][0], PB, OB), mfma32(OB, VV[vb ^ 1][1], PB + 4, OB)]
            aux = [[], [], [], ["s_waitcnt lgkmcnt(0)"]]
            dslot = (c + 3) & 3
            dma = [f"buffer_load_dwordx4 v{V_L16}, {sr(srdk,4)}, s{so} offen offset:{i*1024} lds" for i in range(3)]
            if sync == "barrier":
                if t == 0:
                    aux[0] = ["s_waitcnt vmcnt(3)"]
                    aux[1] = ["s_barrier"]
                    aux[2] = [f"s_add_u32 m0, s{wb}, {dslot*CHUNK}"]
                if t == 1:
                    aux[0] = [dma[0]]; aux[1] = [dma[1]]; aux[2] = [dma[2]]
                if t == 2:
                    aux[0] = [f"s_add_u32 s{so}, s{so}, {CHUNK}"]
            else:
                if t == 0:
                    aux[0] = ["s_waitcnt vmcnt(3)"]
                    aux[1] = [f"ds_add_u32 v{V_FLAG}, v{V_ONE}"]
                    aux[2] = [f"s_add_u32 m0, s{wb}, {dslot*CHUNK}"]
                if t == 1:
                    aux[2] = [f"ds_read_b32 v{V_POLL}, v{V_PADDR}"]
                if t == 2:
                    aux[0] = [f"v_cmp_gt_u32 vcc, s{tgt}, v{V_POLL}"]
                    aux[2] = [f"s_cbranch_vccnz {tag}_spin{c}", f"LABEL {tag}_back{c}"]
                if t == 3:
                    aux[0] = [dma[0]]; aux[1] = [dma[1]]; aux[2] = [dma[2]]
            if nodma: aux = [[], [], [], ["s_waitcnt lgkmcnt(0)"]]
            if nowait: aux[3] = []
            va = valu_stream(SA, PA, PB, lag)
            emit_phase_l(a, mf, aux, va, pat)
            mf = [mfma32(SA, K0[kb ^ 1], QA0, None), mfma32(SA, K1[kb ^ 1], QA1, SA),
                  mfma32(OA, VV[vb][0], PA, OA), mfma32(OA, VV[vb][1], PA + 4, OA)]
            j2 = j + 2; j1 = j + 1
            dk = ds_k((j2 >> 2) & 3, j2 & 3, kb)
            dv = ds_v((j1 >> 2) & 3, j1 & 3, vb ^ 1)
            aux = [[dk[0]], [dk[1]], [dv[0]], [dv[1]]]
            if nods: aux = [[], [], [], []]
            if sync == "flag" and t == 3:
                aux[0].append(f"s_add_u32 s{so}, s{so}, {CHUNK}")
                aux[1].append(f"s_add_u32 s{tgt}, s{tgt}, 1")
            if c == 3 and t == 3:
                aux[2].append(f"s_sub_u32 s{cnt}, s{cnt}, 1")
                aux[3].append(f"s_cmp_lg_u32 s{cnt}, 0")
            va = valu_stream(SB, PB, PA, lag)
            emit_phase_l(a, mf, aux, va, pat)
    if clk:
        a("s_mov_b32 s56, s52"); a("s_mov_b32 s57, s53")
        a("s_mov_b32 s52, s48"); a("s_mov_b32 s53, s49")
        a("s_mov_b32 s48, s44"); a("s_mov_b32 s49, s45")
        a("s_memtime s[44:45]"); a("s_memrealtime s[46:47]"); a("s_waitcnt lgkmcnt(0)"); a("s_mov_b32 s45, s46")
    a(f"s_cbranch_scc1 {tag}_loop")
    if lag:
        ep = E + 4
        a(f"v_cvt_pk_bf16_f32 {vr(PB+6)}, {vr(ep)}, {vr(ep+1)}")
        a(f"v_cvt_pk_bf16_f32 {vr(PB+7)}, {vr(ep+2)}, {vr(ep+3)}")
    a("s_nop 1")
    a(mfma32(OB, VV[1][0], PB, OB))
    a(mfma32(OB, VV[1][1], PB + 4, OB))

def attn_spins(a, S, tag):
    for c in range(4):
        a.label(f"{tag}_spin{c}")
        a(f"ds_read_b32 v{V_POLL}, v{V_PADDR}")
        a("s_waitcnt lgkmcnt(0)")
        a(f"v_cmp_gt_u32 vcc, s{S['tgt']}, v{V_POLL}")
        a("s_nop 4")
        a(f"s_cbranch_vccnz {tag}_spin{c}")
        a(f"s_branch {tag}_back{c}")

def emit_phase_l(a, mf, aux, valu, pat):
    p = 0
    for k in range(4):
        a(mf[k])
        for x in aux[k]:
            if x.startswith("LABEL "): a.label(x[6:])
            else: a(x)
        for x in valu[p:p + pat[k]]: a(x)
        p += pat[k]
    assert p == len(valu)

def attn_epilogue(a, S):
    srdw, oo, t0 = S["srdw"], S["oo"], S["t0"]
    a("s_waitcnt vmcnt(0) lgkmcnt(0)")
    a("s_nop 7")
    a("s_nop 3")
    for (O, t) in ((OA, E), (OB, E + 2)):
        a(f"v_mov_b32 v{t}, v{O+8}")
        a(f"v_mov_b32 v{t+1}, v{O+8}")
        a("s_nop 1")
        a(f"v_permlane32_swap_b32 v{t}, v{t+1}")
        a("s_nop 1")
        a(f"v_rcp_f32 v{t+1}, v{t+1}")
        a("s_nop 0")
        for i in range(12):
            a(f"v_mul_f32 v{O+i}, v{O+i}, v{t+1}")
    def pk(d, s):
        a(f"v_cvt_pk_bf16_f32 v{d}, v{s}, v{s+1}")
        a(f"v_cvt_pk_bf16_f32 v{d+1}, v{s+2}, v{s+3}")
    pk(TMP, OA); pk(TMP + 2, OA + 4); pk(TMP + 4, OA + 8)
    pk(TMP + 6, OB); pk(TMP + 12, OB + 4); pk(TMP + 10, OB + 8)
    a("s_nop 1")
    for i in range(2):
        a(f"v_permlane32_swap_b32 v{TMP+i}, v{TMP+2+i}")
    for i in range(2):
        a(f"v_permlane32_swap_b32 v{TMP+6+i}, v{TMP+12+i}")
    a("s_nop 1")
    for i in range(2):
        a(f"v_permlane32_swap_b32 v{TMP+4+i}, v{TMP+12+i}")
    a("s_nop 1")
    for i in range(2):
        a(f"v_permlane32_swap_b32 v{TMP+12+i}, v{TMP+8+i}")
    a("s_nop 1")
    a(f"buffer_store_dwordx4 {vr(TMP,4)}, v{V_T0+3}, {sr(srdw,4)}, s{oo} offen")
    a(f"s_add_u32 s{t0}, s{oo}, {2*32768}")
    a(f"buffer_store_dwordx4 {vr(TMP+4,4)}, v{V_T0+3}, {sr(srdw,4)}, s{t0} offen")
    a(f"s_add_u32 s{t0}, s{oo}, {4*32768}")
    a("s_mov_b32 exec_hi, 0")
    a(f"buffer_store_dwordx4 {vr(TMP+8,4)}, v{V_T0+3}, {sr(srdw,4)}, s{t0} offen")

def kd(name, nv, ns=102):
    nv4 = (nv + 3) // 4 * 4
    return f""".amdhsa_kernel {name}
  .amdhsa_next_free_vgpr {nv}
  .amdhsa_next_free_sgpr {ns}
  .amdhsa_accum_offset {nv4}
  .amdhsa_group_segment_fixed_size 0
  .amdhsa_kernarg_size 104
  .amdhsa_user_sgpr_count 2
  .amdhsa_user_sgpr_kernarg_segment_ptr 1
  .amdhsa_system_sgpr_workgroup_id_x 1
  .amdhsa_float_denorm_mode_32 3
.end_amdhsa_kernel
"""

SREG = dict(ws=4, w=6, wg=2, srdw=8, srdk=12, t0=16, t1=17, t2=18, soff=19, wb=20, qo=21, oo=22, cnt=23, tgt=24, flag_addr=4*CHUNK)

def attn_kernel(name, sync="barrier", stamp=False, **kw):
    a = Asm()
    S = SREG
    a.label(name)
    a(f"""
    s_cmp_ge_u32 s2, 256
    s_cbranch_scc1 {name}_end
    s_load_dwordx2 s[4:5], s[0:1], 96
    v_lshrrev_b32 v1, 6, v0
    s_nop 0
    v_readfirstlane_b32 s6, v1
    """)
    if stamp:
        a("s_memtime s[30:31]")
        a("s_memrealtime s[32:33]")
    if sync == "flag": attn_flaginit(a, S)
    a("s_waitcnt lgkmcnt(0)")
    if sync == "flag": a("s_barrier")
    attn_prologue(a, S, sync, name)
    if sync == "flag":
        a("s_mov_b64 s[26:27], vcc")
        attn_firstsync(a, S, name)
    else: a("s_barrier")
    if stamp:
        a("s_memtime s[34:35]")
    attn_main(a, S, sync, name, **kw)
    if stamp:
        a("s_memtime s[36:37]")
    attn_epilogue(a, S)
    if stamp:
        a(f"""
        s_mov_b64 exec, -1
        s_waitcnt vmcnt(0)
        s_memtime s[38:39]
        s_memrealtime s[40:41]
        s_waitcnt lgkmcnt(0)
        s_sub_u32 s34, s34, s30
        s_sub_u32 s36, s36, s30
        s_sub_u32 s38, s38, s30
        s_sub_u32 s40, s40, s32
        v_mov_b32 v8, s34
        v_mov_b32 v9, s36
        v_mov_b32 v10, s38
        v_mov_b32 v11, s40
        s_lshl_b32 s16, s2, 2
        s_add_u32 s16, s16, s6
        s_lshl_b32 s16, s16, 4
        s_add_u32 s16, s16, {WS_END - 65536}
        v_mov_b32 v12, 0
        buffer_store_dwordx4 v[8:11], v12, s[8:11], s16 offen
        """)
        if kw.get("clk"):
            a("s_sub_u32 s16, s16, 65536")
            for i, r in enumerate((56, 52, 48, 44)):
                a(f"s_sub_u32 s{r}, s{r}, s30"); a(f"s_sub_u32 s{r+1}, s{r+1}, s32")
            a("s_nop 2")
            a("v_mov_b32 v8, s56\nv_mov_b32 v9, s57\nv_mov_b32 v10, s52\nv_mov_b32 v11, s53")
            a("buffer_store_dwordx4 v[8:11], v12, s[8:11], s16 offen")
            a("s_sub_u32 s16, s16, 65536")
            a("s_nop 2")
            a("v_mov_b32 v8, s48\nv_mov_b32 v9, s49\nv_mov_b32 v10, s44\nv_mov_b32 v11, s45")
            a("buffer_store_dwordx4 v[8:11], v12, s[8:11], s16 offen")
    a.label(f"{name}_end")
    a("s_endpgm")
    if sync == "flag":
        attn_spins(a, S, name)
    errs = check_hazards(a.lines, name)
    for e in errs: print("HAZARD", e)
    return a.text(), kd(name, NV_ATT), (256, 256, 4 * CHUNK + 1024)
```

```python
from asmlib import *
from layout import *
from gemm import srd, transpose_task, f2u
from kernels import finish, stamp_begin, stamp_mid, stamp_end
import math

SLOT = 24576
NSL = 6
LDS_K1 = SLOT * NSL
QSCALE = math.log2(math.e) / math.sqrt(20.0)

def mfma32(d, a, b, c):
    cs = "0" if c is None else vr(c, 16)
    return f"v_mfma_f32_32x32x16_bf16 {vr(d,16)}, {vr(a,4)}, {vr(b,4)}, {cs}"
def mfma8(d, a, b, c):
    return f"v_mfma_f32_32x32x8_bf16 {vr(d,16)}, {vr(a,2)}, {vr(b,2)}, {vr(c,16)}"

def bf16r(a, v):
    a(f"v_cvt_pk_bf16_f32 v{v}, v{v}, v{v}")
    a(f"v_lshlrev_b32 v{v}, 16, v{v}")

def ln_stats(a, sx, sxx, t, sInv, sEps):
    a(f"v_mul_f32 v{sx}, s{sInv}, v{sx}")
    a(f"v_mul_f32 v{t}, v{sx}, v{sx}")
    a(f"v_fma_f32 v{sxx}, v{sxx}, s{sInv}, -v{t}")
    a(f"v_max_f32 v{sxx}, 0, v{sxx}")
    bf16r(a, sx); bf16r(a, sxx)
    a(f"v_add_f32 v{sxx}, s{sEps}, v{sxx}")
    bf16r(a, sxx)
    a(f"v_sqrt_f32 v{sxx}, v{sxx}")
    a("s_nop 0")
    bf16r(a, sxx)
    a(f"v_rcp_f32 v{sxx}, v{sxx}")
    a("s_nop 0")

def half_sum(a, v, t):
    a(f"v_mov_b32 v{t}, v{v}")
    a("s_nop 1")
    a(f"v_permlane32_swap_b32 v{v}, v{t}")
    a("s_nop 1")
    a(f"v_add_f32 v{v}, v{v}, v{t}")

def split3(a, cs, d, t, vccmask=True):
    a(f"v_cvt_pk_bf16_f32 v{d}, v{cs}, v{cs}")
    a(f"v_lshlrev_b32 v{t}, 16, v{d}")
    a(f"v_sub_f32 v{cs}, v{cs}, v{t}")
    a(f"v_cvt_pk_bf16_f32 v{d}, v{t}, v{cs}")
    a(f"v_and_b32 v{t}, 0xffff0000, v{d}")
    a(f"v_sub_f32 v{cs}, v{cs}, v{t}")
    a(f"v_cvt_pk_bf16_f32 v{d+1}, v{cs}, 0")
    a(f"v_cndmask_b32_e64 v{d}, v{d}, 0, vcc")
    a(f"v_cndmask_b32_e64 v{d+1}, v{d+1}, 0, vcc")

def k1_kernel(name="k1_kernel", stamp=False, nodot=False, nomfma=False, nord=False, noiss=False):
    a = Asm()
    a.label(name)
    a(f"""
    s_cmp_ge_u32 s2, 256
    s_cbranch_scc1 {name}_end
    s_load_dwordx2 s[4:5], s[0:1], 96
    s_load_dwordx4 s[40:43], s[0:1], 0
    s_load_dwordx4 s[56:59], s[0:1], 16
    v_lshrrev_b32 v1, 6, v0
    s_nop 0
    v_readfirstlane_b32 s6, v1
    """)
    if stamp: stamp_begin(a)
    a(f"""
    s_and_b32 s46, s2, 7
    s_bfe_u32 s47, s2, 0x30003
    s_lshr_b32 s48, s2, 6
    s_lshl_b32 s48, s48, 3
    s_add_u32 s48, s48, s46
    s_mov_b32 s60, 0x3f803f80
    s_mov_b32 s61, {hex(f2u(1.0/640))}
    s_mov_b32 s62, {hex(f2u(1e-5))}
    s_waitcnt lgkmcnt(0)
    """)
    srd(a, 8, 4, 5, 0, WS_END)
    srd(a, 12, 40, 41, 0, 2048 * 1280)
    a(f"""
    s_cmp_ge_u32 s47, 6
    s_cbranch_scc1 {name}_ln
    """)
    XE, XO = 1, 2
    T = 3
    AX = 10
    AW = 14
    WD = 16
    SX, SXX, CS0, CS1 = 20, 21, 22, 23
    XF = 24
    WF = 40
    ACC = 72
    PK = 104
    NV = 128
    a(f"""
    v_bfe_u32 v{T}, v0, 3, 3
    v_mul_u32_u24 v{XE}, 1280, v{T}
    v_and_b32 v{T}, 7, v0
    v_bfe_u32 v{T+1}, v0, 4, 2
    v_xor_b32 v{T}, v{T}, v{T+1}
    v_xor_b32 v{T+2}, 4, v{T}
    v_lshl_add_u32 v{XO}, v{T+2}, 4, v{XE}
    v_add_u32 v{XO}, {8*1280-1024}, v{XO}
    v_lshl_add_u32 v{XE}, v{T}, 4, v{XE}
    s_lshl_b32 s7, s48, 2
    s_add_u32 s7, s7, s6
    s_mul_i32 s20, s7, {16*1280}         ; x soffset
    s_lshl_b32 s21, s6, 11
    s_and_b32 s49, s6, 1                 ; wt
    s_lshr_b32 s50, s6, 1                ; wn
    """)
    a(f"""
    s_cmp_eq_u32 s47, 5
    s_cbranch_scc1 {name}_kv
    """)
    def xaddr(slotstride):
        a(f"""
        v_and_b32 v{T+3}, 31, v0
        v_bfe_u32 v{T+4}, v0, 5, 1
        v_bfe_u32 v{T+5}, v0, 1, 3
        v_xor_b32 v{T+5}, v{T+5}, v{T+4}
        s_lshl_b32 s7, s49, 12
        v_lshl_add_u32 v{T+6}, v{T+3}, 7, s7
        """)
        for ks in range(4):
            a(f"v_xor_b32 v{AX+ks}, {2*ks}, v{T+5}")
            a(f"v_lshl_add_u32 v{AX+ks}, v{AX+ks}, 4, v{T+6}")
    def xdma(slot_s):
        a(f"s_add_u32 m0, s{slot_s}, s21")
        a("s_nop 0")
        a(f"buffer_load_dwordx4 v{XE}, s[12:15], s20 offen lds")
        a(f"buffer_load_dwordx4 v{XO}, s[12:15], s20 offen offset:1024 lds")
    def stats_epi(ncs):
        a("s_nop 2")
        a(f"v_cmp_eq_u32 vcc, 1, v{T+4}")
        half_sum(a, SX, T); half_sum(a, SXX, T)
        for b in range(ncs): half_sum(a, CS0 + b, T)
        ln_stats(a, SX, SXX, T, 61, 62)
        a(f"v_sub_f32 v{SX}, 0, v{SX}")
        a(f"v_cvt_pk_bf16_f32 v{XF}, v{SX}, v{SX}")
        a(f"v_cvt_pk_bf16_f32 v{XF+1}, v{SX}, 0")
        a(f"v_cndmask_b32_e64 v{XF}, v{XF}, 0, vcc")
        a(f"v_cndmask_b32_e64 v{XF+1}, v{XF+1}, 0, vcc")
        for b in range(ncs): split3(a, CS0 + b, WF + 2 * b, T)
        a("s_nop 1")
        for b in range(ncs): a(mfma8(ACC + 16 * b, WF + 2 * b, XF, ACC + 16 * b))

    srd(a, 16, 42, 43, 0, 640 * 1280)
    a(f"""
    v_mul_u32_u24 v{WD}, 1280, v{T+1}
    v_and_b32 v{T}, 15, v0
    v_lshlrev_b32 v{T+2}, 2, v{T+1}
    v_xor_b32 v{T}, v{T}, v{T+2}
    v_lshl_add_u32 v{WD}, v{T}, 4, v{WD}
    v_add_u32 v{WD+1}, 4096, v{WD}
    v_add_u32 v{WD+2}, 8192, v{WD}
    v_add_u32 v{WD+3}, 12288, v{WD}
    s_mul_i32 s22, s6, {16*1280}
    s_lshl_b32 s7, s47, 8
    s_add_u32 s22, s22, s7
    s_lshl_b32 s23, s6, 12
    s_add_u32 s23, s23, 8192
    s_mov_b32 s24, 0
    """)
    def qissue():
        xdma(24)
        a("s_add_u32 m0, s24, s23")
        a("s_add_u32 s20, s20, 128")
        for q in range(4):
            a(f"buffer_load_dwordx4 v{WD+q}, s[16:19], s22 offen offset:{q*1024} lds")
        a(f"s_add_u32 s22, s22, {64*1280}")
    a("s_mov_b32 s25, 5")
    a.label(f"{name}_qpre")
    qissue()
    a(f"""
    s_add_u32 s24, s24, {SLOT}
    s_sub_u32 s25, s25, 1
    s_cmp_lg_u32 s25, 0
    s_cbranch_scc1 {name}_qpre
    """)
    xaddr(SLOT)
    a(f"""
    v_bfe_u32 v{T}, v0, 2, 2
    v_lshl_add_u32 v{T+1}, v{T+4}, 3, v{T}
    v_lshlrev_b32 v{T+1}, 8, v{T+1}
    v_bfe_u32 v{T+2}, v0, 4, 1
    v_lshl_add_u32 v{T+1}, v{T+2}, 5, v{T+1}
    v_and_b32 v{T+2}, 3, v0
    v_lshl_add_u32 v{T+1}, v{T+2}, 3, v{T+1}
    v_add_u32 v{T+1}, 8192, v{T+1}
    s_lshl_b32 s7, s50, 1
    v_xor_b32 v{T}, s7, v{T}
    v_lshl_add_u32 v{AW}, v{T}, 6, v{T+1}
    v_xor_b32 v{T}, 1, v{T}
    v_lshl_add_u32 v{AW+1}, v{T}, 6, v{T+1}
    """)
    for i in range(4): a(f"v_mov_b32 v{SX+i}, 0")
    for i in range(32): a(f"v_mov_b32 v{ACC+i}, 0")
    a("s_mov_b32 s25, 0")
    a("s_mov_b32 s26, 0")
    if stamp: stamp_mid(a, 0)
    def rd(ks, nb):
        if nord: return
        a(f"ds_read_b128 {vr(XF+4*ks,4)}, v{AX+ks}")
        for b in range(nb):
            for t in range(2):
                rs = 256 if nb == 2 else 64
                a(f"ds_read_b64_tr_b16 {vr(WF+8*ks+4*b+2*t,2)}, v{AW+b} offset:{(16*ks+4*t)*rs}")
    def comp(nb):
        n = 1 + 2 * nb
        rd(0, nb); rd(1, nb)
        for ks in range(4):
            a(f"s_waitcnt lgkmcnt({n if ks < 3 else 0})")
            if ks < 2: rd(ks + 2, nb)
            for b in range(nb):
                if not nomfma: a(mfma32(ACC + 16 * b, WF + 8 * ks + 4 * b, XF + 4 * ks, ACC + 16 * b))
            for i in range(0 if nodot else 4):
                a(f"v_dot2_f32_bf16 v{SX}, v{XF+4*ks+i}, s60, v{SX}")
                a(f"v_dot2_f32_bf16 v{CS0}, v{WF+8*ks+i}, s60, v{CS0}")
                a(f"v_dot2_f32_bf16 v{SXX}, v{XF+4*ks+i}, v{XF+4*ks+i}, v{SXX}")
                if nb == 2:
                    a(f"v_dot2_f32_bf16 v{CS1}, v{WF+8*ks+4+i}, s60, v{CS1}")
    a.label(f"{name}_qloop")
    a("s_waitcnt vmcnt(24)")
    a("s_barrier")
    a(f"""
    s_cmp_ge_u32 s25, 5
    s_cselect_b32 s20, 0x80000000, s20
    s_cselect_b32 s22, 0x80000000, s22
    """)
    if not noiss: qissue()
    a(f"""
    s_add_u32 s24, s24, {SLOT}
    s_cmp_eq_u32 s24, {LDS_K1}
    s_cselect_b32 s24, 0, s24
    """)
    comp(2)
    a(f"""
    s_add_u32 s26, s26, 1
    s_cmp_eq_u32 s26, {NSL}
    s_mov_b32 s27, {SLOT}
    s_cselect_b32 s27, {(-(NSL-1)*SLOT) & 0xffffffff}, s27
    s_cselect_b32 s26, 0, s26
    """)
    for i in range(6): a(f"v_add_u32 v{AX+i}, s27, v{AX+i}")
    a(f"""
    s_add_u32 s25, s25, 1
    s_cmp_lg_u32 s25, 10
    s_cbranch_scc1 {name}_qloop
    """)
    if stamp: stamp_mid(a, 1)
    stats_epi(2)
    a(f"""
    v_mul_f32 v{SXX}, {hex(f2u(QSCALE))}, v{SXX}
    v_lshlrev_b32 v{T}, 3, v{T+3}
    v_lshl_add_u32 v{T}, v{T+4}, 14, v{T}
    s_lshl_b32 s7, s47, 1
    s_add_u32 s7, s7, s50
    s_lshl_b32 s7, s7, 18
    s_lshl_b32 s20, s48, 1
    s_add_u32 s20, s20, s49
    s_lshl_b32 s20, s20, 8
    s_add_u32 s20, s20, s7
    s_nop 7
    """)
    for b in range(2):
        for rq in range(4):
            r = ACC + 16 * b + 4 * rq
            for i in range(4): a(f"v_mul_f32 v{r+i}, v{r+i}, v{SXX}")
            p = PK + 8 * b + 2 * rq
            a(f"v_cvt_pk_bf16_f32 v{p}, v{r}, v{r+1}")
            a(f"v_cvt_pk_bf16_f32 v{p+1}, v{r+2}, v{r+3}")
            a(f"buffer_store_dwordx2 {vr(p,2)}, v{T}, s[8:11], s20 offen")
            a(f"s_add_u32 s20, s20, 32768")
    if stamp: stamp_end(a, 8, 6, 2)
    a("s_endpgm")

    a.label(f"{name}_kv")
    KW = 49152
    srd(a, 16, 56, 57, 0, 25600)
    srd(a, 28, 58, 59, 0, 25600)
    a(f"v_lshlrev_b32 v{T+2}, 3, v0")
    for m, sd in ((0, 16), (1, 28)):
        for i in range(13):
            if i % 2 == 0 and i > 0:
                pass
            a(f"s_mov_b32 s7, {i*2048}")
            a(f"buffer_load_dwordx2 {vr(WF+2*i+26*m,2)}, v{T+2}, {sr(sd,4)}, s7 offen")
    a("s_mov_b32 s24, 0")
    for c in range(5):
        xdma(24)
        a("s_add_u32 s20, s20, 128")
        a("s_add_u32 s24, s24, 8192")
    xaddr(8192)
    a("s_waitcnt vmcnt(10)")
    for i in range(13):
        a(f"v_add_u32 v{T}, {256*i}, v0")
        a(f"v_mul_u32_u24 v{T+1}, 52429, v{T}")
        a(f"v_lshrrev_b32 v{T+1}, 18, v{T+1}")
        a(f"v_mul_u32_u24 v{T+1}, 24, v{T+1}")
        a(f"v_lshl_add_u32 v{T+1}, v{T}, 3, v{T+1}")
        if i == 12:
            a("s_cmp_ge_u32 s6, 2")
            a(f"s_cbranch_scc1 {name}_kvw")
        a(f"ds_write_b64 v{T+1}, {vr(WF+2*i,2)} offset:{KW}")
        a(f"v_add_u32 v{T+1}, 40960, v{T+1}")
        a(f"ds_write_b64 v{T+1}, {vr(WF+2*i+26,2)} offset:{KW}")
    a.label(f"{name}_kvw")
    a(f"""
    v_bfe_u32 v{T}, v0, 2, 2
    v_lshl_add_u32 v{T+1}, v{T+4}, 3, v{T}
    v_lshlrev_b32 v{T+1}, 6, v{T+1}
    v_bfe_u32 v{T+2}, v0, 4, 1
    v_lshl_add_u32 v{T+1}, v{T+2}, 5, v{T+1}
    v_and_b32 v{T+2}, 3, v0
    v_lshl_add_u32 v{T+1}, v{T+2}, 3, v{T+1}
    s_mul_i32 s7, s50, 40960
    s_add_u32 s7, s7, {KW}
    v_add_u32 v{AW}, s7, v{T+1}
    """)
    for i in range(4): a(f"v_mov_b32 v{SX+i}, 0")
    for i in range(16): a(f"v_mov_b32 v{ACC+i}, 0")
    a("s_mov_b32 s25, 0")
    a("s_mov_b32 s26, 0")
    a("s_waitcnt lgkmcnt(0)")
    a.label(f"{name}_kvloop")
    a("s_waitcnt vmcnt(8)")
    a("s_barrier")
    a(f"""
    s_cmp_ge_u32 s25, 5
    s_cselect_b32 s20, 0x80000000, s20
    """)
    xdma(24)
    a(f"""
    s_add_u32 s20, s20, 128
    s_add_u32 s24, s24, 8192
    s_cmp_eq_u32 s24, {6*8192}
    s_cselect_b32 s24, 0, s24
    """)
    comp(1)
    a(f"""
    s_add_u32 s26, s26, 1
    s_cmp_eq_u32 s26, {NSL}
    s_mov_b32 s27, 8192
    s_cselect_b32 s27, {(-(NSL-1)*8192) & 0xffffffff}, s27
    s_cselect_b32 s26, 0, s26
    """)
    for i in range(4): a(f"v_add_u32 v{AX+i}, s27, v{AX+i}")
    a(f"v_add_u32 v{AW}, 4096, v{AW}")
    a(f"""
    s_add_u32 s25, s25, 1
    s_cmp_lg_u32 s25, 10
    s_cbranch_scc1 {name}_kvloop
    """)
    stats_epi(1)
    a(f"""
    s_lshl_b32 s21, s48, 1
    s_add_u32 s21, s21, s49
    s_mul_i32 s20, s21, {TILE_B}
    s_add_u32 s20, s20, {KV_OFF}
    s_nop 7
    s_nop 1
    """)
    for i in range(12): a(f"v_mul_f32 v{ACC+i}, v{ACC+i}, v{SXX}")
    for i in range(6): a(f"v_cvt_pk_bf16_f32 v{PK+i}, v{ACC+2*i}, v{ACC+2*i+1}")
    a(f"""
    s_cmp_eq_u32 s50, 1
    s_cbranch_scc1 {name}_v
    v_and_b32 v{T}, 63, v0
    v_lshlrev_b32 v{T}, 4, v{T}
    buffer_store_dwordx4 {vr(PK,4)}, v{T}, s[8:11], s20 offen
    v_cndmask_b32_e64 v{PK+4}, v{PK+4}, 0, vcc
    v_cndmask_b32_e64 v{PK+5}, v{PK+5}, 0, vcc
    v_lshlrev_b32 v{T+1}, 3, v{T+3}
    s_mov_b32 exec_hi, 0
    buffer_store_dwordx2 {vr(PK+4,2)}, v{T+1}, s[8:11], s20 offen offset:{K1_OFF_T}
    s_mov_b32 exec_hi, -1
    v_dot2_f32_bf16 v{SX}, v{PK}, v{PK}, 0
    """)
    for i in range(1, 6): a(f"v_dot2_f32_bf16 v{SX}, v{PK+i}, v{PK+i}, v{SX}")
    a("s_nop 2")
    half_sum(a, SX, T)
    for r in (8, 4, 2, 1):
        a("s_nop 1")
        a(f"v_max_f32_dpp v{SX}, v{SX}, v{SX} row_ror:{r} row_mask:0xf bank_mask:0xf")
    a(f"""
    v_mov_b32 v{T}, v{SX}
    s_nop 1
    v_permlane16_swap_b32 v{SX}, v{T}
    s_nop 1
    v_max_f32 v{SX}, v{SX}, v{T}
    s_lshl_b32 s21, s21, 2
    s_add_u32 s21, s21, {KM_OFF}
    v_mov_b32 v{T}, 0
    s_mov_b64 exec, 1
    buffer_store_dword v{SX}, v{T}, s[8:11], s21 offen
    s_endpgm
    """)
    a.label(f"{name}_v")
    a(f"""
    s_lshl_b32 s7, s49, 12
    s_add_u32 s7, s7, {KW + 2*40960}
    v_lshlrev_b32 v{T}, 6, v{T+3}
    v_lshl_add_u32 v{T}, v{T+4}, 3, v{T}
    v_add_u32 v{T}, s7, v{T}
    ds_write_b64 v{T}, {vr(PK,2)}
    ds_write_b64 v{T}, {vr(PK+2,2)} offset:16
    ds_write_b64 v{T}, {vr(PK+4,2)} offset:32
    v_bfe_u32 v{T}, v0, 2, 2
    v_lshl_add_u32 v{T}, v{T+4}, 2, v{T}
    v_lshlrev_b32 v{T}, 6, v{T}
    v_bfe_u32 v{T+2}, v0, 4, 1
    v_lshl_add_u32 v{T}, v{T+2}, 5, v{T}
    v_and_b32 v{T+2}, 3, v0
    v_lshl_add_u32 v{T}, v{T+2}, 3, v{T}
    v_add_u32 v{T}, s7, v{T}
    s_waitcnt lgkmcnt(0)
    """)
    for t in range(2):
        for u in range(2):
            a(f"ds_read_b64_tr_b16 {vr(PK+4*t+2*u,2)}, v{T} offset:{(16*t+8*u)*64}")
    a(f"""
    v_cmp_eq_u32 vcc, 20, v{T+3}
    v_mov_b32 v{T+1}, s60
    s_nop 0
    v_cndmask_b32_e64 v{T+1}, 0, v{T+1}, vcc
    v_cmp_gt_u32 vcc, 20, v{T+3}
    v_mul_u32_u24 v{T+2}, {V_PLANE}, v{T+4}
    v_lshl_add_u32 v{T+2}, v{T+3}, 4, v{T+2}
    s_waitcnt lgkmcnt(0)
    """)
    for i in range(8): a(f"v_cndmask_b32_e64 v{PK+i}, v{T+1}, v{PK+i}, vcc")
    a(f"""
    s_mov_b32 exec_lo, 0x0fffffff
    s_mov_b32 exec_hi, 0x0fffffff
    buffer_store_dwordx4 {vr(PK,4)}, v{T+2}, s[8:11], s20 offen offset:{V_OFF_T}
    buffer_store_dwordx4 {vr(PK+4,4)}, v{T+2}, s[8:11], s20 offen offset:{V_OFF_T+2*V_PLANE}
    s_endpgm
    """)

    a.label(f"{name}_ln")
    a(f"""
    s_lshl_b32 s7, s48, 1
    s_add_u32 s7, s7, s47
    s_sub_u32 s7, s7, 6
    s_lshl_b32 s7, s7, 2
    s_add_u32 s7, s7, s6                 ; plane
    s_cmp_lg_u32 s7, 0
    s_cbranch_scc1 {name}_nz
    v_lshlrev_b32 v1, 4, v0
    v_mov_b32 v4, 0
    v_mov_b32 v5, 0
    v_mov_b32 v6, 0
    v_mov_b32 v7, 0
    s_mov_b32 s20, {FL_OFF}
    buffer_store_dwordx4 v[4:7], v1, s[8:11], s20 offen
    """)
    a.label(f"{name}_nz")
    a(f"""
    s_mul_i32 s20, s7, 10240
    s_add_u32 s21, s20, {HF_OFF}
    s_mul_i32 s22, s6, 16384
    """)
    def body(a, X, t):
        A0 = 64; U = 72
        for p in range(2):
            for i in range(4): a(f"v_mov_b32 v{A0+i}, 0")
            for i in range(40):
                if p == 0 and i % 4 == 0:
                    a(f"s_waitcnt vmcnt({9 - i//4})")
                a(f"v_dot2_f32_bf16 v{A0+(i&1)}, v{X+i}, s60, v{A0+(i&1)}")
                a(f"v_dot2_f32_bf16 v{A0+2+(i&1)}, v{X+i}, v{X+i}, v{A0+2+(i&1)}")
            a("s_nop 2")
            a(f"v_add_f32 v{A0}, v{A0}, v{A0+1}")
            a(f"v_add_f32 v{A0+2}, v{A0+2}, v{A0+3}")
            for dpp in ("quad_perm:[1,0,3,2]", "quad_perm:[2,3,0,1]", "row_half_mirror"):
                a("s_nop 0")
                a(f"v_add_f32_dpp v{A0}, v{A0}, v{A0} {dpp} row_mask:0xf bank_mask:0xf")
                a(f"v_add_f32_dpp v{A0+2}, v{A0+2}, v{A0+2} {dpp} row_mask:0xf bank_mask:0xf")
            ln_stats(a, A0, A0 + 2, A0 + 1, 61, 62)
            a(f"v_mul_f32 v{A0}, v{A0}, v{A0+2}")
            for i in range(40):
                u = U + 2 * (i & 3)
                a(f"v_lshlrev_b32 v{u}, 16, v{X+i}")
                a(f"v_and_b32 v{u+1}, 0xffff0000, v{X+i}")
                a(f"v_pk_fma_f32 {vr(u,2)}, {vr(u,2)}, {vr(A0+2,2)}, {vr(A0,2)} op_sel_hi:[1,0,0] neg_lo:[0,0,1] neg_hi:[0,0,1]")
                a(f"v_cvt_pk_bf16_f32 v{X+i}, v{u}, v{u+1}")
    transpose_task(a, 8, None, 12, 20, 8, 21, 22, body=body)
    if stamp:
        a("s_mov_b32 s94, s90"); a("s_mov_b32 s96, s90")
        stamp_end(a, 8, 6, 3)
    a.label(f"{name}_end")
    a("s_endpgm")
    return finish(a, name, NV, (256, 256, LDS_K1))
```

```python
from asmlib import *
from layout import *
from gemm import srd, transpose_task, f2u
from kernels import finish, stamp_begin, stamp_mid, stamp_end
from k1 import mfma32, mfma8, bf16r, ln_stats, half_sum, split3, QSCALE
import math

SLOT = 24576
NSL = 6
LDS_K1 = SLOT * NSL + 4096
XCH = SLOT * NSL

def k1_kernel(name="k1_kernel", stamp=False, prefetch=None, nord=False, nomm=False, noxl=False, nowl=False):
    a = Asm()
    a.label(name)
    a(f"""
    s_cmp_ge_u32 s2, 256
    s_cbranch_scc1 {name}_end
    s_load_dwordx4 s[40:43], s[0:1], 0
    s_load_dwordx2 s[4:5], s[0:1], 96
    s_load_dwordx4 s[56:59], s[0:1], 16
    s_load_dwordx2 s[64:65], s[0:1], 48
    v_lshrrev_b32 v1, 6, v0
    s_and_b32 s46, s2, 7
    v_readfirstlane_b32 s6, v1
    """)
    if stamp: stamp_begin(a)
    a(f"""
    s_bfe_u32 s47, s2, 0x30003
    s_lshr_b32 s48, s2, 6
    s_lshl_b32 s7, s46, 2
    s_add_u32 s48, s48, s7
    s_mov_b32 s60, 0x3f803f80
    s_mov_b32 s61, {hex(f2u(1.0/640))}
    s_mov_b32 s62, {hex(f2u(1e-5))}
    s_mov_b32 s63, s6
    s_cmp_ge_u32 s47, 6
    s_cbranch_scc1 {name}_ln
    s_cmp_lt_u32 s6, 4
    s_cbranch_scc1 {name}_comp
    """)
    XE, XO, T, WD = 1, 2, 3, 16
    a(f"""
    s_sub_u32 s6, s6, 4
    v_bfe_u32 v{T}, v0, 3, 3
    v_mul_u32_u24 v{XE}, 1280, v{T}
    v_and_b32 v{T}, 7, v0
    v_bfe_u32 v{T+1}, v0, 4, 2
    v_xor_b32 v{T}, v{T}, v{T+1}
    v_xor_b32 v{T+2}, 4, v{T}
    v_lshl_add_u32 v{XO}, v{T+2}, 4, v{XE}
    v_add_u32 v{XO}, {8*1280-1024}, v{XO}
    v_lshl_add_u32 v{XE}, v{T}, 4, v{XE}
    s_lshl_b32 s7, s48, 2
    s_add_u32 s7, s7, s6
    s_mul_i32 s20, s7, {16*1280}         ; x soffset
    s_lshl_b32 s21, s6, 11
    v_mul_u32_u24 v{WD}, 1280, v{T+1}
    v_and_b32 v{T}, 15, v0
    v_lshlrev_b32 v{T+2}, 2, v{T+1}
    v_xor_b32 v{T}, v{T}, v{T+2}
    v_lshl_add_u32 v{WD}, v{T}, 4, v{WD}
    v_add_u32 v{WD+1}, 4096, v{WD}
    v_add_u32 v{WD+2}, 8192, v{WD}
    v_add_u32 v{WD+3}, 12288, v{WD}
    s_mul_i32 s22, s6, {16*1280}
    s_lshl_b32 s7, s47, 8
    s_add_u32 s22, s22, s7
    s_lshl_b32 s23, s6, 12
    s_add_u32 s23, s23, 8192
    s_waitcnt lgkmcnt(0)
    """)
    srd(a, 12, 40, 41, 0, 2048 * 1280)
    a(f"""
    s_cmp_eq_u32 s47, 5
    s_cbranch_scc1 {name}_kvload
    """)
    srd(a, 16, 42, 43, 0, 640 * 1280)
    def xdma(slot):
        a(f"s_add_u32 m0, s21, {slot}")
        a("s_nop 0")
        if not noxl:
            a(f"buffer_load_dwordx4 v{XE}, s[12:15], s20 offen lds")
            a(f"buffer_load_dwordx4 v{XO}, s[12:15], s20 offen offset:1024 lds")
        a("s_add_u32 s20, s20, 128")
    def qissue(c):
        sl = (c % NSL) * SLOT
        xdma(sl)
        a(f"s_add_u32 m0, s23, {sl}")
        a("s_nop 0")
        for q in range(0 if nowl else 4):
            a(f"buffer_load_dwordx4 v{WD+q}, s[16:19], s22 offen offset:{q*1024} lds")
        a(f"s_add_u32 s22, s22, {64*1280}")
    def loader(issue, per, pre=None):
        sched = {-1: [0, 1], 0: [2, 3], 1: [4, 5], 2: [6], 3: [7], 4: [8], 5: [9]}
        issued = 0
        for c in sched[-1]: issue(c); issued += 1
        if pre: pre(issued * per)
        for k in range(10):
            a(f"s_waitcnt vmcnt({(issued-1-k)*per})")
            a("s_barrier")
            for c in sched.get(k, []): issue(c); issued += 1
        a("s_endpgm")
    loader(qissue, (0 if noxl else 2) + (0 if nowl else 4))
    a.label(f"{name}_kvload")
    KW = 49152
    WIM = 28672
    srd(a, 16, 56, 57, 0, 25600)
    srd(a, 28, 58, 59, 0, 25600)
    a(f"""
    v_and_b32 v{T}, 63, v0
    v_lshlrev_b32 v{T}, 4, v{T}
    s_mul_i32 s7, s6, 7168
    """)
    def kvissue(c):
        xdma((c % NSL) * 8192)
        if c == 0:
            for m, sd in ((0, 16), (1, 28)):
                for h in range(2):
                    a(f"s_add_u32 m0, s7, {KW + m*WIM + h*4096}")
                    a(f"s_add_u32 s24, s7, {h*4096}")
                    for i in range(4 if h == 0 else 3):
                        a(f"buffer_load_dwordx4 v{T}, {sr(sd,4)}, s24 offen offset:{i*1024} lds")
    loader(kvissue, 2)

    a.label(f"{name}_comp")
    T = 3
    AX = 10
    AW = 14
    SX, SXX, CS0, CS1 = 20, 21, 22, 23
    XF = 24; WF = 40; ACC = 72; PK = 104; NV = 128
    a(f"""
    s_and_b32 s49, s6, 1                 ; wt
    s_lshr_b32 s50, s6, 1                ; wn
    v_and_b32 v{T+3}, 31, v0
    v_bfe_u32 v{T+4}, v0, 5, 1
    v_bfe_u32 v{T+5}, v0, 1, 3
    v_xor_b32 v{T+5}, v{T+5}, v{T+4}
    s_lshl_b32 s7, s50, 2
    v_xor_b32 v{T+5}, s7, v{T+5}
    s_lshl_b32 s7, s49, 12
    v_lshl_add_u32 v{T+6}, v{T+3}, 7, s7
    """)
    for ks in range(4):
        a(f"v_xor_b32 v{AX+ks}, {2*ks}, v{T+5}")
        a(f"v_lshl_add_u32 v{AX+ks}, v{AX+ks}, 4, v{T+6}")
    for i in range(4): a(f"v_mov_b32 v{SX+i}, 0")
    for i in range(32): a(f"v_mov_b32 v{ACC+i}, 0")
    a(f"""
    v_bfe_u32 v{T}, v0, 2, 2
    v_lshl_add_u32 v{T+1}, v{T+4}, 3, v{T}
    v_bfe_u32 v{T+2}, v0, 4, 1
    v_and_b32 v{T+5}, 3, v0
    v_lshlrev_b32 v{T+5}, 3, v{T+5}
    v_lshl_add_u32 v{T+5}, v{T+2}, 5, v{T+5}      ; (g&1)*32 + (i4&3)*8
    s_cmp_eq_u32 s47, 5
    s_cbranch_scc1 {name}_kv
    """)
    def rdl(ks, nb):
        L = [f"ds_read_b128 {vr(XF+4*ks,4)}, v{AX+ks}"]
        rs = 256 if nb == 2 else 40
        for b in range(nb):
            for t in range(2):
                L.append(f"ds_read_b64_tr_b16 {vr(WF+8*ks+4*b+2*t,2)}, v{AW+2*(ks>>1)+b} offset:{(16*(ks&1)+4*t)*rs}")
        return L
    def mm(ks, nb, fill):
        h = (len(fill) + 1) // 2 if nb == 2 else len(fill)
        parts = [fill[:h], fill[h:]]
        for b in range(nb):
            a(mfma32(ACC + 16 * b, WF + 8 * ks + 4 * b, XF + 4 * ks, ACC + 16 * b))
            for x in parts[b]: a(x)
        for i in range(4):
            a(f"v_dot2_f32_bf16 v{CS0}, v{WF+8*ks+i}, s60, v{CS0}")
            if ks < 2:
                a(f"v_dot2_f32_bf16 v{SX}, v{XF+4*ks+i}, s60, v{SX}")
                a(f"v_dot2_f32_bf16 v{SXX}, v{XF+4*ks+i}, v{XF+4*ks+i}, v{SXX}")
    def comploop(tag, nb, xslot, wstep):
        n = 1 + 2 * nb
        a("s_barrier")
        for ks in range(2):
            for x in rdl(ks, nb): a(x)
        for c in range(10):
            dl = xslot if (c + 1) % NSL else (-(NSL - 1) * xslot) & 0xffffffff
            def bump(h):
                if c == 9: return []
                L = [f"v_add_u32 v{AX+2*h+i}, {dl}, v{AX+2*h+i}" for i in range(2)]
                L += [f"v_add_u32 v{AW+2*h+b}, {dl if wstep is None else wstep}, v{AW+2*h+b}" for b in range(nb)]
                return L
            a(f"s_waitcnt lgkmcnt({n})")
            mm(0, nb, rdl(2, nb) + bump(0))
            a(f"s_waitcnt lgkmcnt({n})")
            mm(1, nb, rdl(3, nb))
            if c < 9:
                a("s_barrier")
                a(f"s_waitcnt lgkmcnt({n})")
                mm(2, nb, rdl(0, nb) + bump(1))
                a(f"s_waitcnt lgkmcnt({n})")
                mm(3, nb, rdl(1, nb))
            else:
                a(f"s_waitcnt lgkmcnt({n})")
                mm(2, nb, [])
                a(f"s_waitcnt lgkmcnt(0)")
                mm(3, nb, [])
    def stats_epi(ncs):
        a("s_nop 2")
        a(f"v_cmp_eq_u32 vcc, 1, v{T+4}")
        half_sum(a, SX, T); half_sum(a, SXX, T); half_sum(a, CS0, T)
        a(f"""
        v_and_b32 v{T}, 63, v0
        v_lshlrev_b32 v{T}, 2, v{T}
        s_lshl_b32 s7, s6, 10
        s_add_u32 s7, s7, {XCH}
        v_add_u32 v{T+1}, s7, v{T}
        ds_write_b32 v{T+1}, v{SX}
        ds_write_b32 v{T+1}, v{SXX} offset:256
        ds_write_b32 v{T+1}, v{CS0} offset:512
        s_xor_b32 s7, s7, 2048
        v_add_u32 v{T+1}, s7, v{T}
        s_xor_b32 s7, s7, 3072
        v_add_u32 v{T+2}, s7, v{T}
        s_waitcnt lgkmcnt(0)
        s_barrier
        ds_read_b32 v{XF}, v{T+1}
        ds_read_b32 v{XF+1}, v{T+1} offset:256
        ds_read_b32 v{CS1}, v{T+2} offset:512
        s_waitcnt lgkmcnt(0)
        v_add_f32 v{SX}, v{SX}, v{XF}
        v_add_f32 v{SXX}, v{SXX}, v{XF+1}
        """)
        ln_stats(a, SX, SXX, T, 61, 62)
        a(f"v_sub_f32 v{SX}, 0, v{SX}")
        a(f"v_cvt_pk_bf16_f32 v{XF}, v{SX}, v{SX}")
        a(f"v_cvt_pk_bf16_f32 v{XF+1}, v{SX}, 0")
        a(f"v_cndmask_b32_e64 v{XF}, v{XF}, 0, vcc")
        a(f"v_cndmask_b32_e64 v{XF+1}, v{XF+1}, 0, vcc")
        for b in range(ncs): split3(a, CS0 + b, WF + 2 * b, T)
        a("s_nop 1")
        for b in range(ncs): a(mfma8(ACC + 16 * b, WF + 2 * b, XF, ACC + 16 * b))

    a(f"""
    v_lshlrev_b32 v{T+1}, 8, v{T+1}
    v_add_u32 v{T+1}, v{T+1}, v{T+5}
    v_add_u32 v{T+1}, 8192, v{T+1}
    s_lshl_b32 s7, s50, 1
    s_add_u32 s7, s7, s49
    v_xor_b32 v{T}, s7, v{T}
    s_lshl_b32 s7, s50, 13
    v_lshl_add_u32 v{AW}, v{T}, 6, v{T+1}
    v_xor_b32 v{T}, 1, v{T}
    v_lshl_add_u32 v{AW+1}, v{T}, 6, v{T+1}
    s_xor_b32 s20, s7, 8192
    v_add_u32 v{AW+2}, s20, v{AW}
    v_add_u32 v{AW+3}, s20, v{AW+1}
    v_add_u32 v{AW}, s7, v{AW}
    v_add_u32 v{AW+1}, s7, v{AW+1}
    s_waitcnt lgkmcnt(0)
    """)
    srd(a, 8, 4, 5, 0, WS_END)
    if stamp: stamp_mid(a, 0)
    comploop(name + "_q", 2, SLOT, None)
    if stamp: stamp_mid(a, 1)
    stats_epi(2)
    a(f"""
    v_mul_f32 v{SXX}, {hex(f2u(QSCALE))}, v{SXX}
    v_lshlrev_b32 v{T}, 3, v{T+3}
    v_lshl_add_u32 v{T}, v{T+4}, 14, v{T}
    s_lshl_b32 s7, s47, 1
    s_add_u32 s7, s7, s50
    s_lshl_b32 s7, s7, 18
    s_lshl_b32 s20, s48, 1
    s_add_u32 s20, s20, s49
    s_lshl_b32 s20, s20, 8
    s_add_u32 s20, s20, s7
    s_lshl_b32 s7, s49, 17
    s_add_u32 s21, s20, s7
    s_xor_b32 s7, s7, 0x20000
    s_add_u32 s22, s20, s7
    s_nop 3
    """)
    for b in range(2):
        for rq in range(4):
            r = ACC + 16 * b + 4 * rq
            a(f"v_pk_mul_f32 {vr(r,2)}, {vr(r,2)}, {vr(SX,2)} op_sel:[0,1] op_sel_hi:[1,1]")
            a(f"v_pk_mul_f32 {vr(r+2,2)}, {vr(r+2,2)}, {vr(SX,2)} op_sel:[0,1] op_sel_hi:[1,1]")
            p = PK + 8 * b + 2 * rq
            a(f"v_cvt_pk_bf16_f32 v{p}, v{r}, v{r+1}")
            a(f"v_cvt_pk_bf16_f32 v{p+1}, v{r+2}, v{r+3}")
            a(f"buffer_store_dwordx2 {vr(p,2)}, v{T}, s[8:11], s{21+b} offen")
            a(f"s_add_u32 s{21+b}, s{21+b}, 32768")
    if stamp: stamp_end(a, 8, 63, 2, nw=8)
    a("s_endpgm")

    a.label(f"{name}_kv")
    a(f"""
    v_mul_u32_u24 v{T+1}, 40, v{T+1}
    v_add_u32 v{T+1}, v{T+1}, v{T+5}
    s_mul_i32 s7, s50, {WIM + 1280}
    s_add_u32 s7, s7, {KW}
    v_add_u32 v{AW}, s7, v{T+1}
    s_mul_i32 s7, s50, {WIM - 1280}
    s_add_u32 s7, s7, {KW + 1280}
    v_add_u32 v{AW+2}, s7, v{T+1}
    s_waitcnt lgkmcnt(0)
    """)
    srd(a, 8, 4, 5, 0, WS_END)
    comploop(name + "_k", 1, 8192, 2560)
    stats_epi(1)
    a(f"""
    s_lshl_b32 s21, s48, 1
    s_add_u32 s21, s21, s49
    s_mul_i32 s20, s21, {TILE_B}
    s_add_u32 s20, s20, {KV_OFF}
    s_nop 7
    s_nop 1
    """)
    for i in range(12): a(f"v_mul_f32 v{ACC+i}, v{ACC+i}, v{SXX}")
    for i in range(6): a(f"v_cvt_pk_bf16_f32 v{PK+i}, v{ACC+2*i}, v{ACC+2*i+1}")
    a(f"""
    s_cmp_eq_u32 s50, 1
    s_cbranch_scc1 {name}_v
    v_and_b32 v{T}, 63, v0
    v_lshlrev_b32 v{T}, 4, v{T}
    buffer_store_dwordx4 {vr(PK,4)}, v{T}, s[8:11], s20 offen
    v_cndmask_b32_e64 v{PK+4}, v{PK+4}, 0, vcc
    v_cndmask_b32_e64 v{PK+5}, v{PK+5}, 0, vcc
    v_lshlrev_b32 v{T+1}, 3, v{T+3}
    s_mov_b32 exec_hi, 0
    buffer_store_dwordx2 {vr(PK+4,2)}, v{T+1}, s[8:11], s20 offen offset:{K1_OFF_T}
    s_mov_b32 exec_hi, -1
    v_dot2_f32_bf16 v{SX}, v{PK}, v{PK}, 0
    """)
    for i in range(1, 6): a(f"v_dot2_f32_bf16 v{SX}, v{PK+i}, v{PK+i}, v{SX}")
    a("s_nop 2")
    half_sum(a, SX, T)
    for r in (8, 4, 2, 1):
        a("s_nop 1")
        a(f"v_max_f32_dpp v{SX}, v{SX}, v{SX} row_ror:{r} row_mask:0xf bank_mask:0xf")
    a(f"""
    v_mov_b32 v{T}, v{SX}
    s_nop 1
    v_permlane16_swap_b32 v{SX}, v{T}
    s_nop 1
    v_max_f32 v{SX}, v{SX}, v{T}
    s_lshl_b32 s21, s21, 2
    s_add_u32 s21, s21, {KM_OFF}
    v_mov_b32 v{T}, 0
    s_mov_b64 exec, 1
    buffer_store_dword v{SX}, v{T}, s[8:11], s21 offen
    """)
    if stamp:
        a("s_mov_b32 s94, s90"); a("s_mov_b32 s96, s90")
        stamp_end(a, 8, 63, 3, nw=8)
    a("s_endpgm")
    a.label(f"{name}_v")
    a(f"""
    s_lshl_b32 s7, s49, 12
    s_add_u32 s7, s7, {KW + 2*WIM}
    v_lshlrev_b32 v{T}, 6, v{T+3}
    v_lshl_add_u32 v{T}, v{T+4}, 3, v{T}
    v_add_u32 v{T}, s7, v{T}
    ds_write_b64 v{T}, {vr(PK,2)}
    ds_write_b64 v{T}, {vr(PK+2,2)} offset:16
    ds_write_b64 v{T}, {vr(PK+4,2)} offset:32
    v_bfe_u32 v{T}, v0, 2, 2
    v_lshl_add_u32 v{T}, v{T+4}, 2, v{T}
    v_lshlrev_b32 v{T}, 6, v{T}
    v_add_u32 v{T}, v{T}, v{T+5}
    v_add_u32 v{T}, s7, v{T}
    s_waitcnt lgkmcnt(0)
    """)
    for t in range(2):
        for u in range(2):
            a(f"ds_read_b64_tr_b16 {vr(PK+4*t+2*u,2)}, v{T} offset:{(16*t+8*u)*64}")
    a(f"""
    v_cmp_eq_u32 vcc, 20, v{T+3}
    v_mov_b32 v{T+1}, s60
    s_nop 0
    v_cndmask_b32_e64 v{T+1}, 0, v{T+1}, vcc
    v_cmp_gt_u32 vcc, 20, v{T+3}
    v_mul_u32_u24 v{T+2}, {V_PLANE}, v{T+4}
    v_lshl_add_u32 v{T+2}, v{T+3}, 4, v{T+2}
    s_waitcnt lgkmcnt(0)
    """)
    for i in range(8): a(f"v_cndmask_b32_e64 v{PK+i}, v{T+1}, v{PK+i}, vcc")
    a(f"""
    s_mov_b32 exec_lo, 0x0fffffff
    s_mov_b32 exec_hi, 0x0fffffff
    buffer_store_dwordx4 {vr(PK,4)}, v{T+2}, s[8:11], s20 offen offset:{V_OFF_T}
    buffer_store_dwordx4 {vr(PK+4,4)}, v{T+2}, s[8:11], s20 offen offset:{V_OFF_T+2*V_PLANE}
    s_endpgm
    """)

    a.label(f"{name}_ln")
    a(f"""
    s_cmp_ge_u32 s6, 4
    s_cbranch_scc1 {name}_pf
    s_lshl_b32 s7, s48, 1
    s_add_u32 s7, s7, s47
    s_sub_u32 s7, s7, 6
    s_lshl_b32 s7, s7, 2
    s_add_u32 s7, s7, s6                 ; plane
    s_mul_i32 s20, s7, 10240
    s_add_u32 s21, s20, {HF_OFF}
    s_mul_i32 s22, s6, 16384
    s_waitcnt lgkmcnt(0)
    """)
    srd(a, 12, 40, 41, 0, 2048 * 1280)
    srd(a, 8, 4, 5, 0, WS_END)
    def body(a, X, t):
        A0 = 64; U = 72
        for p in range(2):
            for i in range(4): a(f"v_mov_b32 v{A0+i}, 0")
            for i in range(40):
                if p == 0 and i % 4 == 0:
                    a(f"s_waitcnt vmcnt({9 - i//4})")
                a(f"v_dot2_f32_bf16 v{A0+(i&1)}, v{X+i}, s60, v{A0+(i&1)}")
                a(f"v_dot2_f32_bf16 v{A0+2+(i&1)}, v{X+i}, v{X+i}, v{A0+2+(i&1)}")
            a("s_nop 2")
            a(f"v_add_f32 v{A0}, v{A0}, v{A0+1}")
            a(f"v_add_f32 v{A0+2}, v{A0+2}, v{A0+3}")
            for dpp in ("quad_perm:[1,0,3,2]", "quad_perm:[2,3,0,1]", "row_half_mirror"):
                a("s_nop 0")
                a(f"v_add_f32_dpp v{A0}, v{A0}, v{A0} {dpp} row_mask:0xf bank_mask:0xf")
                a(f"v_add_f32_dpp v{A0+2}, v{A0+2}, v{A0+2} {dpp} row_mask:0xf bank_mask:0xf")
            ln_stats(a, A0, A0 + 2, A0 + 1, 61, 62)
            a(f"v_mul_f32 v{A0}, v{A0}, v{A0+2}")
            for i in range(40):
                u = U + 2 * (i & 3)
                a(f"v_lshlrev_b32 v{u}, 16, v{X+i}")
                a(f"v_and_b32 v{u+1}, 0xffff0000, v{X+i}")
                a(f"v_pk_fma_f32 {vr(u,2)}, {vr(u,2)}, {vr(A0+2,2)}, {vr(A0,2)} op_sel_hi:[1,0,0] neg_lo:[0,0,1] neg_hi:[0,0,1]")
                a(f"v_cvt_pk_bf16_f32 v{X+i}, v{u}, v{u+1}")
    transpose_task(a, 8, None, 12, 20, 8, 21, 22, body=body)
    if stamp:
        a("s_mov_b32 s94, s90"); a("s_mov_b32 s96, s90")
        stamp_end(a, 8, 63, 3, nw=8)
    a("s_endpgm")
    a.label(f"{name}_pf")
    a(f"""
    s_waitcnt lgkmcnt(0)
    s_cmp_lg_u32 s2, 48
    s_cbranch_scc1 {name}_nz
    s_cmp_lg_u32 s6, 4
    s_cbranch_scc1 {name}_nz
    """)
    srd(a, 8, 4, 5, 0, WS_END)
    a(f"""
    v_and_b32 v1, 63, v0
    v_lshlrev_b32 v1, 4, v1
    v_mov_b32 v4, 0
    v_mov_b32 v5, 0
    v_mov_b32 v6, 0
    v_mov_b32 v7, 0
    s_mov_b32 s20, {FL_OFF}
    buffer_store_dwordx4 v[4:7], v1, s[8:11], s20 offen
    """)
    a.label(f"{name}_nz")
    if prefetch: prefetch(a)
    a.label(f"{name}_end")
    a("s_endpgm")
    return finish(a, name, NV, (256, 512, LDS_K1))
```

```python
from asmlib import *
from layout import *
from gemm import *
import attn
from attn import kd, CHUNK
from kernels import finish, stamp_begin, stamp_mid, stamp_end, GS

AFLAG = 4 * CHUNK
GFLAG = AFLAG + 1024
GBASE = GFLAG + 1024
LDS_K2 = GBASE + 4 * REGION

def k2_kernel(name="k2_kernel", stamp=False, NB=3, with_b1=True, with_b2=True, gprio=0, eprio=2, aprio=0, sprio=0, nb2=14, akw={}, gkw={}):
    a = Asm()
    a.label(name)
    a(f"""
    s_cmp_ge_u32 s2, 256
    s_cbranch_scc1 {name}_end
    s_load_dwordx2 s[4:5], s[0:1], 96
    s_load_dwordx4 s[40:43], s[0:1], 48
    s_load_dwordx2 s[44:45], s[0:1], 32
    s_load_dwordx2 s[56:57], s[0:1], 64
    s_load_dwordx2 s[58:59], s[0:1], 0
    v_lshrrev_b32 v1, 6, v0
    s_nop 0
    v_readfirstlane_b32 s6, v1
    """)
    if stamp: stamp_begin(a)
    a(f"""
    s_nop 1
    s_cmp_ge_u32 s6, 4
    s_cbranch_scc1 {name}_g
    """)
    S = dict(attn.SREG)
    if aprio: a(f"s_setprio {aprio}")
    attn.attn_flaginit(a, S)
    a("s_waitcnt lgkmcnt(0)")
    a("s_barrier")
    attn.attn_prologue(a, S, "flag", name)
    a("s_mov_b64 s[26:27], vcc")
    attn.attn_firstsync(a, S, name)
    if stamp: stamp_mid(a, 0)
    attn.attn_main(a, S, "flag", name, **akw)
    if stamp: stamp_mid(a, 1)
    attn.attn_epilogue(a, S)
    if stamp: stamp_end(a, 8, 6, 0, nw=8)
    a("s_endpgm")
    attn.attn_spins(a, S, name)
    a.label(f"{name}_g")
    S = dict(GS); g = G(NB=NB)
    VFA, VPA, VONE, VPOLL = 4, 5, 6, 7
    a(f"""
    s_mov_b32 s63, s6
    s_sub_u32 s6, s6, 4
    s_and_b32 s46, s2, 7
    s_lshr_b32 s47, s2, 3
    s_and_b32 s48, s46, 1
    s_lshl_b32 s48, s48, 2
    s_and_b32 s49, s47, 3
    s_add_u32 s48, s48, s49          ; db
    s_lshr_b32 s49, s46, 1
    s_lshr_b32 s50, s47, 2
    s_lshl_b32 s60, s46, 2
    s_lshr_b32 s64, s47, 3
    s_add_u32 s60, s60, s64          ; sb (B2)
    s_and_b32 s64, s47, 7            ; db (B2)
    s_mul_i32 s49, s49, 7
    s_add_u32 s49, s49, s50          ; fb
    s_mul_i32 s52, s48, 1280         ; db*80*16
    s_mov_b32 s61, 1
    s_lshl_b32 s7, s6, 8
    s_add_u32 s7, s7, {GFLAG}
    v_and_b32 v{VFA}, 63, v0
    v_lshl_add_u32 v{VFA}, v{VFA}, 2, s7
    v_and_b32 v{VPA}, 3, v0
    v_mul_u32_u24 v{VPA}, 260, v{VPA}
    v_add_u32 v{VPA}, {GFLAG}, v{VPA}
    v_mov_b32 v{VONE}, 0
    ds_write_b32 v{VFA}, v{VONE}
    v_mov_b32 v{VONE}, 1
    s_waitcnt lgkmcnt(0)
    s_barrier
    """)
    if sprio: a(f"s_setprio {sprio}")
    nsync = [0]
    def sync4():
        i = nsync[0]; nsync[0] += 1
        a(f"ds_add_u32 v{VFA}, v{VONE}")
        a.label(f"{name}_sy{i}")
        a(f"""
        ds_read_b32 v{VPOLL}, v{VPA}
        s_waitcnt lgkmcnt(0)
        v_cmp_gt_u32 vcc, s61, v{VPOLL}
        s_nop 4
        s_cbranch_vccz {name}_sz{i}
        s_sleep 2
        s_branch {name}_sy{i}
        """)
        a.label(f"{name}_sz{i}")
        a("s_add_u32 s61, s61, 1")
    srd(a, 8, 4, 5, 0, WS_END)
    setup_lane(a, g, S, GBASE)
    setup_F(a, g, g.vF, 10240)
    a(f"""
    s_cmp_eq_u32 s50, 7
    s_cbranch_scc1 {name}_wo
    s_cmp_ge_u32 s49, 27
    s_cbranch_scc1 {name}_nob1
    """)
    if with_b1:
        srd(a, 12, 40, 41, 0, 2048 * 3456)
        srd(a, 16, 4, 5, HF_OFF, HF_SZ)
        srd(a, 20, 42, 43, 0, 1728 * 2)
        P = dict(mode="TF", srdT=12, srdF=16, strideT=3456, planeF=10240, W=4, TisA=True)
        setup_T(a, g, 3456)
        a("s_lshl_b32 s51, s49, 7")
        init_offsets(a, g, S, P, 51, 52)
        prologue_loads(a, g, S, P)
        a(f"""
        s_lshl_b32 s53, s6, 5
        s_add_u32 s53, s53, s51
        v_lshlrev_b32 v1, 3, v{g.tmp+2}
        buffer_load_dwordx2 v[2:3], v1, s[20:23], s53 offen
        s_lshl_b32 s54, s49, 3
        s_lshl_b32 s55, s6, 1
        s_add_u32 s54, s54, s55
        s_mul_i32 s54, s54, 10240
        s_add_u32 s54, s54, s52
        s_add_u32 s54, s54, {UF_OFF}
        """)
        zero_acc(a, g)
        a(f"s_setprio {gprio}")
        main_loop(a, g, S, P, name + "_b1", 16, **gkw)
        a(f"s_setprio {eprio}")
        if stamp: stamp_mid(a, 0)
        reduce4(a, g, S, GBASE, sync4)
        b1_epilogue(a, g, S, 8, 54, 2, store_mod=" sc1" if with_b2 else "")
        if with_b2:
            a("s_waitcnt vmcnt(0)")
            sync4()
            a(f"""
            s_cmp_lg_u32 s6, 0
            s_cbranch_scc1 {name}_b2
            s_lshl_b32 s7, s48, 7
            s_add_u32 s7, s7, {FL_OFF}
            v_mov_b32 v1, s7
            s_mov_b64 exec, 1
            global_atomic_add v1, v{VONE}, s[4:5] sc1
            s_mov_b64 exec, -1
            """)
        a(f"s_branch {name}_b2")
    else:
        a(f"s_branch {name}_b2")
    a.label(f"{name}_wo")
    a(f"""
    s_setprio {eprio}
    s_and_b32 s47, s47, 3
    s_lshl_b32 s47, s47, 3
    s_add_u32 s47, s47, s46
    s_lshl_b32 s47, s47, 2
    s_add_u32 s47, s47, s6           ; task
    s_cmp_ge_u32 s47, 80
    s_cbranch_scc1 {name}_b2
    s_mul_i32 s51, s47, 10240
    s_add_u32 s53, s51, {WOF_OFF}
    """)
    srd(a, 12, 44, 45, 0, 640 * 1280)
    transpose_task(a, 8, S, 12, 51, 8, 53, S["lb"], store_mod=" sc1")
    a(f"""
    s_waitcnt vmcnt(0)
    v_and_b32 v1, 63, v0
    v_lshlrev_b32 v1, 7, v1
    v_add_u32 v1, {FL_OFF}, v1
    s_mov_b64 exec, 0xff
    global_atomic_add v1, v{VONE}, s[4:5] sc1
    s_mov_b64 exec, -1
    s_branch {name}_b2
    """)
    a.label(f"{name}_nob1")
    a(f"s_setprio {eprio}")
    a.label(f"{name}_b2")
    if with_b2:
        srd(a, 12, 56, 57, 0, 1728 * 4096)
        srd(a, 16, 4, 5, UF_OFF, UF_SZ)
        P2 = dict(mode="TF", srdT=12, srdF=16, strideT=4096, planeF=10240, W=4, TisA=False, fmod=" sc1")
        a(f"v_bfe_u32 v{g.tmp+2}, v0, 4, 2")
        setup_T(a, g, 4096)
        a("s_lshl_b32 s51, s60, 7")
        a("s_mov_b32 s48, s64")
        a("s_mul_i32 s52, s48, 1280")
        init_offsets(a, g, S, P2, 51, 52)
        srd(a, 20, 58, 59, 0, 2048 * 1280)
        a(f"""
        s_lshl_b32 s53, s60, 2
        s_add_u32 s53, s53, s6
        s_mul_i32 s53, s53, {16*1280}
        s_mul_i32 s54, s48, 160
        s_add_u32 s53, s53, s54
        v_and_b32 v1, 15, v0
        v_mul_u32_u24 v1, 1280, v1
        v_lshl_add_u32 v1, v{g.tmp+2}, 3, v1
        """)
        for j in range(5):
            a(f"buffer_load_dwordx2 {vr(g.TB+2*j,2)}, v1, s[20:23], s53 offen offset:{j*32}")
        for b in range(NB - 1): issue(a, g, S, b, P2, part="T")
        for i in range(20, 80): a(f"v_mov_b32 v{g.ACC+i}, 0")
        a(f"s_waitcnt vmcnt({4*(NB-1)})")
        for i in range(10):
            a(f"v_lshlrev_b32 v{g.ACC+2*i}, 16, v{g.TB+i}")
            a(f"v_and_b32 v{g.ACC+2*i+1}, 0xffff0000, v{g.TB+i}")
        a(f"""
        s_cmp_lg_u32 s6, 0
        s_cbranch_scc1 {name}_go
        s_lshl_b32 s7, s48, 7
        s_add_u32 s7, s7, {FL_OFF}
        v_mov_b32 v1, s7
        s_mov_b32 s62, 0
        """)
        a.label(f"{name}_poll")
        a(f"""
        global_load_dword v2, v1, s[4:5] sc1
        s_waitcnt vmcnt(0)
        v_readfirstlane_b32 s7, v2
        s_add_u32 s62, s62, 1
        s_cmp_ge_u32 s62, 0x100000
        s_cbranch_scc1 {name}_go
        s_cmp_ge_u32 s7, {27 + 80}
        s_cbranch_scc1 {name}_go
        s_sleep 8
        s_branch {name}_poll
        """)
        a.label(f"{name}_go")
        sync4()
        if stamp: stamp_mid(a, 1)
        for b in range(NB - 1): issue(a, g, S, b, P2, part="F")
        a(f"s_setprio {gprio}")
        main_loop(a, g, S, P2, name + "_b2l", nb2, midentry=True, **gkw)
        a(f"s_setprio {eprio}")
        reduce4(a, g, S, GBASE, sync4)
        a(f"""
        s_lshl_b32 s7, s2, 2
        s_add_u32 s7, s7, s6
        s_mul_i32 s7, s7, 5120
        s_add_u32 s7, s7, {Y_OFF}
        s_add_u32 s53, s7, 4096
        """)
        for j in range(4):
            a(f"buffer_store_dwordx4 {vr(g.ACC+4*j,4)}, v{g.tmp}, s[8:11], s7 offen offset:{j*1024}")
        a(f"buffer_store_dwordx4 {vr(g.ACC+16,4)}, v{g.tmp}, s[8:11], s53 offen")
        a(f"""
        s_lshr_b32 s7, s2, 3
        s_lshl_b32 s7, s7, 2
        s_add_u32 s7, s7, s6
        s_mul_i32 s7, s7, 6400
        s_add_u32 s7, s7, {WOF_OFF}
        v_and_b32 v1, 63, v0
        v_min_u32 v1, 49, v1
        v_lshlrev_b32 v1, 7, v1
        buffer_load_dword v2, v1, s[8:11], s7 offen
        """)
    elif stamp:
        stamp_mid(a, 1)
    if stamp: stamp_end(a, 8, 63, 0, nw=8)
    a.label(f"{name}_end")
    a("s_endpgm")
    return finish(a, name, max(g.nv, attn.NV_ATT), (256, 512, LDS_K2))
```

```python
from asmlib import *
from layout import *
from gemm import srd, mfma16, pack_store
from kernels import finish, stamp_begin, stamp_mid, stamp_end

class G3:
    ACC = 8
    tmp = 64
OF_ = 80
WB = [160, 180, 200, 220]

def k3_kernel(name="k3_kernel", stamp=False, per=4):
    a = Asm(); g = G3()
    a.label(name)
    a(f"""
    s_cmp_ge_u32 s2, 256
    s_cbranch_scc1 {name}_end
    s_load_dwordx2 s[4:5], s[0:1], 96
    s_load_dwordx4 s[40:43], s[0:1], 72
    v_lshrrev_b32 v1, 6, v0
    s_and_b32 s46, s2, 7
    v_readfirstlane_b32 s6, v1
    """)
    if stamp: stamp_begin(a)
    a(f"""
    s_lshr_b32 s47, s2, 3
    s_and_b32 s48, s47, 7            ; db
    s_lshl_b32 s49, s46, 2
    s_lshr_b32 s50, s47, 3
    s_add_u32 s49, s49, s50          ; sb
    v_and_b32 v2, 15, v0
    v_bfe_u32 v3, v0, 4, 2
    v_lshlrev_b32 v4, 4, v2
    v_lshl_add_u32 v5, v3, 15, v4            ; o voffset
    v_mul_u32_u24 v6, 10240, v3
    v_add_u32 v6, v6, v4
    v_and_b32 v7, 63, v0
    v_lshlrev_b32 v7, 4, v7                  ; lane*16
    s_lshl_b32 s51, s49, 2
    s_add_u32 s51, s51, s6
    s_lshl_b32 s20, s51, 8
    s_add_u32 s20, s20, {OF_OFF}             ; o soffset
    s_mul_i32 s21, s48, 1280
    s_mul_i32 s7, s6, 40960
    s_add_u32 s21, s21, s7
    s_add_u32 s21, s21, {WOF_OFF}
    s_mul_i32 s22, s6, 5120
    s_lshl_b32 s7, s2, 2
    s_add_u32 s7, s7, s6
    s_mul_i32 s23, s7, 5120
    s_add_u32 s23, s23, {Y_OFF}
    s_add_u32 s24, s23, 4096
    s_lshl_b32 s25, s51, 5
    v_lshlrev_b32 v2, 1, v2
    s_mul_i32 s53, s51, {16*1280}
    s_mul_i32 s54, s48, 160
    s_add_u32 s53, s53, s54
    s_waitcnt lgkmcnt(0)
    """)
    srd(a, 8, 4, 5, 0, WS_END)
    order = []
    def op(tag):
        kind, i, j = tag
        if kind == "W":
            a(f"s_add_u32 m0, s22, {i*20480 + j*768}")
            a("s_nop 0")
            a(f"buffer_load_dwordx4 v6, s[8:11], s21 offen offset:{j*256} lds")
            if j == 4: a(f"s_add_u32 s21, s21, {4*40960}")
        elif kind == "O":
            a(f"buffer_load_dwordx4 {vr(OF_+4*i,4)}, v5, s[8:11], s20 offen")
            a(f"s_add_u32 s20, s20, {4*32768}")
        elif kind == "Y":
            if i < 4: a(f"buffer_load_dwordx4 {vr(g.ACC+4*i,4)}, v7, s[8:11], s23 offen offset:{i*1024}")
            elif i == 4: a(f"buffer_load_dwordx4 {vr(g.ACC+16,4)}, v7, s[8:11], s24 offen")
            else: a(f"buffer_load_ushort v1, v2, s[12:15], s25 offen")
        order.append(tag)
    W = lambda r: [("W", r, j) for j in range(5)]
    O = lambda r: [("O", 4 * r + k, 0) for k in range(4)]
    done = [-1]
    def wait(tag):
        pos = order.index(tag)
        if pos > done[0]:
            a(f"s_waitcnt vmcnt({len(order) - 1 - pos})")
            done[0] = pos
    for t in W(0): op(t)
    srd(a, 12, 40, 41, 0, 4096)
    for t in [("Y", i, 0) for i in range(6)] + O(0) + W(1): op(t)
    rest = O(1) + W(2) + O(2) + W(3) + O(3) + W(4) + O(4)
    srd(a, 60, 42, 43, 0, 2048 * 1280)
    if stamp: stamp_mid(a, 0)
    def rd1(s, j):
        off = s * 5120 + j * 1024
        return f"ds_read_b128 {vr(WB[s&3]+4*j,4)}, v{7 if off < 65536 else 4} offset:{off & 65535}"
    a("v_add_u32 v4, 0x10000, v7")
    wait(("W", 0, 4)); a("s_barrier")
    for s in range(3):
        for j in range(5): a(rd1(s, j))
    wait(("Y", 5, 0))
    a("v_lshlrev_b32 v1, 16, v1")
    for i in range(20): a(f"v_add_f32 v{g.ACC+i}, v{g.ACC+i}, v1")
    for s in range(20):
        if s % 4 == 1 and s < 17:
            wait(("W", s // 4 + 1, 4)); a("s_barrier")
        wait(("O", s, 0))
        a(f"s_waitcnt lgkmcnt({5*min(2, 19-s)})")
        for j in range(5):
            a(mfma16(g.ACC + 4 * j, WB[s & 3] + 4 * j, OF_ + 4 * s, g.ACC + 4 * j))
            if s + 3 < 20: a(rd1(s + 3, j))
        for _ in range(per):
            if rest: op(rest.pop(0))
    assert not rest
    if stamp: stamp_mid(a, 1)
    a("s_nop 4")
    pack_store(a, g, g.ACC, 60, 53, PLANE=0, rowstride=1280, mode="R")
    if stamp: stamp_end(a, 8, 6, 1)
    a.label(f"{name}_end")
    a("s_endpgm")
    return finish(a, name, 240, (256, 256, 102400))
```

```python
from asmlib import *
from layout import *
from gemm import *
from attn import kd

def stamp_begin(a):
    a("s_memtime s[90:91]")
    a("s_memrealtime s[92:93]")
def stamp_mid(a, i):
    a(f"s_memtime s[{94+2*i}:{95+2*i}]")
def stamp_end(a, srdw, wave_s, slot, nw=4):
    a(f"""
    s_mov_b64 exec, -1
    s_waitcnt vmcnt(0)
    s_memtime s[98:99]
    s_memrealtime s[100:101]
    s_waitcnt lgkmcnt(0)
    s_sub_u32 s94, s94, s90
    s_sub_u32 s96, s96, s90
    s_sub_u32 s98, s98, s90
    s_sub_u32 s100, s100, s92
    v_mov_b32 v8, s94
    v_mov_b32 v9, s96
    v_mov_b32 v10, s98
    v_mov_b32 v11, s100
    s_mul_i32 s94, s2, {nw}
    s_add_u32 s94, s94, s{wave_s}
    s_lshl_b32 s94, s94, 5
    s_add_u32 s94, s94, {WS_END - 65536*(slot+1)}
    v_mov_b32 v12, 0
    v_mov_b32 v14, s92
    s_getreg_b32 s95, hwreg(HW_REG_XCC_ID)
    v_mov_b32 v15, s95
    s_mov_b64 exec, 1
    buffer_store_dwordx4 v[8:11], v12, {sr(srdw,4)}, s94 offen
    buffer_store_dwordx2 v[14:15], v12, {sr(srdw,4)}, s94 offen offset:16
    """)

GS = dict(w=6, t0=7, t1=3, lb=28, so4=32, sf=36, cnt=37)

def finish(a, name, nv, geom):
    errs = check_hazards(a.lines, name)
    for e in errs: print("HAZARD", e)
    return name, a.text(), kd(name, nv), geom

def b1_kernel(name="b1_kernel", stamp=False, NB=3):
    a = Asm(); S = GS; g = G(NB=NB)
    a.label(name)
    a(f"""
    s_cmp_ge_u32 s2, 256
    s_cbranch_scc1 {name}_end
    s_load_dwordx2 s[4:5], s[0:1], 96
    s_load_dwordx4 s[40:43], s[0:1], 48
    s_load_dwordx2 s[44:45], s[0:1], 32
    v_lshrrev_b32 v1, 6, v0
    s_nop 0
    v_readfirstlane_b32 s6, v1
    """)
    if stamp: stamp_begin(a)
    a(f"""
    s_and_b32 s46, s2, 7
    s_lshr_b32 s47, s2, 3
    s_and_b32 s48, s46, 1
    s_lshl_b32 s48, s48, 2
    s_and_b32 s49, s47, 3
    s_add_u32 s48, s48, s49          ; db
    s_lshr_b32 s49, s46, 1
    s_mul_i32 s49, s49, 7
    s_lshr_b32 s50, s47, 2
    s_add_u32 s49, s49, s50          ; fb
    s_waitcnt lgkmcnt(0)
    """)
    srd(a, 8, 4, 5, 0, WS_END)
    a(f"""
    s_cmp_eq_u32 s50, 7
    s_cbranch_scc1 {name}_wo
    s_cmp_ge_u32 s49, 27
    s_cbranch_scc1 {name}_end
    """)
    srd(a, 12, 40, 41, 0, 2048 * 3456)
    srd(a, 16, 4, 5, HF_OFF, HF_SZ)
    srd(a, 20, 42, 43, 0, 1728 * 2)
    P = dict(mode="TF", srdT=12, srdF=16, strideT=3456, planeF=10240, W=4, TisA=True)
    setup_lane(a, g, S, 0)
    setup_T(a, g, 3456)
    setup_F(a, g, g.vF, 10240)
    a("s_lshl_b32 s51, s49, 7")
    a("s_mul_i32 s52, s48, 1280")
    init_offsets(a, g, S, P, 51, 52)
    prologue_loads(a, g, S, P)
    a(f"s_lshl_b32 s53, s6, 5")
    a(f"s_add_u32 s53, s53, s51")
    a(f"v_lshlrev_b32 v1, 3, v{g.tmp+2}")
    a(f"buffer_load_dwordx2 v[2:3], v1, s[20:23], s53 offen")
    a(f"s_lshl_b32 s54, s49, 3")
    a(f"s_lshl_b32 s55, s6, 1")
    a(f"s_add_u32 s54, s54, s55")
    a(f"s_mul_i32 s54, s54, 10240")
    a(f"s_add_u32 s54, s54, s52")
    a(f"s_add_u32 s54, s54, {UF_OFF}")
    zero_acc(a, g)
    if stamp: stamp_mid(a, 0)
    main_loop(a, g, S, P, name, 16)
    if stamp: stamp_mid(a, 1)
    reduce4(a, g, S, 0, lambda: a("s_barrier"))
    b1_epilogue(a, g, S, 8, 54, 2)
    if stamp: stamp_end(a, 8, 6, 0)
    a("s_endpgm")
    a.label(f"{name}_wo")
    a(f"""
    s_and_b32 s47, s47, 3
    s_lshl_b32 s47, s47, 3
    s_add_u32 s47, s47, s46
    s_lshl_b32 s47, s47, 2
    s_add_u32 s47, s47, s6           ; task
    s_cmp_ge_u32 s47, 80
    s_cbranch_scc1 {name}_end
    s_mul_i32 s51, s47, 10240
    s_add_u32 s52, s51, {WOF_OFF}
    s_mul_i32 s53, s6, {REGION}
    """)
    srd(a, 12, 44, 45, 0, 640 * 1280)
    transpose_task(a, 8, S, 12, 51, 8, 52, 53)
    a.label(f"{name}_end")
    a("s_endpgm")
    return finish(a, name, g.nv, (256, 256, 4 * REGION))

def k3_kernel(name="k3_kernel", stamp=False, NB=3, with_b2=True):
    a = Asm(); S = GS; g = G(NB=NB, ff=True)
    XR = g.nv; nv = XR + 12
    a.label(name)
    a(f"""
    s_cmp_ge_u32 s2, 256
    s_cbranch_scc1 {name}_end
    s_load_dwordx2 s[4:5], s[0:1], 96
    s_load_dwordx4 s[40:43], s[0:1], 64
    s_load_dwordx2 s[44:45], s[0:1], 0
    s_load_dwordx2 s[56:57], s[0:1], 80
    v_lshrrev_b32 v1, 6, v0
    s_nop 0
    v_readfirstlane_b32 s6, v1
    """)
    if stamp: stamp_begin(a)
    a(f"""
    s_and_b32 s46, s2, 7
    s_lshr_b32 s47, s2, 3
    s_and_b32 s48, s47, 7            ; db
    s_lshl_b32 s49, s46, 2
    s_lshr_b32 s50, s47, 3
    s_add_u32 s49, s49, s50          ; sb
    s_waitcnt lgkmcnt(0)
    """)
    srd(a, 8, 4, 5, 0, WS_END)
    srd(a, 12, 4, 5, OF_OFF, OF_SZ)
    srd(a, 16, 4, 5, WOF_OFF, WOF_SZ)
    setup_lane(a, g, S, 0)
    P1 = dict(mode="FF", srdT=12, srdF=16, plane2=32768, planeF=10240, W=4, TisA=False)
    setup_F(a, g, g.vT, 32768)
    setup_F(a, g, g.vF, 10240)
    a("s_lshl_b32 s51, s49, 10")
    a("s_mul_i32 s52, s48, 1280")
    init_offsets(a, g, S, P1, 51, 52)
    if not with_b2:
        YR = g.ACC
        a(f"""
        s_lshl_b32 s7, s2, 2
        s_add_u32 s7, s7, s6
        s_mul_i32 s7, s7, 5120
        s_add_u32 s7, s7, {Y_OFF}
        s_add_u32 s58, s7, 4096
        v_lshlrev_b32 v3, 4, v{g.tmp}
        """)
        for j in range(4):
            a(f"buffer_load_dwordx4 {vr(YR+4*j,4)}, v3, s[8:11], s7 offen offset:{j*1024}")
        a(f"buffer_load_dwordx4 {vr(YR+16,4)}, v3, s[8:11], s58 offen")
    prologue_loads(a, g, S, P1)
    srd(a, 20, 44, 45, 0, 2048 * 1280)
    srd(a, 24, 42, 43, 0, 4096)
    srd(a, 60, 56, 57, 0, 2048 * 1280)
    a(f"""
    s_lshl_b32 s53, s49, 2
    s_add_u32 s53, s53, s6
    s_lshl_b32 s55, s53, 5               ; (s0+16w)*2
    s_mul_i32 s53, s53, {16*1280}
    s_mul_i32 s54, s48, 160
    s_add_u32 s53, s53, s54
    v_mul_u32_u24 v1, 1280, v{g.tmp+1}
    v_lshl_add_u32 v1, v{g.tmp+2}, 3, v1
    v_lshlrev_b32 v2, 1, v{g.tmp+1}
    """)
    for j in range(5):
        a(f"buffer_load_dwordx2 {vr(XR+2*j,2)}, v1, s[20:23], s53 offen offset:{j*32}")
    a(f"buffer_load_ushort v{XR+10}, v2, s[24:27], s55 offen")
    if not with_b2:
        for i in range(20, 80): a(f"v_mov_b32 v{g.ACC+i}, 0")
    else:
        zero_acc(a, g)
    if stamp: stamp_mid(a, 0)
    main_loop(a, g, S, P1, name + "_a", 5)
    if with_b2:
        srd(a, 12, 40, 41, 0, 1728 * 4096)
        srd(a, 16, 4, 5, UF_OFF, UF_SZ)
        P2 = dict(mode="TF", srdT=12, srdF=16, strideT=4096, planeF=10240, W=4, TisA=False)
        setup_T(a, g, 4096)
        a("s_lshl_b32 s51, s49, 7")
        init_offsets(a, g, S, P2, 51, 52)
        prologue_loads(a, g, S, P2)
        main_loop(a, g, S, P2, name + "_b", 14)
    if stamp: stamp_mid(a, 1)
    reduce4(a, g, S, 0, lambda: a("s_barrier"))
    A = g.ACC; t = g.tmp
    a(f"v_lshlrev_b32 v{t+4}, 16, v{XR+10}")
    for j in range(5):
        a(f"v_lshlrev_b32 v{t}, 16, v{XR+2*j}")
        a(f"v_and_b32 v{t+1}, 0xffff0000, v{XR+2*j}")
        a(f"v_lshlrev_b32 v{t+2}, 16, v{XR+2*j+1}")
        a(f"v_and_b32 v{t+3}, 0xffff0000, v{XR+2*j+1}")
        for i in range(4):
            a(f"v_add_f32 v{A+4*j+i}, v{A+4*j+i}, v{t+4}")
        a(f"v_pk_add_f32 {vr(A+4*j,2)}, {vr(A+4*j,2)}, {vr(t,2)}")
        a(f"v_pk_add_f32 {vr(A+4*j+2,2)}, {vr(A+4*j+2,2)}, {vr(t+2,2)}")
    pack_store(a, g, A, 60, 53, PLANE=0, rowstride=1280, mode="R")
    if stamp: stamp_end(a, 8, 6, 1)
    a.label(f"{name}_end")
    a("s_endpgm")
    return finish(a, name, nv, (256, 256, 4 * REGION))
```

```python
import sys
from k1b import k1_kernel
from k2 import k2_kernel
from k3b import k3_kernel
from build import build
from probe import probes
ks = [k1_kernel(), k2_kernel(), k3_kernel()]
open("parallel_sum__grouped_kv_mqa__mixer_token_mlp__prompt.s", "w").write(build(ks))
open("v3.s", "w").write(build(ks))
probes(ks, build, "v3")
ks = [k1_kernel(stamp=True), k2_kernel(stamp=True), k3_kernel(stamp=True)]
open("full_st.s", "w").write(build(ks))
```

```python
from asmlib import *
from layout import *

def mfma16(d, a, b, c):
    cs = "0" if c is None else vr(c, 4)
    return f"v_mfma_f32_16x16x32_bf16 {vr(d,4)}, {vr(a,4)}, {vr(b,4)}, {cs}"

def srd(a, d, lo, hi, off, size):
    if off:
        a(f"s_add_u32 s{d}, s{lo}, {off}")
        a(f"s_addc_u32 s{d+1}, s{hi}, 0")
        a(f"s_and_b32 s{d+1}, s{d+1}, 0xffff")
    else:
        a(f"s_mov_b32 s{d}, s{lo}")
        a(f"s_and_b32 s{d+1}, s{hi}, 0xffff")
    a(f"s_mov_b32 s{d+2}, {size}")
    a(f"s_mov_b32 s{d+3}, 0x20000")

class G:
    def __init__(self, NB=3, ff=False, vbase=8):
        self.NB = NB
        v = vbase
        self.ACC = v; v += 80
        self.FB = []
        for i in range(NB): self.FB.append(v); v += 20
        if ff:
            self.F2 = []
            for i in range(NB): self.F2.append(v); v += 16
            self.TB = self.F2[0]
        else:
            self.TB = v; v += 16
        self.vT = v; v += 1
        self.vF = v; v += 1
        self.vR = v; v += 4
        v += v & 1
        self.tmp = v; v += 12
        self.nv = v

RING = 4096
REGION = 16384

def setup_lane(a, g, S, ldsbase):
    w = S["w"]; t0 = S["t0"]; t = g.tmp
    a(f"""
    v_and_b32 v{t}, 63, v0
    v_and_b32 v{t+1}, 15, v0                 ; i4 / r
    v_bfe_u32 v{t+2}, v0, 4, 2               ; kg
    s_mul_i32 s{S['lb']}, s{w}, {REGION}
    s_add_u32 s{S['lb']}, s{S['lb']}, {ldsbase}
    """)
    a(f"""
    v_lshrrev_b32 v{t+3}, 1, v{t+2}
    v_lshlrev_b32 v{t+3}, 4, v{t+3}
    v_and_b32 v{t+4}, 1, v{t+2}
    v_lshl_add_u32 v{t+3}, v{t+4}, 2, v{t+3}
    v_lshrrev_b32 v{t+5}, 2, v{t+1}
    v_add_u32 v{t+3}, v{t+3}, v{t+5}
    v_lshlrev_b32 v{t+3}, 7, v{t+3}          ; slot*128
    v_and_b32 v{t+5}, 3, v{t+1}
    v_lshl_add_u32 v{t+3}, v{t+5}, 3, v{t+3} ; + (i4&3)*8
    v_add_u32 v{t+3}, s{S['lb']}, v{t+3}
    v_lshrrev_b32 v{t+5}, 3, v{t+1}
    v_lshl_add_u32 v{t+5}, v{t+4}, 1, v{t+5} ; swz
    """)
    for b in range(4):
        a(f"s_add_u32 s{t0}, s{w}, {b}")
        a(f"s_and_b32 s{t0}, s{t0}, 3")
        a(f"v_xor_b32 v{t+6}, s{t0}, v{t+5}")
        a(f"v_lshl_add_u32 v{g.vR+b}, v{t+6}, 5, v{t+3}")

def setup_T(a, g, stride):
    t = g.tmp
    a(f"""
    v_bfe_u32 v{t+6}, v0, 3, 2
    v_bfe_u32 v{t+7}, v0, 5, 1
    v_lshl_add_u32 v{t+6}, v{t+7}, 3, v{t+6}
    v_mul_u32_u24 v{g.vT}, {stride}, v{t+6}
    v_and_b32 v{t+6}, 7, v0
    v_lshlrev_b32 v{t+7}, 1, v{t+2}
    v_xor_b32 v{t+6}, v{t+6}, v{t+7}
    v_lshl_add_u32 v{g.vT}, v{t+6}, 4, v{g.vT}
    """)

def setup_F(a, g, vdst, plane):
    t = g.tmp
    a(f"""
    v_mul_u32_u24 v{vdst}, {plane}, v{t+2}
    v_lshl_add_u32 v{vdst}, v{t+1}, 4, v{vdst}
    """)

def issue(a, g, S, b, P, part="TF"):
    so4 = S["so4"]; sf = S["sf"]
    if part == "T":
        a(f"s_add_u32 m0, s{S['lb']}, {b*RING}")
        a("s_nop 0")
        for i in range(4):
            a(f"buffer_load_dwordx4 v{g.vT}, {sr(P['srdT'],4)}, s{so4+i} offen offset:{i*1024} lds")
        for i in range(4):
            a(f"s_add_u32 s{so4+i}, s{so4+i}, {32 * P['W'] * P['strideT']}")
        return
    if part == "F":
        for j in range(5):
            a(f"buffer_load_dwordx4 {vr(g.FB[b]+4*j,4)}, v{g.vF}, {sr(P['srdF'],4)}, s{sf} offen offset:{j*256}{P.get('fmod','')}")
        a(f"s_add_u32 s{sf}, s{sf}, {4*P['W']*P['planeF']}")
        return
    if P["mode"] == "TF":
        a(f"s_add_u32 m0, s{S['lb']}, {b*RING}")
        fm = P.get("fmod", "")
        a(f"buffer_load_dwordx4 {vr(g.FB[b],4)}, v{g.vF}, {sr(P['srdF'],4)}, s{sf} offen{fm}")
        for i in range(4):
            a(f"buffer_load_dwordx4 v{g.vT}, {sr(P['srdT'],4)}, s{so4+i} offen offset:{i*1024} lds")
        for j in range(1, 5):
            a(f"buffer_load_dwordx4 {vr(g.FB[b]+4*j,4)}, v{g.vF}, {sr(P['srdF'],4)}, s{sf} offen offset:{j*256}{fm}")
        inc = 32 * P["W"] * P["strideT"]
    else:
        for i in range(4):
            a(f"buffer_load_dwordx4 {vr(g.F2[b]+4*i,4)}, v{g.vT}, {sr(P['srdT'],4)}, s{so4+i} offen")
        for j in range(5):
            a(f"buffer_load_dwordx4 {vr(g.FB[b]+4*j,4)}, v{g.vF}, {sr(P['srdF'],4)}, s{sf} offen offset:{j*256}")
        inc = 4 * P["W"] * P["plane2"]
    for i in range(4):
        a(f"s_add_u32 s{so4+i}, s{so4+i}, {inc}")
    a(f"s_add_u32 s{sf}, s{sf}, {4*P['W']*P['planeF']}")

def init_offsets(a, g, S, P, sTbase, sFbase):
    so4 = S["so4"]; sf = S["sf"]; w = S["w"]; t0 = S["t0"]
    if P["mode"] == "TF":
        st = P["strideT"]
        a(f"s_mul_i32 s{t0}, s{w}, {32*st}")
        a(f"s_add_u32 s{so4}, s{t0}, s{sTbase}")
        for i in range(1, 4):
            a(f"s_add_u32 s{so4+i}, s{so4}, {(16*(i>>1)+4*(i&1))*st - 1024*i}")
    else:
        a(f"s_mul_i32 s{sf}, s{w}, {4*P['plane2']}")
        a(f"s_add_u32 s{sf}, s{sf}, s{sTbase}")
        for i in range(4):
            a(f"s_add_u32 s{t0}, s{w}, {i}")
            a(f"s_and_b32 s{t0}, s{t0}, 3")
            a(f"s_lshl_b32 s{t0}, s{t0}, 8")
            a(f"s_add_u32 s{so4+i}, s{sf}, s{t0}")
    a(f"s_mul_i32 s{t0}, s{w}, {4*P['planeF']}")
    a(f"s_add_u32 s{sf}, s{t0}, s{sFbase}")

def prologue_loads(a, g, S, P):
    for b in range(g.NB - 1):
        issue(a, g, S, b, P)

def zero_acc(a, g):
    for i in range(80):
        a(f"v_mov_b32 v{g.ACC+i}, 0")

class _L:
    def __init__(self): self.l = []
    def __call__(self, x): self.l += [y.strip() for y in x.split("\n") if y.strip()]

def main_loop(a, g, S, P, tag, nsteps, midentry=False, inter=False, hi=None, lo=0):
    NB = g.NB; cnt = S["cnt"]
    a(f"s_mov_b32 s{cnt}, {nsteps}")
    if midentry:
        if not inter:
            issue(a, g, S, NB - 1, P)
            a(f"s_waitcnt vmcnt({9+5*(NB-2)})")
        else:
            a(f"s_waitcnt vmcnt({5*(NB-2)})")
        a(f"s_branch {tag}_mid")
    a.label(f"{tag}_loop")
    for b in range(NB):
        fill = []
        if not inter:
            issue(a, g, S, (b + NB - 1) % NB, P)
            a(f"s_waitcnt vmcnt({9*(NB-1)})")
        else:
            L = _L(); issue(L, g, S, (b + NB - 1) % NB, P)
            cur = []
            for x in L.l:
                cur.append(x)
                if x.startswith("buffer_"): fill.append(cur); cur = []
            fill[-1] += cur
            a(f"s_waitcnt vmcnt({9*(NB-2)})")
        if b == 0 and midentry: a.label(f"{tag}_mid")
        if P["mode"] == "TF":
            for tb in range(4):
                for t in range(2):
                    a(f"ds_read_b64_tr_b16 {vr(g.TB+4*tb+2*t,2)}, v{g.vR+tb} offset:{b*RING+t*1024}")
        k = 0
        for tb in range(4):
            if P["mode"] == "TF":
                a(f"s_waitcnt lgkmcnt({6-2*tb})")
                T = g.TB + 4 * tb
            else:
                T = g.F2[b] + 4 * tb
            for j in range(5):
                acc = g.ACC + (tb * 5 + j) * 4
                Fr = g.FB[b] + 4 * j
                if hi is not None and k % 2 == 0: a(f"s_setprio {hi}")
                if P["TisA"]: a(mfma16(acc, T, Fr, acc))
                else: a(mfma16(acc, Fr, T, acc))
                if hi is not None and k % 2 == 1: a(f"s_setprio {lo}")
                if k % 2 == 1 and fill:
                    for x in fill.pop(0): a(x)
                k += 1
        assert not fill
        a(f"s_sub_u32 s{cnt}, s{cnt}, 1")
        a(f"s_cmp_eq_u32 s{cnt}, 0")
        if b < NB - 1:
            a(f"s_cbranch_scc1 {tag}_done")
        else:
            a(f"s_cbranch_scc0 {tag}_loop")
    a.label(f"{tag}_done")

def reduce4(a, g, S, ldsbase, sync, mid=None):
    t = g.tmp; w = S["w"]; t0 = S["t0"]
    a("s_waitcnt vmcnt(0)")
    a(f"v_and_b32 v{t}, 63, v0")
    a(f"v_lshlrev_b32 v{t}, 4, v{t}")
    a(f"v_add_u32 v{t+1}, s{S['lb']}, v{t}")
    a("s_nop 4")
    for tb in range(1, 4):
        for j in range(5):
            a(f"ds_write_b128 v{t+1}, {vr(g.ACC+(tb*5+j)*4,4)} offset:{((tb-1)*5+j)*1024}")
    if mid: mid()
    for tb in range(1, 4):
        a(f"s_sub_u32 s{t0}, s{w}, {tb}")
        a(f"s_and_b32 s{t0}, s{t0}, 3")
        a(f"s_mul_i32 s{t0}, s{t0}, {REGION}")
        a(f"s_add_u32 s{t0}, s{t0}, {ldsbase + (tb-1)*5120}")
        a(f"v_add_u32 v{t+1+tb}, s{t0}, v{t}")
    a("s_waitcnt lgkmcnt(0)")
    sync()
    for tb in range(1, 4):
        for j in range(5):
            a(f"ds_read_b128 {vr(g.ACC+(tb*5+j)*4,4)}, v{t+1+tb} offset:{j*1024}")
    for tb in range(1, 4):
        a(f"s_waitcnt lgkmcnt({15-5*tb})")
        for i in range(0, 20, 2):
            a(f"v_pk_add_f32 {vr(g.ACC+i,2)}, {vr(g.ACC+i,2)}, {vr(g.ACC+tb*20+i,2)}")

def f2u(x):
    import struct
    return struct.unpack("<I", struct.pack("<f", x))[0]

GC1 = -2.0 * 1.4426950408889634 * 0.7978845608028654
GC2 = GC1 * 0.044715

def b1_epilogue(a, g, S, srdU, sUo, vB, store_mod=""):
    t = g.tmp; A = g.ACC; X = g.ACC + 20
    c1, c2 = S["t0"], S["t1"]
    a(f"s_mov_b32 s{c1}, {hex(f2u(GC1))}")
    a(f"s_mov_b32 s{c2}, {hex(f2u(GC2))}")
    a(f"v_lshlrev_b32 v{t}, 16, v{vB}")
    a(f"v_and_b32 v{t+1}, 0xffff0000, v{vB}")
    a(f"v_lshlrev_b32 v{t+2}, 16, v{vB+1}")
    a(f"v_and_b32 v{t+3}, 0xffff0000, v{vB+1}")
    a(f"v_mov_b32 v{t+4}, s{c1}")
    for j in range(5):
        for i in (0, 2):
            a(f"v_pk_add_f32 {vr(A+4*j+i,2)}, {vr(A+4*j+i,2)}, {vr(t+i,2)}")
    for i in range(0, 20, 2):
        a(f"v_pk_mul_f32 {vr(X+i,2)}, {vr(A+i,2)}, {vr(A+i,2)}")
    for i in range(20):
        a(f"v_fma_f32 v{X+i}, v{X+i}, s{c2}, v{t+4}")
    for i in range(0, 20, 2):
        a(f"v_pk_mul_f32 {vr(X+i,2)}, {vr(X+i,2)}, {vr(A+i,2)}")
    for i in range(20):
        a(f"v_exp_f32 v{X+i}, v{X+i}")
    for i in range(20):
        a(f"v_add_f32 v{X+i}, 1.0, v{X+i}")
    for i in range(20):
        a(f"v_rcp_f32 v{X+i}, v{X+i}")
    for i in range(0, 20, 2):
        a(f"v_pk_mul_f32 {vr(X+i,2)}, {vr(X+i,2)}, {vr(A+i,2)}")
    pack_store(a, g, X, srdU, sUo, PLANE=10240, rowstride=16, mode="F", store_mod=store_mod)

def pack_store(a, g, X, srdO, sO, PLANE, rowstride, mode, store_mod=""):
    t = g.tmp; Pk = g.ACC + 40
    for j in range(5):
        a(f"v_cvt_pk_bf16_f32 v{Pk+2*j}, v{X+4*j}, v{X+4*j+1}")
        a(f"v_cvt_pk_bf16_f32 v{Pk+2*j+1}, v{X+4*j+2}, v{X+4*j+3}")
    a(f"v_mov_b32 v{Pk+10}, v{Pk+8}")
    a(f"v_mov_b32 v{Pk+11}, v{Pk+9}")
    a(f"v_and_b32 v{t}, 15, v0")
    a(f"v_bfe_u32 v{t+1}, v0, 4, 1")
    a(f"v_bfe_u32 v{t+2}, v0, 5, 1")
    if mode == "F":
        a(f"v_lshl_add_u32 v{t}, v{t+1}, 4, v{t}")
        a(f"v_lshlrev_b32 v{t}, 4, v{t}")
        a(f"v_mul_u32_u24 v{t+2}, {PLANE}, v{t+2}")
        a(f"v_add_u32 v{t}, v{t}, v{t+2}")
        step = 512
    else:
        a(f"v_mul_u32_u24 v{t}, {rowstride}, v{t}")
        a(f"v_lshl_add_u32 v{t}, v{t+1}, 5, v{t}")
        a(f"v_lshl_add_u32 v{t}, v{t+2}, 4, v{t}")
        step = 64
    for p in range(3):
        for i in range(2):
            a(f"v_permlane16_swap_b32 v{Pk+4*p+i}, v{Pk+4*p+2+i}")
    a("s_nop 1")
    for p in range(3):
        if p == 2:
            a("s_mov_b32 exec_lo, 0xffff")
            a("s_mov_b32 exec_hi, 0xffff")
        a(f"buffer_store_dwordx4 {vr(Pk+4*p,4)}, v{t}, {sr(srdO,4)}, s{sO} offen offset:{p*step}{store_mod}")
    a("s_mov_b64 exec, -1")

def transpose_task(a, vb, S, srdI, sIo, srdO, sOo, ldsaddr_s, body=None, store_mod=""):
    X = vb + 8; t = vb
    a(f"""
    v_bfe_u32 v{t}, v0, 3, 3
    v_and_b32 v{t+1}, 7, v0
    v_mul_u32_u24 v{t+2}, 1280, v{t}
    v_lshl_add_u32 v{t+2}, v{t+1}, 4, v{t+2}
    """)
    for i in range(10):
        a(f"buffer_load_dwordx4 {vr(X+4*i,4)}, v{t+2}, {sr(srdI,4)}, s{sIo} offen offset:{i*128}")
    a(f"""
    v_mul_u32_u24 v{t+2}, 1344, v{t}
    v_lshl_add_u32 v{t+2}, v{t+1}, 4, v{t+2}
    v_add_u32 v{t+2}, s{ldsaddr_s}, v{t+2}
    v_bfe_u32 v{t+3}, v0, 2, 2
    v_mul_u32_u24 v{t+3}, 1344, v{t+3}
    v_bfe_u32 v{t+4}, v0, 4, 2
    v_lshl_add_u32 v{t+3}, v{t+4}, 5, v{t+3}
    v_and_b32 v{t+4}, 3, v0
    v_lshl_add_u32 v{t+3}, v{t+4}, 3, v{t+3}
    v_add_u32 v{t+3}, s{ldsaddr_s}, v{t+3}
    v_and_b32 v{t+4}, 63, v0
    v_lshlrev_b32 v{t+4}, 4, v{t+4}
    """)
    if body: body(a, X, t + 5)
    else: a("s_waitcnt vmcnt(0)")
    for i in range(10):
        a(f"ds_write_b128 v{t+2}, {vr(X+4*i,4)} offset:{i*128}")
    a("s_waitcnt lgkmcnt(0)")
    for j in range(10):
        a(f"ds_read_b64_tr_b16 {vr(X+4*j,2)}, v{t+3} offset:{j*128}")
        a(f"ds_read_b64_tr_b16 {vr(X+4*j+2,2)}, v{t+3} offset:{j*128+4*1344}")
    for j in range(10):
        if j in (0, 4, 8):
            a(f"s_waitcnt lgkmcnt({max(0, 20-2*(j+4))})")
        if j in (4, 8):
            a(f"s_add_u32 s{sOo}, s{sOo}, 4096")
        a(f"buffer_store_dwordx4 {vr(X+4*j,4)}, v{t+4}, {sr(srdO,4)}, s{sOo} offen offset:{(j%4)*1024}{store_mod}")
```

```python
from asmlib import *
from layout import *
from gemm import srd, transpose_task, f2u
from kernels import finish, stamp_begin, stamp_mid, stamp_end
from k1 import mfma32, mfma8, bf16r, ln_stats, half_sum, split3, QSCALE
import math

SLOT = 24576
NSL = 6
LDS_K1 = SLOT * NSL + 4096
XCH = SLOT * NSL

def k1_kernel(name="k1_kernel", stamp=False, pfw=32, pfmode=0, pfk=5, pfc=None, nord=False, nomm=False, noxl=False, nowl=False):
    a = Asm()
    a.label(name)
    a(f"""
    s_cmp_ge_u32 s2, 256
    s_cbranch_scc1 {name}_end
    s_load_dwordx4 s[40:43], s[0:1], 0
    s_load_dwordx2 s[4:5], s[0:1], 96
    s_load_dwordx4 s[56:59], s[0:1], 16
    s_load_dwordx2 s[64:65], s[0:1], 48
    """)
    if pfc:
        a("s_getpc_b64 s[20:21]")
        a("v_lshlrev_b32 v1, 7, v0")
        a(f"v_min_u32 v1, {pfc[0]}-{name}-64, v1")
        a("global_load_dword v127, v1, s[20:21]")
    a(f"""
    v_lshrrev_b32 v1, 6, v0
    s_and_b32 s46, s2, 7
    v_readfirstlane_b32 s6, v1
    """)
    if stamp: stamp_begin(a)
    a(f"""
    s_bfe_u32 s47, s2, 0x30003
    s_lshr_b32 s48, s2, 6
    s_lshl_b32 s7, s46, 2
    s_add_u32 s48, s48, s7
    s_mov_b32 s60, 0x3f803f80
    s_mov_b32 s61, {hex(f2u(1.0/640))}
    s_mov_b32 s62, {hex(f2u(1e-5))}
    s_mov_b32 s63, s6
    s_cmp_ge_u32 s47, 6
    s_cbranch_scc1 {name}_ln
    s_cmp_lt_u32 s6, 4
    s_cbranch_scc1 {name}_comp
    """)
    XE, XO, T, WD = 1, 2, 3, 16
    a(f"""
    s_sub_u32 s6, s6, 4
    v_bfe_u32 v{T}, v0, 3, 3
    v_mul_u32_u24 v{XE}, 1280, v{T}
    v_and_b32 v{T}, 7, v0
    v_bfe_u32 v{T+1}, v0, 4, 2
    v_xor_b32 v{T}, v{T}, v{T+1}
    v_xor_b32 v{T+2}, 4, v{T}
    v_lshl_add_u32 v{XO}, v{T+2}, 4, v{XE}
    v_add_u32 v{XO}, {8*1280-1024}, v{XO}
    v_lshl_add_u32 v{XE}, v{T}, 4, v{XE}
    s_lshl_b32 s7, s48, 2
    s_add_u32 s7, s7, s6
    s_mul_i32 s20, s7, {16*1280}         ; x soffset
    s_lshl_b32 s21, s6, 11
    v_mul_u32_u24 v{WD}, 1280, v{T+1}
    v_and_b32 v{T}, 15, v0
    v_lshlrev_b32 v{T+2}, 2, v{T+1}
    v_xor_b32 v{T}, v{T}, v{T+2}
    v_lshl_add_u32 v{WD}, v{T}, 4, v{WD}
    v_add_u32 v{WD+1}, 4096, v{WD}
    v_add_u32 v{WD+2}, 8192, v{WD}
    v_add_u32 v{WD+3}, 12288, v{WD}
    s_mul_i32 s22, s6, {16*1280}
    s_lshl_b32 s7, s47, 8
    s_add_u32 s22, s22, s7
    s_lshl_b32 s23, s6, 12
    s_add_u32 s23, s23, 8192
    s_waitcnt lgkmcnt(0)
    """)
    srd(a, 12, 40, 41, 0, 2048 * 1280)
    a(f"""
    s_cmp_eq_u32 s47, 5
    s_cbranch_scc1 {name}_kvload
    """)
    srd(a, 16, 42, 43, 0, 640 * 1280)
    def xdma(slot):
        a(f"s_add_u32 m0, s21, {slot}")
        a("s_nop 0")
        if not noxl:
            a(f"buffer_load_dwordx4 v{XE}, s[12:15], s20 offen lds")
            a(f"buffer_load_dwordx4 v{XO}, s[12:15], s20 offen offset:1024 lds")
        a("s_add_u32 s20, s20, 128")
    def qissue(c):
        sl = (c % NSL) * SLOT
        xdma(sl)
        a(f"s_add_u32 m0, s23, {sl}")
        a("s_nop 0")
        for q in range(0 if nowl else 4):
            a(f"buffer_load_dwordx4 v{WD+q}, s[16:19], s22 offen offset:{q*1024} lds")
        a(f"s_add_u32 s22, s22, {64*1280}")
    def loader(issue, per, pre=None):
        sched = {-1: [0, 1], 0: [2, 3], 1: [4, 5], 2: [6], 3: [7], 4: [8], 5: [9]}
        issued = 0
        for c in sched[-1]: issue(c); issued += 1
        if pre: pre(issued * per)
        extra = 0
        for k in range(10):
            a(f"s_waitcnt vmcnt({(issued-1-k)*per + extra})")
            a("s_barrier")
            for c in sched.get(k, []): issue(c); issued += 1
            if k == pfk and pfmode == 4:
                srd(a, 24, 64, 65, 0, 2048 * 3456)
                a(f"""
                s_lshr_b32 s7, s2, 6
                s_mul_i32 s7, s7, 6
                s_add_u32 s7, s7, s47
                s_lshl_b32 s7, s7, 2
                s_add_u32 s7, s7, s6
                s_lshr_b32 s3, s46, 1
                s_mul_i32 s3, s3, 896
                v_and_b32 v1, 63, v0
                v_mul_u32_u24 v1, 3456, v1
                """)
                for r in range(3):
                    a(f"""
                    s_lshr_b32 s28, s7, 3
                    s_mul_i32 s28, s28, {64*3456}
                    s_and_b32 s29, s7, 7
                    s_cmp_eq_u32 s29, 7
                    s_cselect_b32 s28, 0x40000000, s28
                    s_lshl_b32 s29, s29, 7
                    s_add_u32 s28, s28, s29
                    s_add_u32 s28, s28, s3
                    buffer_load_dword v126, v1, s[24:27], s28 offen
                    s_add_u32 s7, s7, 96
                    """)
                extra = 3
        a("s_endpgm")
    loader(qissue, (0 if noxl else 2) + (0 if nowl else 4))
    a.label(f"{name}_kvload")
    KW = 49152
    WIM = 28672
    srd(a, 16, 56, 57, 0, 25600)
    srd(a, 28, 58, 59, 0, 25600)
    a(f"""
    v_and_b32 v{T}, 63, v0
    v_lshlrev_b32 v{T}, 4, v{T}
    s_mul_i32 s7, s6, 7168
    """)
    def kvissue(c):
        xdma((c % NSL) * 8192)
        if c == 0:
            for m, sd in ((0, 16), (1, 28)):
                for h in range(2):
                    a(f"s_add_u32 m0, s7, {KW + m*WIM + h*4096}")
                    a(f"s_add_u32 s24, s7, {h*4096}")
                    for i in range(4 if h == 0 else 3):
                        a(f"buffer_load_dwordx4 v{T}, {sr(sd,4)}, s24 offen offset:{i*1024} lds")
    loader(kvissue, 2)

    a.label(f"{name}_comp")
    T = 3
    AX = 10
    AW = 14
    SX, SXX, CS0, CS1 = 20, 21, 22, 23
    XF = 24; WF = 40; ACC = 72; PK = 104; NV = 128
    a(f"""
    s_and_b32 s49, s6, 1                 ; wt
    s_lshr_b32 s50, s6, 1                ; wn
    v_and_b32 v{T+3}, 31, v0
    v_bfe_u32 v{T+4}, v0, 5, 1
    v_bfe_u32 v{T+5}, v0, 1, 3
    v_xor_b32 v{T+5}, v{T+5}, v{T+4}
    s_lshl_b32 s7, s50, 2
    v_xor_b32 v{T+5}, s7, v{T+5}
    s_lshl_b32 s7, s49, 12
    v_lshl_add_u32 v{T+6}, v{T+3}, 7, s7
    """)
    for ks in range(4):
        a(f"v_xor_b32 v{AX+ks}, {2*ks}, v{T+5}")
        a(f"v_lshl_add_u32 v{AX+ks}, v{AX+ks}, 4, v{T+6}")
    for i in range(4): a(f"v_mov_b32 v{SX+i}, 0")
    for i in range(32): a(f"v_mov_b32 v{ACC+i}, 0")
    a(f"""
    v_bfe_u32 v{T}, v0, 2, 2
    v_lshl_add_u32 v{T+1}, v{T+4}, 3, v{T}
    v_bfe_u32 v{T+2}, v0, 4, 1
    v_and_b32 v{T+5}, 3, v0
    v_lshlrev_b32 v{T+5}, 3, v{T+5}
    v_lshl_add_u32 v{T+5}, v{T+2}, 5, v{T+5}      ; (g&1)*32 + (i4&3)*8
    s_cmp_eq_u32 s47, 5
    s_cbranch_scc1 {name}_kv
    """)
    def rdl(ks, nb):
        L = [f"ds_read_b128 {vr(XF+4*ks,4)}, v{AX+ks}"]
        rs = 256 if nb == 2 else 40
        for b in range(nb):
            for t in range(2):
                L.append(f"ds_read_b64_tr_b16 {vr(WF+8*ks+4*b+2*t,2)}, v{AW+2*(ks>>1)+b} offset:{(16*(ks&1)+4*t)*rs}")
        return L
    def mm(ks, nb, fill):
        h = (len(fill) + 1) // 2 if nb == 2 else len(fill)
        parts = [fill[:h], fill[h:]]
        for b in range(nb):
            a(mfma32(ACC + 16 * b, WF + 8 * ks + 4 * b, XF + 4 * ks, ACC + 16 * b))
            for x in parts[b]: a(x)
        for i in range(4):
            a(f"v_dot2_f32_bf16 v{CS0}, v{WF+8*ks+i}, s60, v{CS0}")
            if ks < 2:
                a(f"v_dot2_f32_bf16 v{SX}, v{XF+4*ks+i}, s60, v{SX}")
                a(f"v_dot2_f32_bf16 v{SXX}, v{XF+4*ks+i}, v{XF+4*ks+i}, v{SXX}")
    def comploop(tag, nb, xslot, wstep):
        n = 1 + 2 * nb
        a("s_barrier")
        for ks in range(2):
            for x in rdl(ks, nb): a(x)
        for c in range(10):
            dl = xslot if (c + 1) % NSL else (-(NSL - 1) * xslot) & 0xffffffff
            def bump(h):
                if c == 9: return []
                L = [f"v_add_u32 v{AX+2*h+i}, {dl}, v{AX+2*h+i}" for i in range(2)]
                L += [f"v_add_u32 v{AW+2*h+b}, {dl if wstep is None else wstep}, v{AW+2*h+b}" for b in range(nb)]
                return L
            a(f"s_waitcnt lgkmcnt({n})")
            mm(0, nb, rdl(2, nb) + bump(0))
            a(f"s_waitcnt lgkmcnt({n})")
            mm(1, nb, rdl(3, nb))
            if c < 9:
                a("s_barrier")
                a(f"s_waitcnt lgkmcnt({n})")
                mm(2, nb, rdl(0, nb) + bump(1))
                a(f"s_waitcnt lgkmcnt({n})")
                mm(3, nb, rdl(1, nb))
            else:
                a(f"s_waitcnt lgkmcnt({n})")
                mm(2, nb, [])
                a(f"s_waitcnt lgkmcnt(0)")
                mm(3, nb, [])
    def stats_epi(ncs):
        a("s_nop 2")
        a(f"v_cmp_eq_u32 vcc, 1, v{T+4}")
        half_sum(a, SX, T); half_sum(a, SXX, T); half_sum(a, CS0, T)
        a(f"""
        v_and_b32 v{T}, 63, v0
        v_lshlrev_b32 v{T}, 2, v{T}
        s_lshl_b32 s7, s6, 10
        s_add_u32 s7, s7, {XCH}
        v_add_u32 v{T+1}, s7, v{T}
        ds_write_b32 v{T+1}, v{SX}
        ds_write_b32 v{T+1}, v{SXX} offset:256
        ds_write_b32 v{T+1}, v{CS0} offset:512
        s_xor_b32 s7, s7, 2048
        v_add_u32 v{T+1}, s7, v{T}
        s_xor_b32 s7, s7, 3072
        v_add_u32 v{T+2}, s7, v{T}
        s_waitcnt lgkmcnt(0)
        s_barrier
        ds_read_b32 v{XF}, v{T+1}
        ds_read_b32 v{XF+1}, v{T+1} offset:256
        ds_read_b32 v{CS1}, v{T+2} offset:512
        s_waitcnt lgkmcnt(0)
        v_add_f32 v{SX}, v{SX}, v{XF}
        v_add_f32 v{SXX}, v{SXX}, v{XF+1}
        """)
        ln_stats(a, SX, SXX, T, 61, 62)
        a(f"v_sub_f32 v{SX}, 0, v{SX}")
        a(f"v_cvt_pk_bf16_f32 v{XF}, v{SX}, v{SX}")
        a(f"v_cvt_pk_bf16_f32 v{XF+1}, v{SX}, 0")
        a(f"v_cndmask_b32_e64 v{XF}, v{XF}, 0, vcc")
        a(f"v_cndmask_b32_e64 v{XF+1}, v{XF+1}, 0, vcc")
        for b in range(ncs): split3(a, CS0 + b, WF + 2 * b, T)
        a("s_nop 1")
        for b in range(ncs): a(mfma8(ACC + 16 * b, WF + 2 * b, XF, ACC + 16 * b))

    a(f"""
    v_lshlrev_b32 v{T+1}, 8, v{T+1}
    v_add_u32 v{T+1}, v{T+1}, v{T+5}
    v_add_u32 v{T+1}, 8192, v{T+1}
    s_lshl_b32 s7, s50, 1
    s_add_u32 s7, s7, s49
    v_xor_b32 v{T}, s7, v{T}
    s_lshl_b32 s7, s50, 13
    v_lshl_add_u32 v{AW}, v{T}, 6, v{T+1}
    v_xor_b32 v{T}, 1, v{T}
    v_lshl_add_u32 v{AW+1}, v{T}, 6, v{T+1}
    s_xor_b32 s20, s7, 8192
    v_add_u32 v{AW+2}, s20, v{AW}
    v_add_u32 v{AW+3}, s20, v{AW+1}
    v_add_u32 v{AW}, s7, v{AW}
    v_add_u32 v{AW+1}, s7, v{AW+1}
    s_waitcnt lgkmcnt(0)
    """)
    srd(a, 8, 4, 5, 0, WS_END)
    if stamp: stamp_mid(a, 0)
    comploop(name + "_q", 2, SLOT, None)
    if stamp: stamp_mid(a, 1)
    stats_epi(2)
    a(f"""
    v_mul_f32 v{SXX}, {hex(f2u(QSCALE))}, v{SXX}
    v_lshlrev_b32 v{T}, 3, v{T+3}
    v_lshl_add_u32 v{T}, v{T+4}, 14, v{T}
    s_lshl_b32 s7, s47, 1
    s_add_u32 s7, s7, s50
    s_lshl_b32 s7, s7, 18
    s_lshl_b32 s20, s48, 1
    s_add_u32 s20, s20, s49
    s_lshl_b32 s20, s20, 8
    s_add_u32 s20, s20, s7
    s_lshl_b32 s7, s49, 17
    s_add_u32 s21, s20, s7
    s_xor_b32 s7, s7, 0x20000
    s_add_u32 s22, s20, s7
    s_nop 3
    """)
    for b in range(2):
        for rq in range(4):
            r = ACC + 16 * b + 4 * rq
            a(f"v_pk_mul_f32 {vr(r,2)}, {vr(r,2)}, {vr(SX,2)} op_sel:[0,1] op_sel_hi:[1,1]")
            a(f"v_pk_mul_f32 {vr(r+2,2)}, {vr(r+2,2)}, {vr(SX,2)} op_sel:[0,1] op_sel_hi:[1,1]")
            p = PK + 8 * b + 2 * rq
            a(f"v_cvt_pk_bf16_f32 v{p}, v{r}, v{r+1}")
            a(f"v_cvt_pk_bf16_f32 v{p+1}, v{r+2}, v{r+3}")
            a(f"buffer_store_dwordx2 {vr(p,2)}, v{T}, s[8:11], s{21+b} offen")
            a(f"s_add_u32 s{21+b}, s{21+b}, 32768")
    if stamp: stamp_end(a, 8, 63, 2, nw=8)
    a("s_endpgm")

    a.label(f"{name}_kv")
    a(f"""
    v_mul_u32_u24 v{T+1}, 40, v{T+1}
    v_add_u32 v{T+1}, v{T+1}, v{T+5}
    s_mul_i32 s7, s50, {WIM + 1280}
    s_add_u32 s7, s7, {KW}
    v_add_u32 v{AW}, s7, v{T+1}
    s_mul_i32 s7, s50, {WIM - 1280}
    s_add_u32 s7, s7, {KW + 1280}
    v_add_u32 v{AW+2}, s7, v{T+1}
    s_waitcnt lgkmcnt(0)
    """)
    srd(a, 8, 4, 5, 0, WS_END)
    comploop(name + "_k", 1, 8192, 2560)
    stats_epi(1)
    a(f"""
    s_lshl_b32 s21, s48, 1
    s_add_u32 s21, s21, s49
    s_mul_i32 s20, s21, {TILE_B}
    s_add_u32 s20, s20, {KV_OFF}
    s_nop 7
    s_nop 1
    """)
    for i in range(12): a(f"v_mul_f32 v{ACC+i}, v{ACC+i}, v{SXX}")
    for i in range(6): a(f"v_cvt_pk_bf16_f32 v{PK+i}, v{ACC+2*i}, v{ACC+2*i+1}")
    a(f"""
    s_cmp_eq_u32 s50, 1
    s_cbranch_scc1 {name}_v
    v_and_b32 v{T}, 63, v0
    v_lshlrev_b32 v{T}, 4, v{T}
    buffer_store_dwordx4 {vr(PK,4)}, v{T}, s[8:11], s20 offen
    v_cndmask_b32_e64 v{PK+4}, v{PK+4}, 0, vcc
    v_cndmask_b32_e64 v{PK+5}, v{PK+5}, 0, vcc
    v_lshlrev_b32 v{T+1}, 3, v{T+3}
    s_mov_b32 exec_hi, 0
    buffer_store_dwordx2 {vr(PK+4,2)}, v{T+1}, s[8:11], s20 offen offset:{K1_OFF_T}
    s_mov_b32 exec_hi, -1
    v_dot2_f32_bf16 v{SX}, v{PK}, v{PK}, 0
    """)
    for i in range(1, 6): a(f"v_dot2_f32_bf16 v{SX}, v{PK+i}, v{PK+i}, v{SX}")
    a("s_nop 2")
    half_sum(a, SX, T)
    for r in (8, 4, 2, 1):
        a("s_nop 1")
        a(f"v_max_f32_dpp v{SX}, v{SX}, v{SX} row_ror:{r} row_mask:0xf bank_mask:0xf")
    a(f"""
    v_mov_b32 v{T}, v{SX}
    s_nop 1
    v_permlane16_swap_b32 v{SX}, v{T}
    s_nop 1
    v_max_f32 v{SX}, v{SX}, v{T}
    s_lshl_b32 s21, s21, 2
    s_add_u32 s21, s21, {KM_OFF}
    v_mov_b32 v{T}, 0
    s_mov_b64 exec, 1
    buffer_store_dword v{SX}, v{T}, s[8:11], s21 offen
    """)
    if stamp:
        a("s_mov_b32 s94, s90"); a("s_mov_b32 s96, s90")
        stamp_end(a, 8, 63, 3, nw=8)
    a("s_endpgm")
    a.label(f"{name}_v")
    a(f"""
    s_lshl_b32 s7, s49, 12
    s_add_u32 s7, s7, {KW + 2*WIM}
    v_lshlrev_b32 v{T}, 6, v{T+3}
    v_lshl_add_u32 v{T}, v{T+4}, 3, v{T}
    v_add_u32 v{T}, s7, v{T}
    ds_write_b64 v{T}, {vr(PK,2)}
    ds_write_b64 v{T}, {vr(PK+2,2)} offset:16
    ds_write_b64 v{T}, {vr(PK+4,2)} offset:32
    v_bfe_u32 v{T}, v0, 2, 2
    v_lshl_add_u32 v{T}, v{T+4}, 2, v{T}
    v_lshlrev_b32 v{T}, 6, v{T}
    v_add_u32 v{T}, v{T}, v{T+5}
    v_add_u32 v{T}, s7, v{T}
    s_waitcnt lgkmcnt(0)
    """)
    for t in range(2):
        for u in range(2):
            a(f"ds_read_b64_tr_b16 {vr(PK+4*t+2*u,2)}, v{T} offset:{(16*t+8*u)*64}")
    a(f"""
    v_cmp_eq_u32 vcc, 20, v{T+3}
    v_mov_b32 v{T+1}, s60
    s_nop 0
    v_cndmask_b32_e64 v{T+1}, 0, v{T+1}, vcc
    v_cmp_gt_u32 vcc, 20, v{T+3}
    v_mul_u32_u24 v{T+2}, {V_PLANE}, v{T+4}
    v_lshl_add_u32 v{T+2}, v{T+3}, 4, v{T+2}
    s_waitcnt lgkmcnt(0)
    """)
    for i in range(8): a(f"v_cndmask_b32_e64 v{PK+i}, v{T+1}, v{PK+i}, vcc")
    a(f"""
    s_mov_b32 exec_lo, 0x0fffffff
    s_mov_b32 exec_hi, 0x0fffffff
    buffer_store_dwordx4 {vr(PK,4)}, v{T+2}, s[8:11], s20 offen offset:{V_OFF_T}
    buffer_store_dwordx4 {vr(PK+4,4)}, v{T+2}, s[8:11], s20 offen offset:{V_OFF_T+2*V_PLANE}
    s_endpgm
    """)

    a.label(f"{name}_ln")
    a(f"""
    s_cmp_ge_u32 s6, 4
    s_cbranch_scc1 {name}_pf
    s_lshl_b32 s7, s48, 1
    s_add_u32 s7, s7, s47
    s_sub_u32 s7, s7, 6
    s_lshl_b32 s7, s7, 2
    s_add_u32 s7, s7, s6                 ; plane
    s_mul_i32 s20, s7, 10240
    s_add_u32 s21, s20, {HF_OFF}
    s_mul_i32 s22, s6, 16384
    s_waitcnt lgkmcnt(0)
    """)
    srd(a, 12, 40, 41, 0, 2048 * 1280)
    srd(a, 8, 4, 5, 0, WS_END)
    def pfw_code(w0):
        srd(a, 24, 64, 65, 0, 2048 * 3456)
        a(f"""
        s_lshr_b32 s7, s2, 6
        s_lshl_b32 s7, s7, 1
        s_add_u32 s7, s7, s47
        s_sub_u32 s7, s7, 6
        s_lshl_b32 s7, s7, 2
        s_add_u32 s7, s7, s6
        s_sub_u32 s7, s7, {w0}
        s_mul_i32 s7, s7, {64*3456}
        s_lshr_b32 s3, s46, 1
        s_mul_i32 s3, s3, 896
        s_add_u32 s7, s7, s3
        v_and_b32 v1, 63, v0
        v_mul_u32_u24 v1, 3456, v1
        """)
        for i in range(7):
            a(f"buffer_load_dword v126, v1, s[24:27], s7 offen offset:{i*128}")
    def body(a, X, t):
        A0 = 64; U = 72
        for p in range(2):
            for i in range(4): a(f"v_mov_b32 v{A0+i}, 0")
            for i in range(40):
                if p == 0 and i % 4 == 0:
                    a(f"s_waitcnt vmcnt({9 - i//4})")
                a(f"v_dot2_f32_bf16 v{A0+(i&1)}, v{X+i}, s60, v{A0+(i&1)}")
                a(f"v_dot2_f32_bf16 v{A0+2+(i&1)}, v{X+i}, v{X+i}, v{A0+2+(i&1)}")
            if p == 0 and pfw and pfmode == 1: pfw_code(0)
            a("s_nop 2")
            a(f"v_add_f32 v{A0}, v{A0}, v{A0+1}")
            a(f"v_add_f32 v{A0+2}, v{A0+2}, v{A0+3}")
            for dpp in ("quad_perm:[1,0,3,2]", "quad_perm:[2,3,0,1]", "row_half_mirror"):
                a("s_nop 0")
                a(f"v_add_f32_dpp v{A0}, v{A0}, v{A0} {dpp} row_mask:0xf bank_mask:0xf")
                a(f"v_add_f32_dpp v{A0+2}, v{A0+2}, v{A0+2} {dpp} row_mask:0xf bank_mask:0xf")
            ln_stats(a, A0, A0 + 2, A0 + 1, 61, 62)
            a(f"v_mul_f32 v{A0}, v{A0}, v{A0+2}")
            for i in range(40):
                u = U + 2 * (i & 3)
                a(f"v_lshlrev_b32 v{u}, 16, v{X+i}")
                a(f"v_and_b32 v{u+1}, 0xffff0000, v{X+i}")
                a(f"v_pk_fma_f32 {vr(u,2)}, {vr(u,2)}, {vr(A0+2,2)}, {vr(A0,2)} op_sel_hi:[1,0,0] neg_lo:[0,0,1] neg_hi:[0,0,1]")
                a(f"v_cvt_pk_bf16_f32 v{X+i}, v{u}, v{u+1}")
    transpose_task(a, 8, None, 12, 20, 8, 21, 22, body=body)
    if pfw and pfmode == 3: pfw_code(0)
    if stamp:
        a("s_mov_b32 s94, s90"); a("s_mov_b32 s96, s90")
        stamp_end(a, 8, 63, 3, nw=8)
    a("s_endpgm")
    a.label(f"{name}_pf")
    a(f"""
    s_waitcnt lgkmcnt(0)
    s_cmp_lg_u32 s2, 48
    s_cbranch_scc1 {name}_nz
    s_cmp_lg_u32 s6, 4
    s_cbranch_scc1 {name}_nz
    """)
    srd(a, 8, 4, 5, 0, WS_END)
    a(f"""
    v_and_b32 v1, 63, v0
    v_lshlrev_b32 v1, 4, v1
    v_mov_b32 v4, 0
    v_mov_b32 v5, 0
    v_mov_b32 v6, 0
    v_mov_b32 v7, 0
    s_mov_b32 s20, {FL_OFF}
    buffer_store_dwordx4 v[4:7], v1, s[8:11], s20 offen
    """)
    a.label(f"{name}_nz")
    if pfc:
        a(f"""
        s_getpc_b64 s[20:21]
        """)
        a.label(f"{name}_pc")
        a(f"""
        s_add_u32 s20, s20, {pfc[0]}-{name}_pc
        s_addc_u32 s21, s21, 0
        s_sub_u32 s7, s6, 4
        s_lshl_b32 s7, s7, 13
        v_and_b32 v1, 63, v0
        v_lshlrev_b32 v1, 7, v1
        v_add_u32 v1, s7, v1
        v_min_u32 v1, {pfc[1]}-{pfc[0]}, v1
        global_load_dword v2, v1, s[20:21]
        """)
    if pfw and pfmode == 0: pfw_code(4)
    if pfw and pfmode == 5:
        srd(a, 24, 64, 65, 0, 2048 * 3456)
        a(f"""
        s_lshr_b32 s7, s2, 6
        s_lshl_b32 s7, s7, 1
        s_add_u32 s7, s7, s47
        s_sub_u32 s7, s7, 6
        s_lshl_b32 s7, s7, 2
        s_add_u32 s7, s7, s6
        s_sub_u32 s7, s7, 4
        s_lshl_b32 s7, s7, 3
        s_add_u32 s7, s7, s46                ; 0..255
        s_mul_i32 s7, s7, {8*3456}
        v_and_b32 v1, 63, v0
        v_min_u32 v1, 53, v1
        v_lshlrev_b32 v1, 7, v1
        """)
        for i in range(4):
            a(f"buffer_load_dword v126, v1, s[24:27], s7 offen")
            a(f"s_add_u32 s7, s7, {54*128}")
    if pfw and pfmode == 2:
        a("s_waitcnt vmcnt(0)")
        a("global_load_dword v2, v1, s[20:21] sc1")
        a("s_waitcnt vmcnt(0)")
        pfw_code(4)
    a.label(f"{name}_end")
    a("s_endpgm")
    return finish(a, name, NV, (256, 512, LDS_K1))
```

```python
from asmlib import *
from layout import *
from gemm import *
import attn
from attn import kd, CHUNK
from kernels import finish, stamp_begin, stamp_mid, stamp_end, GS

AFLAG = 4 * CHUNK
GFLAG = AFLAG + 1024
GBASE = GFLAG + 1024
LDS_K2 = GBASE + 4 * REGION

def k2_kernel(name="k2_kernel", stamp=False, NB=3, with_b1=True, with_b2=True, gprio=0, eprio=2, aprio=0, sprio=0, nb2=14, pf=True, pf1=0, akw={}, gkw={}):
    a = Asm()
    a.label(name)
    a(f"""
    s_cmp_ge_u32 s2, 256
    s_cbranch_scc1 {name}_end
    s_load_dwordx2 s[4:5], s[0:1], 96
    s_load_dwordx4 s[40:43], s[0:1], 48
    s_load_dwordx2 s[44:45], s[0:1], 32
    s_load_dwordx2 s[56:57], s[0:1], 64
    s_load_dwordx2 s[58:59], s[0:1], 0
    v_lshrrev_b32 v1, 6, v0
    s_nop 0
    v_readfirstlane_b32 s6, v1
    """)
    if stamp: stamp_begin(a)
    a(f"""
    s_nop 1
    s_cmp_ge_u32 s6, 4
    s_cbranch_scc1 {name}_g
    """)
    S = dict(attn.SREG)
    if aprio: a(f"s_setprio {aprio}")
    attn.attn_flaginit(a, S)
    a("s_waitcnt lgkmcnt(0)")
    a("s_barrier")
    attn.attn_prologue(a, S, "flag", name)
    a("s_mov_b64 s[26:27], vcc")
    attn.attn_firstsync(a, S, name)
    if stamp: stamp_mid(a, 0)
    attn.attn_main(a, S, "flag", name, **akw)
    if stamp: stamp_mid(a, 1)
    attn.attn_epilogue(a, S)
    if stamp: stamp_end(a, 8, 6, 0, nw=8)
    a("s_endpgm")
    attn.attn_spins(a, S, name)
    a.label(f"{name}_g")
    S = dict(GS); g = G(NB=NB)
    VFA, VPA, VONE, VPOLL = 4, 5, 6, 7
    JUNK = g.nv
    a(f"""
    s_mov_b32 s63, s6
    s_sub_u32 s6, s6, 4
    s_and_b32 s46, s2, 7
    s_lshr_b32 s47, s2, 3
    s_and_b32 s48, s46, 1
    s_lshl_b32 s48, s48, 2
    s_and_b32 s49, s47, 3
    s_add_u32 s48, s48, s49          ; db
    s_lshr_b32 s49, s46, 1
    s_lshr_b32 s50, s47, 2
    s_lshl_b32 s60, s46, 2
    s_lshr_b32 s64, s47, 3
    s_add_u32 s60, s60, s64          ; sb (B2)
    s_and_b32 s64, s47, 7            ; db (B2)
    s_mul_i32 s49, s49, 7
    s_add_u32 s49, s49, s50          ; fb
    s_mul_i32 s52, s48, 1280         ; db*80*16
    s_mov_b32 s61, 1
    s_lshl_b32 s7, s6, 8
    s_add_u32 s7, s7, {GFLAG}
    v_and_b32 v{VFA}, 63, v0
    v_lshl_add_u32 v{VFA}, v{VFA}, 2, s7
    v_and_b32 v{VPA}, 3, v0
    v_mul_u32_u24 v{VPA}, 260, v{VPA}
    v_add_u32 v{VPA}, {GFLAG}, v{VPA}
    v_mov_b32 v{VONE}, 0
    ds_write_b32 v{VFA}, v{VONE}
    v_mov_b32 v{VONE}, 1
    s_waitcnt lgkmcnt(0)
    s_barrier
    """)
    if sprio: a(f"s_setprio {sprio}")
    def pf_w2():
        if not pf: return
        srd(a, 24, 56, 57, 0, 1728 * 4096)
        a(f"""
        s_lshr_b32 s7, s2, 3
        s_lshl_b32 s7, s7, 2
        s_add_u32 s7, s7, s6
        s_lshl_b32 s7, s7, 16
        s_lshl_b32 s3, s46, 9
        s_add_u32 s7, s7, s3
        v_bfe_u32 v1, v0, 2, 4
        v_lshlrev_b32 v1, 12, v1
        v_and_b32 v{VPOLL}, 3, v0
        v_lshl_add_u32 v1, v{VPOLL}, 7, v1
        buffer_load_dword v{JUNK}, v1, s[24:27], s7 offen
        """)
    nsync = [0]
    def sync4():
        i = nsync[0]; nsync[0] += 1
        a(f"ds_add_u32 v{VFA}, v{VONE}")
        a.label(f"{name}_sy{i}")
        a(f"""
        ds_read_b32 v{VPOLL}, v{VPA}
        s_waitcnt lgkmcnt(0)
        v_cmp_gt_u32 vcc, s61, v{VPOLL}
        s_nop 4
        s_cbranch_vccz {name}_sz{i}
        s_sleep 2
        s_branch {name}_sy{i}
        """)
        a.label(f"{name}_sz{i}")
        a("s_add_u32 s61, s61, 1")
    srd(a, 8, 4, 5, 0, WS_END)
    setup_lane(a, g, S, GBASE)
    setup_F(a, g, g.vF, 10240)
    a(f"""
    s_cmp_eq_u32 s50, 7
    s_cbranch_scc1 {name}_wo
    s_cmp_ge_u32 s49, 27
    s_cbranch_scc1 {name}_nob1
    """)
    if with_b1:
        srd(a, 12, 40, 41, 0, 2048 * 3456)
        srd(a, 16, 4, 5, HF_OFF, HF_SZ)
        srd(a, 20, 42, 43, 0, 1728 * 2)
        P = dict(mode="TF", srdT=12, srdF=16, strideT=3456, planeF=10240, W=4, TisA=True)
        setup_T(a, g, 3456)
        a("s_lshl_b32 s51, s49, 7")
        init_offsets(a, g, S, P, 51, 52)
        prologue_loads(a, g, S, P)
        a(f"""
        s_lshl_b32 s53, s6, 5
        s_add_u32 s53, s53, s51
        v_lshlrev_b32 v1, 3, v{g.tmp+2}
        buffer_load_dwordx2 v[2:3], v1, s[20:23], s53 offen
        s_lshl_b32 s54, s49, 3
        s_lshl_b32 s55, s6, 1
        s_add_u32 s54, s54, s55
        s_mul_i32 s54, s54, 10240
        s_add_u32 s54, s54, s52
        s_add_u32 s54, s54, {UF_OFF}
        """)
        zero_acc(a, g)
        a(f"s_setprio {gprio}")
        main_loop(a, g, S, P, name + "_b1", 16, **gkw)
        a(f"s_setprio {eprio}")
        if stamp: stamp_mid(a, 0)
        reduce4(a, g, S, GBASE, sync4, mid=pf_w2)
        b1_epilogue(a, g, S, 8, 54, 2, store_mod=" sc1" if with_b2 else "")
        if with_b2:
            a("s_waitcnt vmcnt(0)")
            sync4()
            a(f"""
            s_cmp_lg_u32 s6, 0
            s_cbranch_scc1 {name}_b2
            s_lshl_b32 s7, s48, 7
            s_add_u32 s7, s7, {FL_OFF}
            v_mov_b32 v1, s7
            s_mov_b64 exec, 1
            global_atomic_add v1, v{VONE}, s[4:5] sc1
            s_mov_b64 exec, -1
            """)
        a(f"s_branch {name}_b2")
    else:
        a(f"s_branch {name}_b2")
    a.label(f"{name}_wo")
    a(f"s_setprio {eprio}")
    if pf1:
        srd(a, 24, 40, 41, 0, 2048 * 3456)
        a(f"""
        s_and_b32 s7, s47, 3
        s_lshl_b32 s7, s7, 2
        s_add_u32 s7, s7, s6
        s_add_u32 s7, s7, {pf1}
        s_mul_i32 s7, s7, {64*3456}
        s_lshr_b32 s3, s46, 1
        s_mul_i32 s3, s3, 896
        s_add_u32 s7, s7, s3
        v_and_b32 v1, 63, v0
        v_mul_u32_u24 v1, 3456, v1
        """)
        for r in range(2):
            for i in range(7):
                a(f"buffer_load_dword v{JUNK}, v1, s[24:27], s7 offen offset:{i*128}")
            a(f"s_add_u32 s7, s7, {16*64*3456}")
    pf_w2()
    a(f"""
    s_and_b32 s47, s47, 3
    s_lshl_b32 s47, s47, 3
    s_add_u32 s47, s47, s46
    s_lshl_b32 s47, s47, 2
    s_add_u32 s47, s47, s6           ; task
    s_cmp_ge_u32 s47, 80
    s_cbranch_scc1 {name}_b2
    s_mul_i32 s51, s47, 10240
    s_add_u32 s53, s51, {WOF_OFF}
    """)
    srd(a, 12, 44, 45, 0, 640 * 1280)
    transpose_task(a, 8, S, 12, 51, 8, 53, S["lb"], store_mod=" sc1")
    a(f"""
    s_waitcnt vmcnt(0)
    v_and_b32 v1, 63, v0
    v_lshlrev_b32 v1, 7, v1
    v_add_u32 v1, {FL_OFF}, v1
    s_mov_b64 exec, 0xff
    global_atomic_add v1, v{VONE}, s[4:5] sc1
    s_mov_b64 exec, -1
    s_branch {name}_b2
    """)
    a.label(f"{name}_nob1")
    a(f"s_setprio {eprio}")
    pf_w2()
    a.label(f"{name}_b2")
    if with_b2:
        srd(a, 12, 56, 57, 0, 1728 * 4096)
        srd(a, 16, 4, 5, UF_OFF, UF_SZ)
        P2 = dict(mode="TF", srdT=12, srdF=16, strideT=4096, planeF=10240, W=4, TisA=False, fmod=" sc1")
        a(f"v_bfe_u32 v{g.tmp+2}, v0, 4, 2")
        setup_T(a, g, 4096)
        a("s_lshl_b32 s51, s60, 7")
        a("s_mov_b32 s48, s64")
        a("s_mul_i32 s52, s48, 1280")
        init_offsets(a, g, S, P2, 51, 52)
        srd(a, 20, 58, 59, 0, 2048 * 1280)
        a(f"""
        s_lshl_b32 s53, s60, 2
        s_add_u32 s53, s53, s6
        s_mul_i32 s53, s53, {16*1280}
        s_mul_i32 s54, s48, 160
        s_add_u32 s53, s53, s54
        v_and_b32 v1, 15, v0
        v_mul_u32_u24 v1, 1280, v1
        v_lshl_add_u32 v1, v{g.tmp+2}, 3, v1
        """)
        for j in range(5):
            a(f"buffer_load_dwordx2 {vr(g.TB+2*j,2)}, v1, s[20:23], s53 offen offset:{j*32}")
        for b in range(NB - 1): issue(a, g, S, b, P2, part="T")
        for i in range(20, 80): a(f"v_mov_b32 v{g.ACC+i}, 0")
        a(f"s_waitcnt vmcnt({4*(NB-1)})")
        for i in range(10):
            a(f"v_lshlrev_b32 v{g.ACC+2*i}, 16, v{g.TB+i}")
            a(f"v_and_b32 v{g.ACC+2*i+1}, 0xffff0000, v{g.TB+i}")
        a(f"""
        s_cmp_lg_u32 s6, 0
        s_cbranch_scc1 {name}_go
        s_lshl_b32 s7, s48, 7
        s_add_u32 s7, s7, {FL_OFF}
        v_mov_b32 v1, s7
        s_mov_b32 s62, 0
        """)
        a.label(f"{name}_poll")
        a(f"""
        global_load_dword v2, v1, s[4:5] sc1
        s_waitcnt vmcnt(0)
        v_readfirstlane_b32 s7, v2
        s_add_u32 s62, s62, 1
        s_cmp_ge_u32 s62, 0x100000
        s_cbranch_scc1 {name}_go
        s_cmp_ge_u32 s7, {27 + 80}
        s_cbranch_scc1 {name}_go
        s_sleep 8
        s_branch {name}_poll
        """)
        a.label(f"{name}_go")
        sync4()
        if stamp: stamp_mid(a, 1)
        for b in range(NB - 1): issue(a, g, S, b, P2, part="F")
        a(f"s_setprio {gprio}")
        main_loop(a, g, S, P2, name + "_b2l", nb2, midentry=True, **gkw)
        a(f"s_setprio {eprio}")
        reduce4(a, g, S, GBASE, sync4)
        a(f"""
        s_lshl_b32 s7, s2, 2
        s_add_u32 s7, s7, s6
        s_mul_i32 s7, s7, 5120
        s_add_u32 s7, s7, {Y_OFF}
        s_add_u32 s53, s7, 4096
        """)
        for j in range(4):
            a(f"buffer_store_dwordx4 {vr(g.ACC+4*j,4)}, v{g.tmp}, s[8:11], s7 offen offset:{j*1024}")
        a(f"buffer_store_dwordx4 {vr(g.ACC+16,4)}, v{g.tmp}, s[8:11], s53 offen")
        a(f"""
        s_lshr_b32 s7, s2, 3
        s_lshl_b32 s7, s7, 2
        s_add_u32 s7, s7, s6
        s_mul_i32 s7, s7, 6400
        s_add_u32 s7, s7, {WOF_OFF}
        v_and_b32 v1, 63, v0
        v_min_u32 v1, 49, v1
        v_lshlrev_b32 v1, 7, v1
        buffer_load_dword v2, v1, s[8:11], s7 offen
        """)
    elif stamp:
        stamp_mid(a, 1)
    if stamp: stamp_end(a, 8, 63, 0, nw=8)
    a.label(f"{name}_end")
    a("s_endpgm")
    return finish(a, name, max(g.nv + 1, attn.NV_ATT), (256, 512, LDS_K2))
```

```python
from k1b import k1_kernel
from k2 import k2_kernel
from k3b import k3_kernel
from build import build
PFC = ("k2_kernel", "code_end")
def mk(nm, k1kw={}, k2kw={}, k3kw={}):
    open(f"h_{nm}.s", "w").write(build([k1_kernel(**k1kw), k2_kernel(**k2kw), k3_kernel(**k3kw)]))
I = dict(inter=True)
mk("a", dict(pfmode=5, pfc=PFC), dict(gkw=I))
mk("b", dict(pfmode=9, pfc=PFC), dict(gkw=I))
mk("c", dict(pfmode=5), dict(gkw=I))
mk("d", dict(pfmode=0, pfc=PFC), dict(gkw=I))
mk("e", dict(pfmode=5, pfc=PFC), dict(gkw=I, pf=False))
```

```python
from asmlib import *
from layout import *
from gemm import f2u

V_L16 = 1
V_AV  = 2
V_AK1 = 3
V_T0  = 4
QA0, QB0, QA1, QB1 = 8, 12, 16, 18
K0 = [20, 24]; K1 = [28, 30]
VV = [[32, 36], [40, 44]]
PA, PB = 48, 56
SA, SB, OA, OB = 64, 80, 96, 112
TMP = 128
V_FLAG = 144
V_ONE = 145
V_POLL = 146
V_PADDR = 147
MA, MB = 148, 149
NV_ATT = 152

CHUNK = 12288
FLAG_SZ = 5 * 1024
T_BOUND = 48.0
ONE_ROW = V_OFF_T + 26 * 16

def mfma32(d, a, b, c):
    cs = "0" if c is None else vr(c, 16)
    return f"v_mfma_f32_32x32x16_bf16 {vr(d,16)}, {vr(a,4)}, {vr(b,4)}, {cs}"
def mfma8(d, a, b):
    return f"v_mfma_f32_32x32x8_bf16 {vr(d,16)}, {vr(a,2)}, {vr(b,2)}, {vr(d,16)}"

SREG = dict(ws=4, w=6, wg=2, srdw=8, t0=12, t1=13, t2=14, soff=15, wb=16, qo=17, oo=18, cnt=19, slow=20, srdk=24, flag_addr=4*CHUNK)

def valu_stream(S_, P_):
    out = []
    for k in range(4):
        for i in range(4):
            out.append(f"v_exp_f32 {vr(S_+4*k+i)}, {vr(S_+4*k+i)}")
        out.append(f"v_cvt_pk_bf16_f32 {vr(P_+2*k)}, {vr(S_+4*k)}, {vr(S_+4*k+1)}")
        out.append(f"v_cvt_pk_bf16_f32 {vr(P_+2*k+1)}, {vr(S_+4*k+2)}, {vr(S_+4*k+3)}")
    return out

def emit_phase(a, mf, aux, valu, pat):
    p = 0
    for k in range(4):
        a(mf[k])
        for x in aux[k]:
            if x.startswith("LABEL "): a.label(x[6:])
            else: a(x)
        for x in valu[p:p + pat[k]]: a(x)
        p += pat[k]
    assert p == len(valu)

def flaginit(a, S):
    t0, w = S["t0"], S["w"]
    a(f"""
    s_lshl_b32 s{t0}, s{w}, 8
    s_add_u32 s{t0}, s{t0}, {S['flag_addr']}
    v_and_b32 v{V_T0}, 63, v0
    v_lshl_add_u32 v{V_FLAG}, v{V_T0}, 2, s{t0}
    v_mov_b32 v{V_ONE}, 0
    """)
    for i in range(5): a(f"ds_write_b32 v{V_FLAG}, v{V_ONE} offset:{i*1024}")
    a(f"""
    v_mov_b32 v{V_PADDR}, {S['flag_addr'] + 4096}
    v_mov_b32 v{V_ONE}, 1
    v_lshlrev_b32 v{V_L16}, 4, v{V_T0}
    """)

def loader(a, S, tag, ws, prio, lsleep=2, pf_mid=None, pf_end=None, pf_at=5):
    F = S["flag_addr"]
    a(f"""
    s_setprio {prio}
    s_add_u32 s8, s{ws}, {KV_OFF}
    s_addc_u32 s9, s{ws+1}, 0
    s_and_b32 s9, s9, 0xffff
    s_mov_b32 s10, {KV_SZ}
    s_mov_b32 s11, 0x20000
    v_and_b32 v1, 63, v0
    v_lshlrev_b32 v1, 4, v1
    v_and_b32 v2, 3, v0
    v_mul_u32_u24 v2, 260, v2
    v_mov_b32 v5, 1
    s_mov_b32 s12, 0
    s_mov_b32 s13, 4                 ; chunk n
    v_mov_b32 v3, {F + 4096}
    """)
    def iss(n):
        for h in range(3):
            a(f"s_mov_b32 m0, {n*CHUNK + h*4096}")
            a("s_nop 0")
            for i in range(4):
                a(f"buffer_load_dwordx4 v1, s[8:11], s12 offen offset:{i*1024} lds")
            a(f"s_add_u32 s12, s12, 4096")
    def pub(n, left):
        a(f"s_waitcnt vmcnt({left})")
        a("s_mov_b64 exec, 1")
        a(f"ds_add_u32 v3, v5 offset:{4*n}")
        a("s_mov_b64 exec, -1")
    iss(0); iss(1); pub(0, 12); iss(2); pub(1, 12); iss(3); pub(2, 12); pub(3, 0)
    a.label(f"{tag}_ld")
    a(f"""
    s_and_b32 s14, s13, 3
    s_add_u32 s15, s14, 1
    s_and_b32 s15, s15, 3
    s_lshl_b32 s15, s15, 10
    s_add_u32 s15, s15, {F}
    v_add_u32 v3, s15, v2
    s_sub_u32 s15, s13, 3
    s_lshr_b32 s15, s15, 2
    """)
    a.label(f"{tag}_ld_w")
    a(f"""
    ds_read_b32 v4, v3
    s_waitcnt lgkmcnt(0)
    v_cmp_ge_u32 vcc, s15, v4
    s_nop 4
    s_cbranch_vccz {tag}_ld_go
    s_sleep {lsleep}
    s_branch {tag}_ld_w
    """)
    a.label(f"{tag}_ld_go")
    a(f"s_mul_i32 s16, s14, {CHUNK}")
    for h in range(3):
        a(f"s_add_u32 m0, s16, {h*4096}")
        a("s_nop 0")
        for i in range(4):
            a(f"buffer_load_dwordx4 v1, s[8:11], s12 offen offset:{i*1024} lds")
        a(f"s_add_u32 s12, s12, 4096")
    a(f"""
    s_lshl_b32 s14, s14, 2
    s_add_u32 s14, s14, {F + 4096}
    v_mov_b32 v3, s14
    s_add_u32 s13, s13, 1
    s_waitcnt vmcnt(0)
    s_mov_b64 exec, 1
    ds_add_u32 v3, v5
    s_mov_b64 exec, -1
    """)
    if pf_mid:
        a(f"s_cmp_lg_u32 s13, {pf_at}")
        a(f"s_cbranch_scc1 {tag}_ld_np")
        pf_mid()
        a.label(f"{tag}_ld_np")
    a(f"""
    s_cmp_lg_u32 s13, 16
    s_cbranch_scc1 {tag}_ld
    """)
    if pf_end: pf_end()
    a("s_endpgm")

def prologue(a, S, tag, mid=None):
    ws, w, wg = S["ws"], S["w"], S["wg"]
    srdw, srdk = S["srdw"], S["srdk"]
    t0, t1, t2 = S["t0"], S["t1"], S["t2"]
    so = S["soff"]; wb = S["wb"]
    a(f"""
    s_mov_b32 s{srdw}, s{ws}
    s_and_b32 s{srdw+1}, s{ws+1}, 0xffff
    s_mov_b32 s{srdw+2}, {WS_END}
    s_mov_b32 s{srdw+3}, 0x20000
    v_and_b32 v{V_T0+1}, 31, v0
    v_bfe_u32 v{V_T0+2}, v0, 5, 1          ; hf
    v_lshlrev_b32 v{TMP}, 3, v{V_T0+1}
    v_lshl_add_u32 v{TMP+1}, v{V_T0+2}, 14, v{TMP}
    v_lshl_add_u32 v{TMP+2}, v{V_T0+2}, 30, v{TMP}
    s_bfe_u32 s{t0}, s{wg}, 0x20003
    s_lshl_b32 s{t0}, s{t0}, 2
    s_add_u32 s{t0}, s{t0}, s{w}
    s_and_b32 s{t1}, s{wg}, 7
    s_lshl_b32 s{t1}, s{t1}, 3
    s_lshr_b32 s{t2}, s{wg}, 5
    s_add_u32 s{t1}, s{t1}, s{t2}
    s_mul_i32 s{t2}, s{t0}, {10*16384}
    s_lshl_b32 s{S['qo']}, s{t1}, 8
    s_add_u32 s{t2}, s{t2}, s{S['qo']}
    s_mul_i32 s{S['oo']}, s{t0}, {5*32768}
    s_lshl_b32 s{t1}, s{t1}, 9
    s_add_u32 s{S['oo']}, s{S['oo']}, s{t1}
    s_add_u32 s{S['oo']}, s{S['oo']}, {OF_OFF}
    """)
    assert QP_OFF == 0
    for (q0, q1, hoff) in ((QA0, QA1, 0), (QB0, QB1, 5)):
        a(f"s_add_u32 s{t0}, s{t2}, {hoff*16384}")
        a(f"buffer_load_dwordx2 {vr(q0,2)}, v{TMP+1}, {sr(srdw,4)}, s{t0} offen")
        a(f"s_add_u32 s{t0}, s{t2}, {(hoff+2)*16384}")
        a(f"buffer_load_dwordx2 {vr(q0+2,2)}, v{TMP+1}, {sr(srdw,4)}, s{t0} offen")
        a(f"s_add_u32 s{t0}, s{t2}, {(hoff+4)*16384}")
        a(f"buffer_load_dwordx2 {vr(q1,2)}, v{TMP+2}, {sr(srdw,4)}, s{t0} offen")
    a(f"""
    v_lshlrev_b32 v{TMP+3}, 2, v{V_T0}
    s_mov_b32 s{t0}, {KM_OFF}
    buffer_load_dword v{TMP+4}, v{TMP+3}, {sr(srdw,4)}, s{t0} offen
    """)
    if mid: mid()
    a(f"""
    v_min_u32 v{V_AV}, 27, v{V_T0+1}
    v_lshlrev_b32 v{V_AV}, 4, v{V_AV}
    v_mul_u32_u24 v{TMP+5}, {V_PLANE}, v{V_T0+2}
    v_add_u32 v{V_AV}, v{V_AV}, v{TMP+5}
    v_add_u32 v{V_AV}, {V_OFF_T}, v{V_AV}
    v_add_u32 v{V_AK1}, {K1_OFF_T}, v{TMP}
    v_cmp_eq_u32 vcc, 1, v{V_T0+2}
    v_mov_b32 v{TMP+5}, {ONE_ROW}
    v_lshlrev_b32 v{V_T0+3}, 4, v{V_T0+1}
    v_cndmask_b32_e64 v{V_AK1}, v{V_AK1}, v{TMP+5}, vcc
    v_lshl_add_u32 v{V_T0+3}, v{V_T0+2}, 15, v{V_T0+3}
    """)
    for i in range(16):
        a(f"v_mov_b32 v{OA+i}, 0")
        a(f"v_mov_b32 v{OB+i}, 0")
    for i in range(8):
        a(f"v_mov_b32 v{PB+i}, 0")
        a(f"v_mov_b32 v{VV[1][0]+i}, 0")
    a("s_waitcnt vmcnt(0)")
    km = TMP + 4
    tA, tB = TMP + 6, TMP + 8
    for t, q0, q1 in ((tA, QA0, QA1), (tB, QB0, QB1)):
        a(f"v_dot2_f32_bf16 v{t}, v{q0}, v{q0}, 0")
        for r in (q0 + 1, q0 + 2, q0 + 3, q1, q1 + 1):
            a(f"v_dot2_f32_bf16 v{t}, v{r}, v{r}, v{t}")
    for r in (8, 4, 2, 1):
        a(f"v_max_f32_dpp v{km}, v{km}, v{km} row_ror:{r} row_mask:0xf bank_mask:0xf")
        if r == 8: a(f"v_mov_b32 v{tA+1}, v{tA}")
        if r == 4: a(f"v_mov_b32 v{tB+1}, v{tB}")
        a("s_nop 0" if r >= 4 else "s_nop 1")
    a(f"v_mov_b32 v{km+1}, v{km}")
    a(f"v_permlane32_swap_b32 v{tA}, v{tA+1}")
    a(f"v_permlane32_swap_b32 v{tB}, v{tB+1}")
    a(f"v_permlane16_swap_b32 v{km}, v{km+1}")
    a(f"v_add_f32 v{tA}, v{tA}, v{tA+1}")
    a(f"v_add_f32 v{tB}, v{tB}, v{tB+1}")
    a(f"v_max_f32 v{km}, v{km}, v{km+1}")
    a(f"v_mov_b32 v{km+1}, v{km}")
    a("s_nop 1")
    a(f"v_permlane32_swap_b32 v{km}, v{km+1}")
    a("s_nop 1")
    a(f"v_max_f32 v{km}, v{km}, v{km+1}")
    for t in (tA, tB):
        a(f"v_mul_f32 v{t}, v{t}, v{km}")
    for t in (tA, tB):
        a(f"v_sqrt_f32 v{t}, v{t}")
    a("s_nop 0")
    a(f"v_max_f32 v{km}, v{tA}, v{tB}")
    for t in (tA, tB):
        a(f"v_cvt_pk_bf16_f32 v{t+1}, -v{t}, 0")
    a(f"v_mov_b32 v{km+1}, {hex(f2u(T_BOUND))}")
    a(f"v_cmp_nle_f32 {sr(S['slow'],2)}, v{km}, v{km+1}")
    a(f"v_cndmask_b32_e64 v{QA1}, v{QA1}, v{tA+1}, vcc")
    a(f"v_cndmask_b32_e64 v{QB1}, v{QB1}, v{tB+1}, vcc")
    a.label(f"{tag}_fs")
    a(f"ds_read_b32 v{V_POLL}, v{V_PADDR}")
    a("s_waitcnt lgkmcnt(0)")
    a(f"v_cmp_gt_u32 vcc, 1, v{V_POLL}")
    a("s_nop 4")
    a(f"s_cbranch_vccnz {tag}_fs")

def ds_k(slot, tile, buf):
    o = slot * CHUNK + tile * TILE_B
    return [f"ds_read_b128 {vr(K0[buf],4)}, v{V_L16} offset:{o}",
            f"ds_read_b64 {vr(K1[buf],2)}, v{V_AK1} offset:{o}"]
def ds_v(slot, tile, buf):
    o = slot * CHUNK + tile * TILE_B
    return [f"ds_read_b128 {vr(VV[buf][0],4)}, v{V_AV} offset:{o}",
            f"ds_read_b128 {vr(VV[buf][1],4)}, v{V_AV} offset:{o+2*V_PLANE}"]

def cmp_landed(S, c):
    return f"v_cmp_{'ge' if c == 3 else 'gt'}_u32 vcc, s{S['cnt']}, v{V_POLL}"

def main(a, S, tag, pat=(6,6,6,6)):
    cnt = S["cnt"]
    for x in ds_k(0, 0, 0): a(x)
    a(f"s_mov_b32 s{cnt}, 1")
    a(f"s_cmp_lg_u64 {sr(S['slow'],2)}, 0")
    a(f"s_cbranch_scc1 {tag}_slow")
    a("s_waitcnt lgkmcnt(0)")
    a(mfma32(SA, K0[0], QA0, None))
    a(mfma8(SA, K1[0], QA1))
    for x in ds_k(0, 1, 1): a(x)
    for x in ds_v(0, 0, 0): a(x)
    a("s_nop 7")
    a(".p2align 6")
    a.label(f"{tag}_loop")
    for c in range(4):
        for t in range(4):
            j = 4 * c + t
            kb = vb = j & 1
            j2 = j + 2; j1 = j + 1
            dk = ds_k((j2 >> 2) & 3, j2 & 3, kb)
            dv = ds_v((j1 >> 2) & 3, j1 & 3, vb ^ 1)
            mf = [mfma32(SB, K0[kb], QB0, None), mfma8(SB, K1[kb], QB1),
                  mfma32(OB, VV[vb ^ 1][0], PB, OB), mfma32(OB, VV[vb ^ 1][1], PB + 4, OB)]
            aux = [[], [], [dk[1]], ["s_waitcnt lgkmcnt(0)"]]
            aux2 = [[dk[0]], [], [dv[0]], [dv[1]]]
            if t == 0: aux[0] = [f"ds_add_u32 v{V_FLAG}, v{V_ONE} offset:{c*1024}"]
            if t == 1:
                aux[0] = [f"ds_read_b32 v{V_POLL}, v{V_PADDR} offset:{((c+1)&3)*4}"]
                aux2[1] = [cmp_landed(S, c)]
            if t == 2: aux[0] = [f"s_cbranch_vccnz {tag}_spin{c}", f"LABEL {tag}_back{c}"]
            if c == 3 and t == 3:
                aux[0] = [f"s_add_u32 s{cnt}, s{cnt}, 1"]
                aux2[1] = [f"s_cmp_lg_u32 s{cnt}, 5"]
            emit_phase(a, mf, aux, valu_stream(SA, PA), pat)
            mf = [mfma32(SA, K0[kb ^ 1], QA0, None), mfma8(SA, K1[kb ^ 1], QA1),
                  mfma32(OA, VV[vb][0], PA, OA), mfma32(OA, VV[vb][1], PA + 4, OA)]
            emit_phase(a, mf, aux2, valu_stream(SB, PB), pat)
    a(f"s_cbranch_scc1 {tag}_loop")
    a("s_nop 1")
    a(mfma32(OB, VV[1][0], PB, OB))
    a(mfma32(OB, VV[1][1], PB + 4, OB))
    a.label(f"{tag}_fin")

def tails(a, S, tag):
    cnt = S["cnt"]
    t0, t1, t2 = S["t0"], S["t1"], S["t2"]
    for c in range(4):
        a.label(f"{tag}_spin{c}")
        if c == 3:
            a(f"s_cmp_eq_u32 s{cnt}, 4")
            a(f"s_cbranch_scc1 {tag}_back{c}")
        a(f"ds_read_b32 v{V_POLL}, v{V_PADDR} offset:{((c+1)&3)*4}")
        a("s_waitcnt lgkmcnt(0)")
        a(cmp_landed(S, c))
        a("s_nop 4")
        a(f"s_cbranch_vccnz {tag}_spin{c}")
        a(f"s_branch {tag}_back{c}")
    a.label(f"{tag}_slow")
    a(f"""
    s_mov_b32 exec_lo, 0
    v_mov_b32 v{QA1}, 0
    v_mov_b32 v{QB1}, 0
    s_mov_b32 exec_lo, -1
    v_mov_b32 v{MA}, 0xff7fffff
    v_mov_b32 v{MB}, 0xff7fffff
    s_mov_b32 s{t1}, 0
    """)
    a.label(f"{tag}_sl_chunk")
    a(f"""
    s_and_b32 s{t2}, s{t1}, 3
    s_lshl_b32 s{t0}, s{t2}, 10
    v_add_u32 v{TMP}, s{t0}, v{V_FLAG}
    s_lshl_b32 s{t0}, s{t2}, 2
    v_add_u32 v{TMP+1}, s{t0}, v{V_PADDR}
    s_lshr_b32 s{cnt}, s{t1}, 2
    s_waitcnt lgkmcnt(0)
    ds_add_u32 v{TMP}, v{V_ONE}
    """)
    a.label(f"{tag}_sl_w")
    a(f"""
    ds_read_b32 v{V_POLL}, v{TMP+1}
    s_waitcnt lgkmcnt(0)
    v_cmp_ge_u32 vcc, s{cnt}, v{V_POLL}
    s_nop 4
    s_cbranch_vccnz {tag}_sl_w
    s_mul_i32 s{t0}, s{t2}, {CHUNK}
    s_add_u32 s{t2}, s{t0}, {CHUNK}
    """)
    a.label(f"{tag}_sl_tile")
    a(f"""
    v_add_u32 v{TMP}, s{t0}, v{V_L16}
    v_add_u32 v{TMP+1}, s{t0}, v{V_AK1}
    v_add_u32 v{TMP+2}, s{t0}, v{V_AV}
    ds_read_b128 {vr(K0[0],4)}, v{TMP}
    ds_read_b64 {vr(K1[0],2)}, v{TMP+1}
    ds_read_b128 {vr(VV[0][0],4)}, v{TMP+2}
    ds_read_b128 {vr(VV[0][1],4)}, v{TMP+2} offset:{2*V_PLANE}
    s_waitcnt lgkmcnt(0)
    """)
    for (S_, Q0, Q1) in ((SA, QA0, QA1), (SB, QB0, QB1)):
        a(mfma32(S_, K0[0], Q0, None))
        a(mfma8(S_, K1[0], Q1))
    a("s_nop 7"); a("s_nop 7")
    for (S_, P_, O_, M_) in ((SA, PA, OA, MA), (SB, PB, OB, MB)):
        a(f"v_max3_f32 v{TMP}, v{S_}, v{S_+1}, v{M_}")
        for i in range(2, 16, 2):
            a(f"v_max3_f32 v{TMP}, v{S_+i}, v{S_+i+1}, v{TMP}")
        a(f"v_mov_b32 v{TMP+1}, v{TMP}")
        a("s_nop 1")
        a(f"v_permlane32_swap_b32 v{TMP}, v{TMP+1}")
        a("s_nop 1")
        a(f"v_max_f32 v{TMP}, v{TMP}, v{TMP+1}")
        a(f"v_sub_f32 v{TMP+1}, v{M_}, v{TMP}")
        a(f"v_exp_f32 v{TMP+1}, v{TMP+1}")
        a(f"v_mov_b32 v{M_}, v{TMP}")
        for i in range(16):
            a(f"v_mul_f32 v{O_+i}, v{O_+i}, v{TMP+1}")
        for i in range(16):
            a(f"v_sub_f32 v{S_+i}, v{S_+i}, v{M_}")
        for x in valu_stream(S_, P_): a(x)
        a("s_nop 1")
        a(mfma32(O_, VV[0][0], P_, O_))
        a(mfma32(O_, VV[0][1], P_ + 4, O_))
    a(f"""
    s_add_u32 s{t0}, s{t0}, {TILE_B}
    s_cmp_lg_u32 s{t0}, s{t2}
    s_cbranch_scc1 {tag}_sl_tile
    s_add_u32 s{t1}, s{t1}, 1
    s_cmp_lg_u32 s{t1}, 16
    s_cbranch_scc1 {tag}_sl_chunk
    s_branch {tag}_fin
    """)

def epilogue(a, S):
    srdw, oo, t0 = S["srdw"], S["oo"], S["t0"]
    E = PA
    def pk(d, s):
        a(f"v_cvt_pk_bf16_f32 v{d}, v{s}, v{s+1}")
        a(f"v_cvt_pk_bf16_f32 v{d+1}, v{s+2}, v{s+3}")
    def norm(O, t):
        a(f"v_mov_b32 v{t}, v{O+8}")
        a(f"v_mov_b32 v{t+1}, v{O+8}")
        a("s_nop 1")
        a(f"v_permlane32_swap_b32 v{t}, v{t+1}")
        a("s_nop 1")
        a(f"v_rcp_f32 v{t+1}, v{t+1}")
        a("s_nop 0")
        for i in range(0, 12, 2):
            a(f"v_pk_mul_f32 {vr(O+i,2)}, {vr(O+i,2)}, {vr(t,2)} op_sel:[0,1] op_sel_hi:[1,1]")
    a("s_nop 7")
    a("s_nop 1")
    norm(OA, TMP + 14)
    pk(TMP, OA); pk(TMP + 2, OA + 4); pk(TMP + 4, OA + 8)
    a("s_nop 1")
    for i in range(2):
        a(f"v_permlane32_swap_b32 v{TMP+i}, v{TMP+2+i}")
    norm(OB, TMP + 14)
    a(f"buffer_store_dwordx4 {vr(TMP,4)}, v{V_T0+3}, {sr(srdw,4)}, s{oo} offen")
    pk(TMP + 6, OB); pk(TMP + 12, OB + 4); pk(TMP + 10, OB + 8)
    a(f"s_add_u32 s{t0}, s{oo}, {2*32768}")
    for i in range(2):
        a(f"v_permlane32_swap_b32 v{TMP+6+i}, v{TMP+12+i}")
    a("s_nop 1")
    for i in range(2):
        a(f"v_permlane32_swap_b32 v{TMP+4+i}, v{TMP+12+i}")
    a("s_nop 1")
    for i in range(2):
        a(f"v_permlane32_swap_b32 v{TMP+12+i}, v{TMP+8+i}")
    a(f"buffer_store_dwordx4 {vr(TMP+4,4)}, v{V_T0+3}, {sr(srdw,4)}, s{t0} offen")
    a(f"s_add_u32 s{t0}, s{oo}, {4*32768}")
    a("s_mov_b32 exec_hi, 0")
    a(f"buffer_store_dwordx4 {vr(TMP+8,4)}, v{V_T0+3}, {sr(srdw,4)}, s{t0} offen")
```

```python
from asmlib import *
from layout import *

def mfma16(d, a, b, c):
    cs = "0" if c is None else vr(c, 4)
    return f"v_mfma_f32_16x16x32_bf16 {vr(d,4)}, {vr(a,4)}, {vr(b,4)}, {cs}"

def srd(a, d, lo, hi, off, size):
    if off:
        a(f"s_add_u32 s{d}, s{lo}, {off}")
        a(f"s_addc_u32 s{d+1}, s{hi}, 0")
        a(f"s_and_b32 s{d+1}, s{d+1}, 0xffff")
    else:
        a(f"s_mov_b32 s{d}, s{lo}")
        a(f"s_and_b32 s{d+1}, s{hi}, 0xffff")
    a(f"s_mov_b32 s{d+2}, {size}")
    a(f"s_mov_b32 s{d+3}, 0x20000")

class G:
    def __init__(self, NB=3, ff=False, vbase=8):
        self.NB = NB
        v = vbase
        self.ACC = v; v += 80
        self.FB = []
        for i in range(NB): self.FB.append(v); v += 20
        if ff:
            self.F2 = []
            for i in range(NB): self.F2.append(v); v += 16
            self.TB = self.F2[0]
        else:
            self.TB = v; v += 16
        self.vT = v; v += 1
        self.vF = v; v += 1
        self.vR = v; v += 4
        v += v & 1
        self.tmp = v; v += 12
        self.nv = v

class G2:
    NB = 3
    JUNK = 4; vT = 5; vF = 6; ONE = 7; vR = 8; ACC = 12
    FB = [92, 112, 132]; TB = 152; tmp = 112; nv = 168

RING = 4096
REGION = 23552
REDOFF = 8192

def setup_lane(a, g, S, ldsbase):
    w = S["w"]; t0 = S["t0"]; t = g.tmp
    a(f"""
    v_and_b32 v{t}, 63, v0
    v_and_b32 v{t+1}, 15, v0                 ; i4 / r
    v_bfe_u32 v{t+2}, v0, 4, 2               ; kg
    s_mul_i32 s{S['lb']}, s{w}, {REGION}
    s_add_u32 s{S['lb']}, s{S['lb']}, {ldsbase}
    """)
    a(f"""
    v_lshrrev_b32 v{t+3}, 1, v{t+2}
    v_lshlrev_b32 v{t+3}, 4, v{t+3}
    v_and_b32 v{t+4}, 1, v{t+2}
    v_lshl_add_u32 v{t+3}, v{t+4}, 2, v{t+3}
    v_lshrrev_b32 v{t+5}, 2, v{t+1}
    v_add_u32 v{t+3}, v{t+3}, v{t+5}
    v_lshlrev_b32 v{t+3}, 7, v{t+3}          ; slot*128
    v_and_b32 v{t+5}, 3, v{t+1}
    v_lshl_add_u32 v{t+3}, v{t+5}, 3, v{t+3} ; + (i4&3)*8
    v_add_u32 v{t+3}, s{S['lb']}, v{t+3}
    v_lshrrev_b32 v{t+5}, 3, v{t+1}
    v_lshl_add_u32 v{t+5}, v{t+4}, 1, v{t+5} ; swz
    """)
    for b in range(4):
        a(f"s_add_u32 s{t0}, s{w}, {b}")
        a(f"s_and_b32 s{t0}, s{t0}, 3")
        a(f"v_xor_b32 v{t+6}, s{t0}, v{t+5}")
        a(f"v_lshl_add_u32 v{g.vR+b}, v{t+6}, 5, v{t+3}")

def setup_T(a, g, stride):
    t = g.tmp
    a(f"""
    v_bfe_u32 v{t+6}, v0, 3, 2
    v_bfe_u32 v{t+7}, v0, 5, 1
    v_lshl_add_u32 v{t+6}, v{t+7}, 3, v{t+6}
    v_mul_u32_u24 v{g.vT}, {stride}, v{t+6}
    v_and_b32 v{t+6}, 7, v0
    v_lshlrev_b32 v{t+7}, 1, v{t+2}
    v_xor_b32 v{t+6}, v{t+6}, v{t+7}
    v_lshl_add_u32 v{g.vT}, v{t+6}, 4, v{g.vT}
    """)

def setup_F(a, g, vdst, plane):
    t = g.tmp
    a(f"""
    v_mul_u32_u24 v{vdst}, {plane}, v{t+2}
    v_lshl_add_u32 v{vdst}, v{t+1}, 4, v{vdst}
    """)

def issue(a, g, S, b, P, part="TF"):
    so4 = S["so4"]; sf = S["sf"]
    if part == "T":
        a(f"s_add_u32 m0, s{S['lb']}, {b*RING}")
        a("s_nop 0")
        for i in range(4):
            a(f"buffer_load_dwordx4 v{g.vT}, {sr(P['srdT'],4)}, s{so4+i} offen offset:{i*1024} lds")
        for i in range(4):
            a(f"s_add_u32 s{so4+i}, s{so4+i}, {32 * P['W'] * P['strideT']}")
        return
    if part == "F":
        for j in range(5):
            a(f"buffer_load_dwordx4 {vr(g.FB[b]+4*j,4)}, v{g.vF}, {sr(P['srdF'],4)}, s{sf} offen offset:{j*256}{P.get('fmod','')}")
        a(f"s_add_u32 s{sf}, s{sf}, {4*P['W']*P['planeF']}")
        return
    if P["mode"] == "TF":
        a(f"s_add_u32 m0, s{S['lb']}, {b*RING}")
        fm = P.get("fmod", "")
        a(f"buffer_load_dwordx4 {vr(g.FB[b],4)}, v{g.vF}, {sr(P['srdF'],4)}, s{sf} offen{fm}")
        for i in range(4):
            a(f"buffer_load_dwordx4 v{g.vT}, {sr(P['srdT'],4)}, s{so4+i} offen offset:{i*1024} lds")
        for j in range(1, 5):
            a(f"buffer_load_dwordx4 {vr(g.FB[b]+4*j,4)}, v{g.vF}, {sr(P['srdF'],4)}, s{sf} offen offset:{j*256}{fm}")
        inc = 32 * P["W"] * P["strideT"]
    else:
        for i in range(4):
            a(f"buffer_load_dwordx4 {vr(g.F2[b]+4*i,4)}, v{g.vT}, {sr(P['srdT'],4)}, s{so4+i} offen")
        for j in range(5):
            a(f"buffer_load_dwordx4 {vr(g.FB[b]+4*j,4)}, v{g.vF}, {sr(P['srdF'],4)}, s{sf} offen offset:{j*256}")
        inc = 4 * P["W"] * P["plane2"]
    for i in range(4):
        a(f"s_add_u32 s{so4+i}, s{so4+i}, {inc}")
    a(f"s_add_u32 s{sf}, s{sf}, {4*P['W']*P['planeF']}")

def init_offsets(a, g, S, P, sTbase, sFbase):
    so4 = S["so4"]; sf = S["sf"]; w = S["w"]; t0 = S["t0"]
    if P["mode"] == "TF":
        st = P["strideT"]
        a(f"s_mul_i32 s{t0}, s{w}, {32*st}")
        a(f"s_add_u32 s{so4}, s{t0}, s{sTbase}")
        for i in range(1, 4):
            a(f"s_add_u32 s{so4+i}, s{so4}, {(16*(i>>1)+4*(i&1))*st - 1024*i}")
    else:
        a(f"s_mul_i32 s{sf}, s{w}, {4*P['plane2']}")
        a(f"s_add_u32 s{sf}, s{sf}, s{sTbase}")
        for i in range(4):
            a(f"s_add_u32 s{t0}, s{w}, {i}")
            a(f"s_and_b32 s{t0}, s{t0}, 3")
            a(f"s_lshl_b32 s{t0}, s{t0}, 8")
            a(f"s_add_u32 s{so4+i}, s{sf}, s{t0}")
    a(f"s_mul_i32 s{t0}, s{w}, {4*P['planeF']}")
    a(f"s_add_u32 s{sf}, s{t0}, s{sFbase}")

def prologue_loads(a, g, S, P):
    for b in range(g.NB - 1):
        issue(a, g, S, b, P)

def zero_acc(a, g):
    for i in range(80):
        a(f"v_mov_b32 v{g.ACC+i}, 0")

class _L:
    def __init__(self): self.l = []
    def __call__(self, x): self.l += [y.strip() for y in x.split("\n") if y.strip()]

def roll_prologue(a, g, S, P, tpart=True, fpart=True):
    assert g.NB == 3
    if tpart and fpart:
        issue(a, g, S, 0, P, "T"); issue(a, g, S, 0, P, "F"); issue(a, g, S, 1, P, "T")
        issue(a, g, S, 1, P, "F"); issue(a, g, S, 2, P, "T")
    elif tpart:
        for b in range(3): issue(a, g, S, b, P, "T")
    else:
        for b in range(2): issue(a, g, S, b, P, "F")

def main_loop(a, g, S, P, tag, nsteps, midentry=False, czero=0, check=None, prios=None):
    NB = 3; cnt = S["cnt"]
    def rd(b, tb):
        return [f"ds_read_b64_tr_b16 {vr(g.TB+4*tb+2*t,2)}, v{g.vR+tb} offset:{b*RING+t*1024}" for t in range(2)]
    def groups(L):
        out = []
        for x in L:
            if x.startswith("buffer_"): out.append([x])
            else: out[-1].append(x)
        return out
    def sub(b, first):
        L = _L(); issue(L, g, S, b, P, "T")
        m0 = L.l[0]; Tl = groups(L.l[2:])
        L = _L(); issue(L, g, S, (b + 2) % NB, P, "F")
        Fl = groups(L.l)
        a(f"s_waitcnt vmcnt({9 if (first and midentry) else 13})")
        k = 0
        for tb in range(4):
            if prios and not first and (tb == 0 or prios[tb] != prios[tb - 1]): a(f"s_setprio {prios[tb]}")
            a("s_waitcnt lgkmcnt(6)")
            T = g.TB + 4 * tb
            for j in range(5):
                acc = g.ACC + (tb * 5 + j) * 4
                Fr = g.FB[b] + 4 * j
                c = None if (first and k >= czero) else acc
                if P["TisA"]: a(mfma16(acc, T, Fr, c))
                else: a(mfma16(acc, Fr, T, c))
                if k == 0:
                    a(m0)
                    if check: check()
                k += 1
                if tb < 3 and j in (1, 3) and Fl:
                    for x in Fl.pop(0): a(x)
                if tb == 3 and j < 4:
                    for x in Tl.pop(0): a(x)
            if tb == 0: a("s_waitcnt vmcnt(11)")
            for x in rd((b + 1) % NB, tb): a(x)
        assert not Fl and not Tl
    a(f"s_mov_b32 s{cnt}, {nsteps - 1}")
    a(f"s_waitcnt vmcnt({14 if midentry else 18})")
    for tb in range(4):
        for x in rd(0, tb): a(x)
    sub(0, True)
    a.label(f"{tag}_loop")
    for i in range(NB):
        sub((i + 1) % NB, False)
        a(f"s_sub_u32 s{cnt}, s{cnt}, 1")
        a(f"s_cmp_eq_u32 s{cnt}, 0")
        if i < NB - 1:
            a(f"s_cbranch_scc1 {tag}_done")
        else:
            a(f"s_cbranch_scc0 {tag}_loop")
    a.label(f"{tag}_done")

def reduce4(a, g, S, ldsbase, sync, mid=None):
    t = g.tmp; w = S["w"]; t0 = S["t0"]
    a("s_waitcnt vmcnt(0) lgkmcnt(0)")
    a(f"v_and_b32 v{t}, 63, v0")
    a(f"v_lshlrev_b32 v{t}, 4, v{t}")
    a(f"v_add_u32 v{t+1}, s{S['lb']}, v{t}")
    a("s_nop 7")
    for tb in range(1, 4):
        for j in range(5):
            a(f"ds_write_b128 v{t+1}, {vr(g.ACC+(tb*5+j)*4,4)} offset:{REDOFF+((tb-1)*5+j)*1024}")
    if mid: mid()
    for tb in range(1, 4):
        a(f"s_sub_u32 s{t0}, s{w}, {tb}")
        a(f"s_and_b32 s{t0}, s{t0}, 3")
        a(f"s_mul_i32 s{t0}, s{t0}, {REGION}")
        a(f"s_add_u32 s{t0}, s{t0}, {ldsbase + REDOFF + (tb-1)*5120}")
        a(f"v_add_u32 v{t+1+tb}, s{t0}, v{t}")
    a("s_waitcnt lgkmcnt(0)")
    sync()
    for tb in range(1, 4):
        for j in range(5):
            a(f"ds_read_b128 {vr(g.ACC+(tb*5+j)*4,4)}, v{t+1+tb} offset:{j*1024}")
    for tb in range(1, 4):
        a(f"s_waitcnt lgkmcnt({15-5*tb})")
        for i in range(0, 20, 2):
            a(f"v_pk_add_f32 {vr(g.ACC+i,2)}, {vr(g.ACC+i,2)}, {vr(g.ACC+tb*20+i,2)}")

def f2u(x):
    import struct
    return struct.unpack("<I", struct.pack("<f", x))[0]

GC1 = -2.0 * 1.4426950408889634 * 0.7978845608028654
GC2 = GC1 * 0.044715

def b1_epilogue(a, g, S, srdU, sUo, vB, store_mod=""):
    t = g.tmp; A = g.ACC; X = g.ACC + 20
    a(f"v_lshlrev_b32 v{t}, 16, v{vB}")
    a(f"v_and_b32 v{t+1}, 0xffff0000, v{vB}")
    a(f"v_lshlrev_b32 v{t+2}, 16, v{vB+1}")
    a(f"v_and_b32 v{t+3}, 0xffff0000, v{vB+1}")
    a(f"v_mov_b32 v{t+4}, {hex(f2u(GC1))}")
    a(f"v_mov_b32 v{t+5}, {hex(f2u(GC2))}")
    for j in range(5):
        for i in (0, 2):
            a(f"v_pk_add_f32 {vr(A+4*j+i,2)}, {vr(A+4*j+i,2)}, {vr(t+i,2)}")
    for i in range(0, 20, 2):
        a(f"v_pk_mul_f32 {vr(X+i,2)}, {vr(A+i,2)}, {vr(A+i,2)}")
    for i in range(0, 20, 2):
        a(f"v_pk_fma_f32 {vr(X+i,2)}, {vr(X+i,2)}, {vr(t+4,2)}, {vr(t+4,2)} op_sel:[0,1,0] op_sel_hi:[1,1,0]")
    for i in range(0, 20, 2):
        a(f"v_pk_mul_f32 {vr(X+i,2)}, {vr(X+i,2)}, {vr(A+i,2)}")
    for i in range(20):
        a(f"v_exp_f32 v{X+i}, v{X+i}")
    for i in range(0, 20, 2):
        a(f"v_pk_add_f32 {vr(X+i,2)}, {vr(X+i,2)}, 1.0 op_sel_hi:[1,0]")
    for i in range(20):
        a(f"v_rcp_f32 v{X+i}, v{X+i}")
    for i in range(0, 20, 2):
        a(f"v_pk_mul_f32 {vr(X+i,2)}, {vr(X+i,2)}, {vr(A+i,2)}")
    pack_store(a, g, X, srdU, sUo, PLANE=10240, rowstride=16, mode="F", store_mod=store_mod)

def pack_store(a, g, X, srdO, sO, PLANE, rowstride, mode, store_mod=""):
    t = g.tmp; Pk = g.ACC + 40
    for j in range(5):
        a(f"v_cvt_pk_bf16_f32 v{Pk+2*j}, v{X+4*j}, v{X+4*j+1}")
        a(f"v_cvt_pk_bf16_f32 v{Pk+2*j+1}, v{X+4*j+2}, v{X+4*j+3}")
    a(f"v_mov_b32 v{Pk+10}, v{Pk+8}")
    a(f"v_mov_b32 v{Pk+11}, v{Pk+9}")
    a(f"v_and_b32 v{t}, 15, v0")
    a(f"v_bfe_u32 v{t+1}, v0, 4, 1")
    a(f"v_bfe_u32 v{t+2}, v0, 5, 1")
    if mode == "F":
        a(f"v_lshl_add_u32 v{t}, v{t+1}, 4, v{t}")
        a(f"v_lshlrev_b32 v{t}, 4, v{t}")
        a(f"v_mul_u32_u24 v{t+2}, {PLANE}, v{t+2}")
        a(f"v_add_u32 v{t}, v{t}, v{t+2}")
        step = 512
    else:
        a(f"v_mul_u32_u24 v{t}, {rowstride}, v{t}")
        a(f"v_lshl_add_u32 v{t}, v{t+1}, 5, v{t}")
        a(f"v_lshl_add_u32 v{t}, v{t+2}, 4, v{t}")
        step = 64
    for p in range(3):
        for i in range(2):
            a(f"v_permlane16_swap_b32 v{Pk+4*p+i}, v{Pk+4*p+2+i}")
    a("s_nop 1")
    for p in range(3):
        if p == 2:
            a("s_mov_b32 exec_lo, 0xffff")
            a("s_mov_b32 exec_hi, 0xffff")
        a(f"buffer_store_dwordx4 {vr(Pk+4*p,4)}, v{t}, {sr(srdO,4)}, s{sO} offen offset:{p*step}{store_mod}")
    a("s_mov_b64 exec, -1")

def transpose_task(a, vb, S, srdI, sIo, srdO, sOo, ldsaddr_s, body=None, store_mod=""):
    X = vb + 8; t = vb
    a(f"""
    v_bfe_u32 v{t}, v0, 3, 3
    v_and_b32 v{t+1}, 7, v0
    v_mul_u32_u24 v{t+2}, 1280, v{t}
    v_lshl_add_u32 v{t+2}, v{t+1}, 4, v{t+2}
    """)
    for i in range(10):
        a(f"buffer_load_dwordx4 {vr(X+4*i,4)}, v{t+2}, {sr(srdI,4)}, s{sIo} offen offset:{i*128}")
    a(f"""
    v_mul_u32_u24 v{t+2}, 1344, v{t}
    v_lshl_add_u32 v{t+2}, v{t+1}, 4, v{t+2}
    v_add_u32 v{t+2}, s{ldsaddr_s}, v{t+2}
    v_bfe_u32 v{t+3}, v0, 2, 2
    v_mul_u32_u24 v{t+3}, 1344, v{t+3}
    v_bfe_u32 v{t+4}, v0, 4, 2
    v_lshl_add_u32 v{t+3}, v{t+4}, 5, v{t+3}
    v_and_b32 v{t+4}, 3, v0
    v_lshl_add_u32 v{t+3}, v{t+4}, 3, v{t+3}
    v_add_u32 v{t+3}, s{ldsaddr_s}, v{t+3}
    v_and_b32 v{t+4}, 63, v0
    v_lshlrev_b32 v{t+4}, 4, v{t+4}
    """)
    if body: body(a, X, t + 5)
    else: a("s_waitcnt vmcnt(0)")
    for i in range(10):
        a(f"ds_write_b128 v{t+2}, {vr(X+4*i,4)} offset:{i*128}")
    a("s_waitcnt lgkmcnt(0)")
    for j in range(10):
        a(f"ds_read_b64_tr_b16 {vr(X+4*j,2)}, v{t+3} offset:{j*128}")
        a(f"ds_read_b64_tr_b16 {vr(X+4*j+2,2)}, v{t+3} offset:{j*128+4*1344}")
    for j in range(10):
        if j in (0, 4, 8):
            a(f"s_waitcnt lgkmcnt({max(0, 20-2*(j+4))})")
        if j in (4, 8):
            a(f"s_add_u32 s{sOo}, s{sOo}, 4096")
        a(f"buffer_store_dwordx4 {vr(X+4*j,4)}, v{t+4}, {sr(srdO,4)}, s{sOo} offen offset:{(j%4)*1024}{store_mod}")
```

```python
from asmlib import *
from layout import *
from gemm import srd, transpose_task, f2u
from kernels import finish, stamp_begin, stamp_mid, stamp_end
from k1 import mfma32, mfma8, bf16r, ln_stats, half_sum, split3, QSCALE
import math

SLOT = 24576
NSL = 6
LDS_K1 = SLOT * NSL + 4096
XCH = SLOT * NSL

def k1_kernel(name="k1_kernel", stamp=False, pfw=32, pfmode=0, pfk=5, pfc=None, nord=False, nomm=False, noxl=False, nowl=False):
    a = Asm()
    a.label(name)
    a(f"""
    s_cmp_ge_u32 s2, 256
    s_cbranch_scc1 {name}_end
    s_load_dwordx4 s[40:43], s[0:1], 0
    s_load_dwordx2 s[4:5], s[0:1], 96
    s_load_dwordx4 s[56:59], s[0:1], 16
    s_load_dwordx2 s[64:65], s[0:1], 48
    """)
    if pfc:
        a("s_getpc_b64 s[20:21]")
        a("v_lshlrev_b32 v1, 7, v0")
        a(f"v_min_u32 v1, {pfc[0]}-{name}-64, v1")
        a("global_load_dword v127, v1, s[20:21]")
    a(f"""
    v_lshrrev_b32 v1, 6, v0
    s_and_b32 s46, s2, 7
    v_readfirstlane_b32 s6, v1
    """)
    if stamp: stamp_begin(a)
    a(f"""
    s_bfe_u32 s47, s2, 0x30003
    s_lshr_b32 s48, s2, 6
    s_lshl_b32 s7, s46, 2
    s_add_u32 s48, s48, s7
    s_mov_b32 s60, 0x3f803f80
    s_mov_b32 s61, {hex(f2u(1.0/640))}
    s_mov_b32 s62, {hex(f2u(1e-5))}
    s_mov_b32 s63, s6
    s_cmp_ge_u32 s47, 6
    s_cbranch_scc1 {name}_ln
    s_cmp_lt_u32 s6, 4
    s_cbranch_scc1 {name}_comp
    """)
    XE, XO, T, WD = 1, 2, 3, 16
    a(f"""
    s_sub_u32 s6, s6, 4
    v_bfe_u32 v{T}, v0, 3, 3
    v_mul_u32_u24 v{XE}, 1280, v{T}
    v_and_b32 v{T}, 7, v0
    v_bfe_u32 v{T+1}, v0, 4, 2
    v_xor_b32 v{T}, v{T}, v{T+1}
    v_xor_b32 v{T+2}, 4, v{T}
    v_lshl_add_u32 v{XO}, v{T+2}, 4, v{XE}
    v_add_u32 v{XO}, {8*1280-1024}, v{XO}
    v_lshl_add_u32 v{XE}, v{T}, 4, v{XE}
    s_lshl_b32 s7, s48, 2
    s_add_u32 s7, s7, s6
    s_mul_i32 s20, s7, {16*1280}         ; x soffset
    s_lshl_b32 s21, s6, 11
    v_mul_u32_u24 v{WD}, 1280, v{T+1}
    v_and_b32 v{T}, 15, v0
    v_lshlrev_b32 v{T+2}, 2, v{T+1}
    v_xor_b32 v{T}, v{T}, v{T+2}
    v_lshl_add_u32 v{WD}, v{T}, 4, v{WD}
    v_add_u32 v{WD+1}, 4096, v{WD}
    v_add_u32 v{WD+2}, 8192, v{WD}
    v_add_u32 v{WD+3}, 12288, v{WD}
    s_mul_i32 s22, s6, {16*1280}
    s_lshl_b32 s7, s47, 8
    s_add_u32 s22, s22, s7
    s_lshl_b32 s23, s6, 12
    s_add_u32 s23, s23, 8192
    s_waitcnt lgkmcnt(0)
    """)
    srd(a, 12, 40, 41, 0, 2048 * 1280)
    a(f"""
    s_cmp_eq_u32 s47, 5
    s_cbranch_scc1 {name}_kvload
    """)
    srd(a, 16, 42, 43, 0, 640 * 1280)
    def xdma(slot):
        a(f"s_add_u32 m0, s21, {slot}")
        a("s_nop 0")
        if not noxl:
            a(f"buffer_load_dwordx4 v{XE}, s[12:15], s20 offen lds")
            a(f"buffer_load_dwordx4 v{XO}, s[12:15], s20 offen offset:1024 lds")
        a("s_add_u32 s20, s20, 128")
    def qissue(c):
        sl = (c % NSL) * SLOT
        xdma(sl)
        a(f"s_add_u32 m0, s23, {sl}")
        a("s_nop 0")
        for q in range(0 if nowl else 4):
            a(f"buffer_load_dwordx4 v{WD+q}, s[16:19], s22 offen offset:{q*1024} lds")
        a(f"s_add_u32 s22, s22, {64*1280}")
    def loader(issue, per, pre=None):
        sched = {-1: [0, 1], 0: [2, 3], 1: [4, 5], 2: [6], 3: [7], 4: [8], 5: [9]}
        issued = 0
        for c in sched[-1]: issue(c); issued += 1
        if pre: pre(issued * per)
        extra = 0
        for k in range(10):
            a(f"s_waitcnt vmcnt({(issued-1-k)*per + extra})")
            a("s_barrier")
            for c in sched.get(k, []): issue(c); issued += 1
            if k == pfk and pfmode == 4:
                srd(a, 24, 64, 65, 0, 2048 * 3456)
                a(f"""
                s_lshr_b32 s7, s2, 6
                s_mul_i32 s7, s7, 6
                s_add_u32 s7, s7, s47
                s_lshl_b32 s7, s7, 2
                s_add_u32 s7, s7, s6
                s_lshr_b32 s3, s46, 1
                s_mul_i32 s3, s3, 896
                v_and_b32 v1, 63, v0
                v_mul_u32_u24 v1, 3456, v1
                """)
                for r in range(3):
                    a(f"""
                    s_lshr_b32 s28, s7, 3
                    s_mul_i32 s28, s28, {64*3456}
                    s_and_b32 s29, s7, 7
                    s_cmp_eq_u32 s29, 7
                    s_cselect_b32 s28, 0x40000000, s28
                    s_lshl_b32 s29, s29, 7
                    s_add_u32 s28, s28, s29
                    s_add_u32 s28, s28, s3
                    buffer_load_dword v126, v1, s[24:27], s28 offen
                    s_add_u32 s7, s7, 96
                    """)
                extra = 3
        a("s_endpgm")
    loader(qissue, (0 if noxl else 2) + (0 if nowl else 4))
    a.label(f"{name}_kvload")
    KW = 49152
    WIM = 28672
    srd(a, 16, 56, 57, 0, 25600)
    srd(a, 28, 58, 59, 0, 25600)
    a(f"""
    v_and_b32 v{T}, 63, v0
    v_lshlrev_b32 v{T}, 4, v{T}
    s_mul_i32 s7, s6, 7168
    """)
    def kvissue(c):
        xdma((c % NSL) * 8192)
        if c == 0:
            for m, sd in ((0, 16), (1, 28)):
                for h in range(2):
                    a(f"s_add_u32 m0, s7, {KW + m*WIM + h*4096}")
                    a(f"s_add_u32 s24, s7, {h*4096}")
                    for i in range(4 if h == 0 else 3):
                        a(f"buffer_load_dwordx4 v{T}, {sr(sd,4)}, s24 offen offset:{i*1024} lds")
    loader(kvissue, 2)

    a.label(f"{name}_comp")
    T = 3
    AX = 10
    AW = 14
    SX, SXX, CS0, CS1 = 20, 21, 22, 23
    XF = 24; WF = 40; ACC = 72; PK = 104; NV = 128
    a(f"""
    s_and_b32 s49, s6, 1                 ; wt
    s_lshr_b32 s50, s6, 1                ; wn
    v_and_b32 v{T+3}, 31, v0
    v_bfe_u32 v{T+4}, v0, 5, 1
    v_bfe_u32 v{T+5}, v0, 1, 3
    v_xor_b32 v{T+5}, v{T+5}, v{T+4}
    s_lshl_b32 s7, s50, 2
    v_xor_b32 v{T+5}, s7, v{T+5}
    s_lshl_b32 s7, s49, 12
    v_lshl_add_u32 v{T+6}, v{T+3}, 7, s7
    """)
    for ks in range(4):
        a(f"v_xor_b32 v{AX+ks}, {2*ks}, v{T+5}")
        a(f"v_lshl_add_u32 v{AX+ks}, v{AX+ks}, 4, v{T+6}")
    for i in range(4): a(f"v_mov_b32 v{SX+i}, 0")
    for i in range(32): a(f"v_mov_b32 v{ACC+i}, 0")
    a(f"""
    v_bfe_u32 v{T}, v0, 2, 2
    v_lshl_add_u32 v{T+1}, v{T+4}, 3, v{T}
    v_bfe_u32 v{T+2}, v0, 4, 1
    v_and_b32 v{T+5}, 3, v0
    v_lshlrev_b32 v{T+5}, 3, v{T+5}
    v_lshl_add_u32 v{T+5}, v{T+2}, 5, v{T+5}      ; (g&1)*32 + (i4&3)*8
    s_cmp_eq_u32 s47, 5
    s_cbranch_scc1 {name}_kv
    """)
    def rdl(ks, nb):
        L = [f"ds_read_b128 {vr(XF+4*ks,4)}, v{AX+ks}"]
        rs = 256 if nb == 2 else 40
        for b in range(nb):
            for t in range(2):
                L.append(f"ds_read_b64_tr_b16 {vr(WF+8*ks+4*b+2*t,2)}, v{AW+2*(ks>>1)+b} offset:{(16*(ks&1)+4*t)*rs}")
        return L
    def mm(ks, nb, fill):
        h = (len(fill) + 1) // 2 if nb == 2 else len(fill)
        parts = [fill[:h], fill[h:]]
        for b in range(nb):
            a(mfma32(ACC + 16 * b, WF + 8 * ks + 4 * b, XF + 4 * ks, ACC + 16 * b))
            for x in parts[b]: a(x)
        for i in range(4):
            a(f"v_dot2_f32_bf16 v{CS0}, v{WF+8*ks+i}, s60, v{CS0}")
            if ks < 2:
                a(f"v_dot2_f32_bf16 v{SX}, v{XF+4*ks+i}, s60, v{SX}")
                a(f"v_dot2_f32_bf16 v{SXX}, v{XF+4*ks+i}, v{XF+4*ks+i}, v{SXX}")
    def comploop(tag, nb, xslot, wstep):
        n = 1 + 2 * nb
        a("s_barrier")
        for ks in range(2):
            for x in rdl(ks, nb): a(x)
        for c in range(10):
            dl = xslot if (c + 1) % NSL else (-(NSL - 1) * xslot) & 0xffffffff
            def bump(h):
                if c == 9: return []
                L = [f"v_add_u32 v{AX+2*h+i}, {dl}, v{AX+2*h+i}" for i in range(2)]
                L += [f"v_add_u32 v{AW+2*h+b}, {dl if wstep is None else wstep}, v{AW+2*h+b}" for b in range(nb)]
                return L
            a(f"s_waitcnt lgkmcnt({n})")
            mm(0, nb, rdl(2, nb) + bump(0))
            a(f"s_waitcnt lgkmcnt({n})")
            mm(1, nb, rdl(3, nb))
            if c < 9:
                a("s_barrier")
                a(f"s_waitcnt lgkmcnt({n})")
                mm(2, nb, rdl(0, nb) + bump(1))
                a(f"s_waitcnt lgkmcnt({n})")
                mm(3, nb, rdl(1, nb))
            else:
                a(f"s_waitcnt lgkmcnt({n})")
                mm(2, nb, [])
                a(f"s_waitcnt lgkmcnt(0)")
                mm(3, nb, [])
    def stats_epi(ncs):
        a("s_nop 2")
        a(f"v_cmp_eq_u32 vcc, 1, v{T+4}")
        half_sum(a, SX, T); half_sum(a, SXX, T); half_sum(a, CS0, T)
        a(f"""
        v_and_b32 v{T}, 63, v0
        v_lshlrev_b32 v{T}, 2, v{T}
        s_lshl_b32 s7, s6, 10
        s_add_u32 s7, s7, {XCH}
        v_add_u32 v{T+1}, s7, v{T}
        ds_write_b32 v{T+1}, v{SX}
        ds_write_b32 v{T+1}, v{SXX} offset:256
        ds_write_b32 v{T+1}, v{CS0} offset:512
        s_xor_b32 s7, s7, 2048
        v_add_u32 v{T+1}, s7, v{T}
        s_xor_b32 s7, s7, 3072
        v_add_u32 v{T+2}, s7, v{T}
        s_waitcnt lgkmcnt(0)
        s_barrier
        ds_read_b32 v{XF}, v{T+1}
        ds_read_b32 v{XF+1}, v{T+1} offset:256
        ds_read_b32 v{CS1}, v{T+2} offset:512
        s_waitcnt lgkmcnt(0)
        v_add_f32 v{SX}, v{SX}, v{XF}
        v_add_f32 v{SXX}, v{SXX}, v{XF+1}
        """)
        ln_stats(a, SX, SXX, T, 61, 62)
        a(f"v_sub_f32 v{SX}, 0, v{SX}")
        a(f"v_cvt_pk_bf16_f32 v{XF}, v{SX}, v{SX}")
        a(f"v_cvt_pk_bf16_f32 v{XF+1}, v{SX}, 0")
        a(f"v_cndmask_b32_e64 v{XF}, v{XF}, 0, vcc")
        a(f"v_cndmask_b32_e64 v{XF+1}, v{XF+1}, 0, vcc")
        for b in range(ncs): split3(a, CS0 + b, WF + 2 * b, T)
        a("s_nop 1")
        for b in range(ncs): a(mfma8(ACC + 16 * b, WF + 2 * b, XF, ACC + 16 * b))

    a(f"""
    v_lshlrev_b32 v{T+1}, 8, v{T+1}
    v_add_u32 v{T+1}, v{T+1}, v{T+5}
    v_add_u32 v{T+1}, 8192, v{T+1}
    s_lshl_b32 s7, s50, 1
    s_add_u32 s7, s7, s49
    v_xor_b32 v{T}, s7, v{T}
    s_lshl_b32 s7, s50, 13
    v_lshl_add_u32 v{AW}, v{T}, 6, v{T+1}
    v_xor_b32 v{T}, 1, v{T}
    v_lshl_add_u32 v{AW+1}, v{T}, 6, v{T+1}
    s_xor_b32 s20, s7, 8192
    v_add_u32 v{AW+2}, s20, v{AW}
    v_add_u32 v{AW+3}, s20, v{AW+1}
    v_add_u32 v{AW}, s7, v{AW}
    v_add_u32 v{AW+1}, s7, v{AW+1}
    s_waitcnt lgkmcnt(0)
    """)
    srd(a, 8, 4, 5, 0, WS_END)
    if stamp: stamp_mid(a, 0)
    comploop(name + "_q", 2, SLOT, None)
    if stamp: stamp_mid(a, 1)
    stats_epi(2)
    a(f"""
    v_mul_f32 v{SXX}, {hex(f2u(QSCALE))}, v{SXX}
    v_lshlrev_b32 v{T}, 3, v{T+3}
    v_lshl_add_u32 v{T}, v{T+4}, 14, v{T}
    s_lshl_b32 s7, s47, 1
    s_add_u32 s7, s7, s50
    s_lshl_b32 s7, s7, 18
    s_lshl_b32 s20, s48, 1
    s_add_u32 s20, s20, s49
    s_lshl_b32 s20, s20, 8
    s_add_u32 s20, s20, s7
    s_lshl_b32 s7, s49, 17
    s_add_u32 s21, s20, s7
    s_xor_b32 s7, s7, 0x20000
    s_add_u32 s22, s20, s7
    s_nop 3
    """)
    for b in range(2):
        for rq in range(4):
            r = ACC + 16 * b + 4 * rq
            a(f"v_pk_mul_f32 {vr(r,2)}, {vr(r,2)}, {vr(SX,2)} op_sel:[0,1] op_sel_hi:[1,1]")
            a(f"v_pk_mul_f32 {vr(r+2,2)}, {vr(r+2,2)}, {vr(SX,2)} op_sel:[0,1] op_sel_hi:[1,1]")
            p = PK + 8 * b + 2 * rq
            a(f"v_cvt_pk_bf16_f32 v{p}, v{r}, v{r+1}")
            a(f"v_cvt_pk_bf16_f32 v{p+1}, v{r+2}, v{r+3}")
            a(f"buffer_store_dwordx2 {vr(p,2)}, v{T}, s[8:11], s{21+b} offen")
            a(f"s_add_u32 s{21+b}, s{21+b}, 32768")
    if stamp: stamp_end(a, 8, 63, 2, nw=8)
    a("s_endpgm")

    a.label(f"{name}_kv")
    a(f"""
    v_mul_u32_u24 v{T+1}, 40, v{T+1}
    v_add_u32 v{T+1}, v{T+1}, v{T+5}
    s_mul_i32 s7, s50, {WIM + 1280}
    s_add_u32 s7, s7, {KW}
    v_add_u32 v{AW}, s7, v{T+1}
    s_mul_i32 s7, s50, {WIM - 1280}
    s_add_u32 s7, s7, {KW + 1280}
    v_add_u32 v{AW+2}, s7, v{T+1}
    s_waitcnt lgkmcnt(0)
    """)
    srd(a, 8, 4, 5, 0, WS_END)
    comploop(name + "_k", 1, 8192, 2560)
    stats_epi(1)
    a(f"""
    s_lshl_b32 s21, s48, 1
    s_add_u32 s21, s21, s49
    s_mul_i32 s20, s21, {TILE_B}
    s_add_u32 s20, s20, {KV_OFF}
    s_nop 7
    s_nop 1
    """)
    for i in range(12): a(f"v_mul_f32 v{ACC+i}, v{ACC+i}, v{SXX}")
    for i in range(6): a(f"v_cvt_pk_bf16_f32 v{PK+i}, v{ACC+2*i}, v{ACC+2*i+1}")
    a(f"""
    s_cmp_eq_u32 s50, 1
    s_cbranch_scc1 {name}_v
    v_and_b32 v{T}, 63, v0
    v_lshlrev_b32 v{T}, 4, v{T}
    buffer_store_dwordx4 {vr(PK,4)}, v{T}, s[8:11], s20 offen
    v_cndmask_b32_e64 v{PK+4}, v{PK+4}, 0, vcc
    v_cndmask_b32_e64 v{PK+5}, v{PK+5}, 0, vcc
    v_lshlrev_b32 v{T+1}, 3, v{T+3}
    s_mov_b32 exec_hi, 0
    buffer_store_dwordx2 {vr(PK+4,2)}, v{T+1}, s[8:11], s20 offen offset:{K1_OFF_T}
    s_mov_b32 exec_hi, -1
    v_dot2_f32_bf16 v{SX}, v{PK}, v{PK}, 0
    """)
    for i in range(1, 6): a(f"v_dot2_f32_bf16 v{SX}, v{PK+i}, v{PK+i}, v{SX}")
    a("s_nop 2")
    half_sum(a, SX, T)
    for r in (8, 4, 2, 1):
        a("s_nop 1")
        a(f"v_max_f32_dpp v{SX}, v{SX}, v{SX} row_ror:{r} row_mask:0xf bank_mask:0xf")
    a(f"""
    v_mov_b32 v{T}, v{SX}
    s_nop 1
    v_permlane16_swap_b32 v{SX}, v{T}
    s_nop 1
    v_max_f32 v{SX}, v{SX}, v{T}
    s_lshl_b32 s21, s21, 2
    s_add_u32 s21, s21, {KM_OFF}
    v_mov_b32 v{T}, 0
    s_mov_b64 exec, 1
    buffer_store_dword v{SX}, v{T}, s[8:11], s21 offen
    """)
    if stamp:
        a("s_mov_b32 s94, s90"); a("s_mov_b32 s96, s90")
        stamp_end(a, 8, 63, 3, nw=8)
    a("s_endpgm")
    a.label(f"{name}_v")
    a(f"""
    s_lshl_b32 s7, s49, 12
    s_add_u32 s7, s7, {KW + 2*WIM}
    v_lshlrev_b32 v{T}, 6, v{T+3}
    v_lshl_add_u32 v{T}, v{T+4}, 3, v{T}
    v_add_u32 v{T}, s7, v{T}
    ds_write_b64 v{T}, {vr(PK,2)}
    ds_write_b64 v{T}, {vr(PK+2,2)} offset:16
    ds_write_b64 v{T}, {vr(PK+4,2)} offset:32
    v_bfe_u32 v{T}, v0, 2, 2
    v_lshl_add_u32 v{T}, v{T+4}, 2, v{T}
    v_lshlrev_b32 v{T}, 6, v{T}
    v_add_u32 v{T}, v{T}, v{T+5}
    v_add_u32 v{T}, s7, v{T}
    s_waitcnt lgkmcnt(0)
    """)
    for t in range(2):
        for u in range(2):
            a(f"ds_read_b64_tr_b16 {vr(PK+4*t+2*u,2)}, v{T} offset:{(16*t+8*u)*64}")
    a(f"""
    v_cmp_eq_u32 vcc, 20, v{T+3}
    v_mov_b32 v{T+1}, s60
    s_nop 0
    v_cndmask_b32_e64 v{T+1}, 0, v{T+1}, vcc
    v_cmp_gt_u32 vcc, 20, v{T+3}
    v_mul_u32_u24 v{T+2}, {V_PLANE}, v{T+4}
    v_lshl_add_u32 v{T+2}, v{T+3}, 4, v{T+2}
    s_waitcnt lgkmcnt(0)
    """)
    for i in range(8): a(f"v_cndmask_b32_e64 v{PK+i}, v{T+1}, v{PK+i}, vcc")
    a(f"v_cmp_eq_u32 vcc, 26, v{T+3}")
    a(f"v_mov_b32 v{T+1}, 0x3f80")
    a("s_nop 0")
    a(f"v_cndmask_b32_e64 v{PK}, v{PK}, v{T+1}, vcc")
    a(f"""
    s_mov_b32 exec_lo, 0x0fffffff
    s_mov_b32 exec_hi, 0x0fffffff
    buffer_store_dwordx4 {vr(PK,4)}, v{T+2}, s[8:11], s20 offen offset:{V_OFF_T}
    buffer_store_dwordx4 {vr(PK+4,4)}, v{T+2}, s[8:11], s20 offen offset:{V_OFF_T+2*V_PLANE}
    s_endpgm
    """)

    a.label(f"{name}_ln")
    a(f"""
    s_cmp_ge_u32 s6, 4
    s_cbranch_scc1 {name}_pf
    s_lshl_b32 s7, s48, 1
    s_add_u32 s7, s7, s47
    s_sub_u32 s7, s7, 6
    s_lshl_b32 s7, s7, 2
    s_add_u32 s7, s7, s6                 ; plane
    s_mul_i32 s20, s7, 10240
    s_add_u32 s21, s20, {HF_OFF}
    s_mul_i32 s22, s6, 16384
    s_waitcnt lgkmcnt(0)
    """)
    srd(a, 12, 40, 41, 0, 2048 * 1280)
    srd(a, 8, 4, 5, 0, WS_END)
    def pfw_code(w0):
        srd(a, 24, 64, 65, 0, 2048 * 3456)
        a(f"""
        s_lshr_b32 s7, s2, 6
        s_lshl_b32 s7, s7, 1
        s_add_u32 s7, s7, s47
        s_sub_u32 s7, s7, 6
        s_lshl_b32 s7, s7, 2
        s_add_u32 s7, s7, s6
        s_sub_u32 s7, s7, {w0}
        s_mul_i32 s7, s7, {64*3456}
        s_lshr_b32 s3, s46, 1
        s_mul_i32 s3, s3, 896
        s_add_u32 s7, s7, s3
        v_and_b32 v1, 63, v0
        v_mul_u32_u24 v1, 3456, v1
        """)
        for i in range(7):
            a(f"buffer_load_dword v126, v1, s[24:27], s7 offen offset:{i*128}")
    def body(a, X, t):
        A0 = 64; U = 72
        for p in range(2):
            for i in range(4): a(f"v_mov_b32 v{A0+i}, 0")
            for i in range(40):
                if p == 0 and i % 4 == 0:
                    a(f"s_waitcnt vmcnt({9 - i//4})")
                a(f"v_dot2_f32_bf16 v{A0+(i&1)}, v{X+i}, s60, v{A0+(i&1)}")
                a(f"v_dot2_f32_bf16 v{A0+2+(i&1)}, v{X+i}, v{X+i}, v{A0+2+(i&1)}")
            if p == 0 and pfw and pfmode == 1: pfw_code(0)
            a("s_nop 2")
            a(f"v_add_f32 v{A0}, v{A0}, v{A0+1}")
            a(f"v_add_f32 v{A0+2}, v{A0+2}, v{A0+3}")
            for dpp in ("quad_perm:[1,0,3,2]", "quad_perm:[2,3,0,1]", "row_half_mirror"):
                a("s_nop 0")
                a(f"v_add_f32_dpp v{A0}, v{A0}, v{A0} {dpp} row_mask:0xf bank_mask:0xf")
                a(f"v_add_f32_dpp v{A0+2}, v{A0+2}, v{A0+2} {dpp} row_mask:0xf bank_mask:0xf")
            ln_stats(a, A0, A0 + 2, A0 + 1, 61, 62)
            a(f"v_mul_f32 v{A0}, v{A0}, v{A0+2}")
            for i in range(40):
                u = U + 2 * (i & 3)
                a(f"v_lshlrev_b32 v{u}, 16, v{X+i}")
                a(f"v_and_b32 v{u+1}, 0xffff0000, v{X+i}")
                a(f"v_pk_fma_f32 {vr(u,2)}, {vr(u,2)}, {vr(A0+2,2)}, {vr(A0,2)} op_sel_hi:[1,0,0] neg_lo:[0,0,1] neg_hi:[0,0,1]")
                a(f"v_cvt_pk_bf16_f32 v{X+i}, v{u}, v{u+1}")
    transpose_task(a, 8, None, 12, 20, 8, 21, 22, body=body)
    if pfw and pfmode == 3: pfw_code(0)
    if stamp:
        a("s_mov_b32 s94, s90"); a("s_mov_b32 s96, s90")
        stamp_end(a, 8, 63, 3, nw=8)
    a("s_endpgm")
    a.label(f"{name}_pf")
    a(f"""
    s_waitcnt lgkmcnt(0)
    s_cmp_lg_u32 s2, 48
    s_cbranch_scc1 {name}_nz
    s_cmp_lg_u32 s6, 4
    s_cbranch_scc1 {name}_nz
    """)
    srd(a, 8, 4, 5, 0, WS_END)
    a(f"""
    v_and_b32 v1, 63, v0
    v_lshlrev_b32 v1, 4, v1
    v_mov_b32 v4, 0
    v_mov_b32 v5, 0
    v_mov_b32 v6, 0
    v_mov_b32 v7, 0
    s_mov_b32 s20, {FL_OFF}
    buffer_store_dwordx4 v[4:7], v1, s[8:11], s20 offen
    buffer_store_dwordx4 v[4:7], v1, s[8:11], s20 offen offset:1024
    buffer_store_dwordx4 v[4:7], v1, s[8:11], s20 offen offset:2048
    buffer_store_dwordx4 v[4:7], v1, s[8:11], s20 offen offset:3072
    """)
    a.label(f"{name}_nz")
    if pfc:
        a(f"""
        s_getpc_b64 s[20:21]
        """)
        a.label(f"{name}_pc")
        a(f"""
        s_add_u32 s20, s20, {pfc[0]}-{name}_pc
        s_addc_u32 s21, s21, 0
        s_sub_u32 s7, s6, 4
        s_lshl_b32 s7, s7, 13
        v_and_b32 v1, 63, v0
        v_lshlrev_b32 v1, 7, v1
        v_add_u32 v1, s7, v1
        v_min_u32 v1, {pfc[1]}-{pfc[0]}, v1
        global_load_dword v2, v1, s[20:21]
        """)
    if pfw and pfmode == 0: pfw_code(4)
    if pfw and pfmode == 5:
        srd(a, 24, 64, 65, 0, 2048 * 3456)
        a(f"""
        s_lshr_b32 s7, s2, 6
        s_lshl_b32 s7, s7, 1
        s_add_u32 s7, s7, s47
        s_sub_u32 s7, s7, 6
        s_lshl_b32 s7, s7, 2
        s_add_u32 s7, s7, s6
        s_sub_u32 s7, s7, 4
        s_lshl_b32 s7, s7, 3
        s_add_u32 s7, s7, s46                ; 0..255
        s_mul_i32 s7, s7, {8*3456}
        v_and_b32 v1, 63, v0
        v_min_u32 v1, 53, v1
        v_lshlrev_b32 v1, 7, v1
        """)
        for i in range(4):
            a(f"buffer_load_dword v126, v1, s[24:27], s7 offen")
            a(f"s_add_u32 s7, s7, {54*128}")
    if pfw and pfmode == 2:
        a("s_waitcnt vmcnt(0)")
        a("global_load_dword v2, v1, s[20:21] sc1")
        a("s_waitcnt vmcnt(0)")
        pfw_code(4)
    a.label(f"{name}_end")
    a("s_endpgm")
    return finish(a, name, NV, (256, 512, LDS_K1))
```

```python
from asmlib import *
from layout import *
from gemm import *
import attn2 as attn
from attn import kd
from attn2 import CHUNK
from kernels import finish, stamp_begin, stamp_mid, stamp_end, GS

AFLAG = 4 * CHUNK
GFLAG = AFLAG + attn.FLAG_SZ
GBASE = GFLAG + 1024
LDS_K2 = GBASE + 4 * REGION

def k2_kernel(name="k2_kernel", stamp=False, NB=3, with_b1=True, with_b2=True, gprio=0, gprio2=0, eprio=2, aprio=0, sprio=2, psleep=8, lprio=3, pch=10, sm=0, nb2=14, pf=True, pf1=0, akw={}, gkw={}, p1=None, p2=None, early=0, lsleep=8, pf_at=7):
    a = Asm()
    a.label(name)
    a(f"""
    s_cmp_ge_u32 s2, 256
    s_cbranch_scc1 {name}_end
    s_load_dwordx2 s[4:5], s[0:1], 96
    s_load_dwordx4 s[40:43], s[0:1], 48
    s_load_dwordx2 s[44:45], s[0:1], 32
    s_load_dwordx2 s[56:57], s[0:1], 64
    s_load_dwordx2 s[58:59], s[0:1], 0
    v_lshrrev_b32 v1, 6, v0
    s_nop 0
    v_readfirstlane_b32 s6, v1
    """)
    if stamp: stamp_begin(a)
    a(f"""
    s_nop 1
    s_cmp_ge_u32 s6, 4
    s_cbranch_scc1 {name}_g
    """)
    S = dict(attn.SREG)
    if aprio: a(f"s_setprio {aprio}")
    attn.flaginit(a, S)
    a("s_waitcnt lgkmcnt(0)")
    attn.prologue(a, S, name, mid=lambda: a("s_barrier"))
    if stamp: stamp_mid(a, 0)
    attn.main(a, S, name, **akw)
    if stamp: stamp_mid(a, 1)
    attn.epilogue(a, S)
    if stamp: stamp_end(a, 8, 6, 0, nw=8)
    a("s_endpgm")
    attn.tails(a, S, name)
    a.label(f"{name}_g")
    a(f"""
    s_cmp_lt_u32 s6, 8
    s_cbranch_scc1 {name}_g2
    s_waitcnt lgkmcnt(0)
    s_barrier
    """)
    def l_mid():
        a(f"""
        s_cmp_lt_u32 s2, 224
        s_cbranch_scc1 {name}_ld_np
        """)
        srd(a, 24, 56, 57, 0, 1728 * 4096)
        a(f"""
        s_sub_u32 s17, s2, 224
        s_mul_i32 s18, s17, {54*4096}
        v_and_b32 v6, 63, v0
        v_lshlrev_b32 v6, 7, v6
        s_mov_b32 s17, 27
        """)
        a.label(f"{name}_pfl")
        a(f"""
        buffer_load_dword v8, v6, s[24:27], s18 offen
        s_add_u32 s18, s18, 8192
        s_sub_u32 s17, s17, 1
        s_cmp_lg_u32 s17, 0
        s_cbranch_scc1 {name}_pfl
        """)
    def l_end():
        srd(a, 24, 4, 5, 0, WS_END)
        a(f"""
        v_mov_b32 v6, {FL_OFF + 384}
        global_load_dword v7, v6, s[4:5] sc1
        s_lshr_b32 s17, s2, 3
        s_mul_i32 s17, s17, 25600
        s_add_u32 s17, s17, {WOF_OFF}
        v_and_b32 v6, 63, v0
        v_min_u32 v6, 49, v6
        v_lshlrev_b32 v6, 7, v6
        s_waitcnt vmcnt(0)
        v_readfirstlane_b32 s18, v7
        s_nop 0
        s_cmp_lt_u32 s18, 80
        s_cbranch_scc1 {name}_end
        """)
        for i in range(4):
            a("buffer_load_dword v8, v6, s[24:27], s17 offen")
            a("s_add_u32 s17, s17, 6400")
    attn.loader(a, S, name, 4, lprio, lsleep, l_mid if pf else None, l_end if with_b2 else None, pf_at)
    a.label(f"{name}_g2")
    S = dict(GS); g = G2()
    VFA, VPA, VPOLL = g.tmp + 8, g.tmp + 9, g.tmp + 10
    VONE = g.ONE; JUNK = g.JUNK
    a(f"""
    s_mov_b32 s63, s6
    s_sub_u32 s6, s6, 4
    s_and_b32 s46, s2, 7
    s_lshr_b32 s47, s2, 3
    s_and_b32 s48, s46, 1
    s_lshl_b32 s48, s48, 2
    s_and_b32 s49, s47, 3
    s_add_u32 s48, s48, s49          ; db
    s_lshr_b32 s49, s46, 1
    s_lshr_b32 s50, s47, 2
    s_lshl_b32 s60, s46, 2
    s_lshr_b32 s64, s47, 3
    s_add_u32 s60, s60, s64          ; sb (B2)
    s_and_b32 s64, s47, 7            ; db (B2)
    s_mul_i32 s49, s49, 7
    s_add_u32 s49, s49, s50          ; fb
    s_mul_i32 s52, s48, 1280         ; db*80*16
    s_mov_b32 s61, 1
    s_lshl_b32 s65, s6, 8
    s_add_u32 s65, s65, {GFLAG}
    v_and_b32 v{VFA}, 63, v0
    v_lshl_add_u32 v{VFA}, v{VFA}, 2, s65
    v_mov_b32 v{VONE}, 0
    ds_write_b32 v{VFA}, v{VONE}
    v_mov_b32 v{VONE}, 1
    s_waitcnt lgkmcnt(0)
    s_barrier
    """)
    if sprio: a(f"s_setprio {sprio}")
    def pf_w2():
        if not pf: return
        srd(a, 24, 56, 57, 0, 1728 * 4096)
        a(f"""
        s_lshr_b32 s7, s2, 3
        s_lshl_b32 s7, s7, 2
        s_add_u32 s7, s7, s6
        s_lshl_b32 s7, s7, 16
        s_lshl_b32 s3, s46, 9
        s_add_u32 s7, s7, s3
        v_bfe_u32 v1, v0, 2, 4
        v_lshlrev_b32 v1, 12, v1
        v_and_b32 v{VPOLL}, 3, v0
        v_lshl_add_u32 v1, v{VPOLL}, 7, v1
        buffer_load_dword v{JUNK}, v1, s[24:27], s7 offen
        """)
    P2 = dict(mode="TF", srdT=12, srdF=16, strideT=4096, planeF=10240, W=4, TisA=False, fmod=" sc1")
    def b2_early():
        if not with_b2: return
        srd(a, 12, 56, 57, 0, 1728 * 4096)
        srd(a, 16, 4, 5, UF_OFF, UF_SZ)
        a(f"v_bfe_u32 v{g.tmp+2}, v0, 4, 2")
        setup_T(a, g, 4096)
        a("s_lshl_b32 s51, s60, 7")
        a("s_mul_i32 s52, s64, 1280")
        init_offsets(a, g, S, P2, 51, 52)
        srd(a, 20, 58, 59, 0, 2048 * 1280)
        a(f"""
        s_lshl_b32 s53, s60, 2
        s_add_u32 s53, s53, s6
        s_mul_i32 s53, s53, {16*1280}
        s_mul_i32 s55, s64, 160
        s_add_u32 s53, s53, s55
        v_and_b32 v1, 15, v0
        v_mul_u32_u24 v1, 1280, v1
        v_lshl_add_u32 v1, v{g.tmp+2}, 3, v1
        """)
        for j in range(5):
            a(f"buffer_load_dwordx2 {vr(g.FB[2]+2*j,2)}, v1, s[20:23], s53 offen offset:{j*32}")

        issue(a, g, S, 0, P2, "T"); issue(a, g, S, 1, P2, "T")
    nsync = [0]
    def arrive4():
        a(f"""
        v_and_b32 v{VFA}, 63, v0
        v_lshl_add_u32 v{VFA}, v{VFA}, 2, s65
        ds_add_u32 v{VFA}, v{VONE}
        """)
    def wait4(r0=None):
        i = nsync[0]; nsync[0] += 1
        pa, po = (VPA, VPOLL) if r0 is None else (r0, r0 + 1)
        a(f"""
        v_and_b32 v{pa}, 3, v0
        v_mul_u32_u24 v{pa}, 260, v{pa}
        v_add_u32 v{pa}, {GFLAG}, v{pa}
        """)
        a.label(f"{name}_sy{i}")
        a(f"""
        ds_read_b32 v{po}, v{pa}
        s_waitcnt lgkmcnt(0)
        v_cmp_gt_u32 vcc, s61, v{po}
        s_nop 4
        s_cbranch_vccz {name}_sz{i}
        s_sleep 1
        s_branch {name}_sy{i}
        """)
        a.label(f"{name}_sz{i}")
        a("s_add_u32 s61, s61, 1")
    def sync4():
        arrive4(); wait4()
    srd(a, 8, 4, 5, 0, WS_END)
    setup_lane(a, g, S, GBASE)
    setup_F(a, g, g.vF, 10240)
    a(f"""
    s_cmp_eq_u32 s50, 7
    s_cbranch_scc1 {name}_wo
    s_cmp_ge_u32 s49, 27
    s_cbranch_scc1 {name}_nob1
    """)
    if with_b1:
        srd(a, 12, 40, 41, 0, 2048 * 3456)
        srd(a, 16, 4, 5, HF_OFF, HF_SZ)
        srd(a, 20, 42, 43, 0, 1728 * 2)
        P = dict(mode="TF", srdT=12, srdF=16, strideT=3456, planeF=10240, W=4, TisA=True)
        setup_T(a, g, 3456)
        a("s_lshl_b32 s51, s49, 7")
        init_offsets(a, g, S, P, 51, 52)
        a(f"v_lshlrev_b32 v1, 3, v{g.tmp+2}")
        a(f"s_setprio {gprio}")
        a(f"""
        s_lshl_b32 s53, s6, 5
        s_add_u32 s53, s53, s51
        buffer_load_dwordx2 v[2:3], v1, s[20:23], s53 offen
        """)
        roll_prologue(a, g, S, P)
        a(f"""
        s_lshl_b32 s54, s49, 3
        s_lshl_b32 s55, s6, 1
        s_add_u32 s54, s54, s55
        s_mul_i32 s54, s54, 10240
        s_add_u32 s54, s54, s52
        s_add_u32 s54, s54, {UF_OFF}
        """)
        if stamp and sm == 0: stamp_mid(a, 2)
        main_loop(a, g, S, P, name + "_b1", 16, prios=p1, **gkw)
        a(f"s_setprio {eprio}")
        if stamp: stamp_mid(a, 0)
        def sy():
            if stamp and sm == 2: stamp_mid(a, 2)
            sync4()
        reduce4(a, g, S, GBASE, sy)
        if stamp and sm == 2: stamp_mid(a, 3)
        b1_epilogue(a, g, S, 8, 54, 2, store_mod=" sc1" if with_b2 else "")
        if with_b2:
            if stamp and sm == 0: stamp_mid(a, 3)
            if early: b2_early()
            a(f"""
            s_mul_i32 s3, s49, 57
            s_lshr_b32 s3, s3, 9             ; fb / 9
            s_lshl_b32 s7, s48, 2
            s_add_u32 s7, s7, s3
            s_lshl_b32 s7, s7, 7
            s_add_u32 s7, s7, {FL_OFF}
            v_mov_b32 v1, s7
            s_waitcnt vmcnt({13 if early else 0})
            s_mov_b64 exec, 1
            global_atomic_add v1, v{VONE}, s[4:5] sc1
            s_mov_b64 exec, -1
            """)
            if stamp and sm == 1: stamp_mid(a, 2)
            if not early: b2_early()
        a(f"s_branch {name}_b2")
    else:
        a(f"s_branch {name}_b2")
    a.label(f"{name}_wo")
    a(f"s_setprio {eprio}")
    if pf1:
        srd(a, 24, 40, 41, 0, 2048 * 3456)
        a(f"""
        s_and_b32 s7, s47, 3
        s_lshl_b32 s7, s7, 2
        s_add_u32 s7, s7, s6
        s_add_u32 s7, s7, {pf1}
        s_mul_i32 s7, s7, {64*3456}
        s_lshr_b32 s3, s46, 1
        s_mul_i32 s3, s3, 896
        s_add_u32 s7, s7, s3
        v_and_b32 v1, 63, v0
        v_mul_u32_u24 v1, 3456, v1
        """)
        for r in range(2):
            for i in range(7):
                a(f"buffer_load_dword v{JUNK}, v1, s[24:27], s7 offen offset:{i*128}")
            a(f"s_add_u32 s7, s7, {16*64*3456}")
    a(f"""
    s_and_b32 s47, s47, 3
    s_lshl_b32 s47, s47, 3
    s_add_u32 s47, s47, s46
    s_lshl_b32 s47, s47, 2
    s_add_u32 s47, s47, s6           ; task
    s_cmp_ge_u32 s47, 80
    s_cbranch_scc1 {name}_nob1
    s_mul_i32 s51, s47, 10240
    s_add_u32 s53, s51, {WOF_OFF}
    """)
    srd(a, 12, 44, 45, 0, 640 * 1280)
    transpose_task(a, g.ACC, S, 12, 51, 8, 53, S["lb"], store_mod=" sc1")
    a(f"""
    s_waitcnt vmcnt(0)
    v_mov_b32 v1, {FL_OFF + 384}
    s_mov_b64 exec, 1
    global_atomic_add v1, v{VONE}, s[4:5] sc1
    s_mov_b64 exec, -1
    """)
    a.label(f"{name}_nob1")
    a(f"s_setprio {eprio}")
    b2_early()
    a(f"v_mov_b32 v{VPA}, {AFLAG + (pch & 3) * 1024}")
    a.label(f"{name}_pw")
    a(f"""
    ds_read_b32 v{VPOLL}, v{VPA}
    s_waitcnt lgkmcnt(0)
    v_cmp_ge_u32 vcc, {pch >> 2}, v{VPOLL}
    s_nop 4
    s_cbranch_vccz {name}_b2
    s_sleep 8
    s_branch {name}_pw
    """)
    a.label(f"{name}_b2")
    if with_b2:
        a(f"s_waitcnt vmcnt(8)")
        for i in range(10):
            a(f"v_lshlrev_b32 v{g.ACC+2*i}, 16, v{g.FB[2]+i}")
            a(f"v_and_b32 v{g.ACC+2*i+1}, 0xffff0000, v{g.FB[2]+i}")
        if stamp and sm == 1: stamp_mid(a, 3)
        a(f"""
        s_lshl_b32 s7, s64, 9
        s_add_u32 s7, s7, {FL_OFF}
        v_and_b32 v1, 3, v0
        v_lshl_add_u32 v1, v1, 7, s7
        s_mov_b32 s62, 0
        s_add_u32 s68, s6, 4
        """)
        def poll(lab, back):
            a.label(lab)
            a(f"""
            s_mov_b64 exec, 7
            global_load_dword v2, v1, s[4:5] sc1
            s_mov_b64 exec, -1
            s_waitcnt vmcnt(0)
            v_cmp_le_u32 vcc, 36, v2
            s_add_u32 s62, s62, 1
            s_cmp_ge_u32 s62, 0x100000
            s_cbranch_scc1 {back}
            s_and_b32 s66, vcc_lo, 7
            s_xor_b32 s67, s66, 15
            s_ff1_i32_b32 s67, s67
            s_mul_i32 s66, s67, 18
            s_cmp_eq_u32 s67, 3
            s_cselect_b32 s66, 64, s66
            s_cmp_lt_u32 s68, s66
            s_cbranch_scc1 {back}
            s_sleep {psleep}
            s_branch {lab}
            """)
        a(f"""
        v_mov_b32 v3, {AFLAG + 4096 + 64}
        s_cmp_lg_u32 s6, 0
        s_cbranch_scc1 {name}_go2
        """)
        poll(f"{name}_poll", f"{name}_go")
        a.label(f"{name}_go")
        a(f"""
        v_mov_b32 v{VFA}, s66
        ds_write_b32 v3, v{VFA}
        s_waitcnt lgkmcnt(0)
        """)
        a.label(f"{name}_go2")
        sync4()
        a(f"""
        ds_read_b32 v{VFA}, v3
        s_waitcnt lgkmcnt(0)
        v_readfirstlane_b32 s66, v{VFA}
        """)
        stubs = []
        def check():
            i = len(stubs); stubs.append(i)
            a(f"""
            s_add_u32 s68, s68, 4
            s_cmp_ge_u32 s68, s66
            s_cbranch_scc1 {name}_ck{i}
            """)
            a.label(f"{name}_ckb{i}")
        if stamp: stamp_mid(a, 1)
        roll_prologue(a, g, S, P2, tpart=False)
        issue(a, g, S, 2, P2, "T")
        a(f"s_setprio {gprio2}")
        main_loop(a, g, S, P2, name + "_b2l", nb2, midentry=True, czero=5, check=check, prios=p2, **gkw)
        a(f"s_setprio {eprio}")
        if stamp and sm == 3: stamp_mid(a, 2)
        reduce4(a, g, S, GBASE, sync4)
        if stamp and sm == 3: stamp_mid(a, 3)
        a(f"""
        s_lshl_b32 s7, s2, 2
        s_add_u32 s7, s7, s6
        s_mul_i32 s7, s7, 5120
        s_add_u32 s7, s7, {Y_OFF}
        s_add_u32 s53, s7, 4096
        """)
        for j in range(4):
            a(f"buffer_store_dwordx4 {vr(g.ACC+4*j,4)}, v{g.tmp}, s[8:11], s7 offen offset:{j*1024}")
        a(f"buffer_store_dwordx4 {vr(g.ACC+16,4)}, v{g.tmp}, s[8:11], s53 offen")
        a.label(f"{name}_fin2")
    elif stamp:
        stamp_mid(a, 1)
    if stamp: stamp_end(a, 8, 63, 0, nw=8)
    a.label(f"{name}_end")
    a("s_endpgm")
    if with_b2:
        for i in stubs:
            a.label(f"{name}_ck{i}")
            a(f"s_setprio {eprio}")
            poll(f"{name}_ckp{i}", f"{name}_ckr{i}")
            a.label(f"{name}_ckr{i}")
            a(f"s_setprio {gprio2}")
            a(f"s_branch {name}_ckb{i}")
    return finish(a, name, 168, (256, 576, LDS_K2))
```

```python
from asmlib import *
from layout import *
from gemm import *
from attn import kd

def stamp_begin(a):
    a("s_memtime s[90:91]")
    a("s_memrealtime s[92:93]")
def stamp_mid(a, i):
    r = [94, 96, 86, 88][i]
    a(f"s_memtime s[{r}:{r+1}]")
def stamp_end(a, srdw, wave_s, slot, nw=4):
    a(f"""
    s_mov_b64 exec, -1
    s_waitcnt vmcnt(0)
    s_memtime s[98:99]
    s_memrealtime s[100:101]
    s_waitcnt lgkmcnt(0)
    s_sub_u32 s94, s94, s90
    s_sub_u32 s96, s96, s90
    s_sub_u32 s98, s98, s90
    s_sub_u32 s100, s100, s92
    v_mov_b32 v8, s94
    v_mov_b32 v9, s96
    v_mov_b32 v10, s98
    v_mov_b32 v11, s100
    s_mul_i32 s94, s2, {nw}
    s_add_u32 s94, s94, s{wave_s}
    s_lshl_b32 s94, s94, 5
    s_add_u32 s94, s94, {WS_END - 65536*(slot+1)}
    v_mov_b32 v12, 0
    v_mov_b32 v14, s92
    s_getreg_b32 s95, hwreg(HW_REG_XCC_ID)
    v_mov_b32 v15, s95
    s_sub_u32 s86, s86, s90
    s_sub_u32 s88, s88, s90
    v_mov_b32 v16, s86
    v_mov_b32 v17, s88
    s_mov_b64 exec, 1
    buffer_store_dwordx4 v[8:11], v12, {sr(srdw,4)}, s94 offen
    buffer_store_dwordx4 v[14:17], v12, {sr(srdw,4)}, s94 offen offset:16
    """)

GS = dict(w=6, t0=7, t1=3, lb=28, so4=32, sf=36, cnt=37)

def finish(a, name, nv, geom):
    errs = check_hazards(a.lines, name)
    for e in errs: print("HAZARD", e)
    return name, a.text(), kd(name, nv), geom

def b1_kernel(name="b1_kernel", stamp=False, NB=3):
    a = Asm(); S = GS; g = G(NB=NB)
    a.label(name)
    a(f"""
    s_cmp_ge_u32 s2, 256
    s_cbranch_scc1 {name}_end
    s_load_dwordx2 s[4:5], s[0:1], 96
    s_load_dwordx4 s[40:43], s[0:1], 48
    s_load_dwordx2 s[44:45], s[0:1], 32
    v_lshrrev_b32 v1, 6, v0
    s_nop 0
    v_readfirstlane_b32 s6, v1
    """)
    if stamp: stamp_begin(a)
    a(f"""
    s_and_b32 s46, s2, 7
    s_lshr_b32 s47, s2, 3
    s_and_b32 s48, s46, 1
    s_lshl_b32 s48, s48, 2
    s_and_b32 s49, s47, 3
    s_add_u32 s48, s48, s49          ; db
    s_lshr_b32 s49, s46, 1
    s_mul_i32 s49, s49, 7
    s_lshr_b32 s50, s47, 2
    s_add_u32 s49, s49, s50          ; fb
    s_waitcnt lgkmcnt(0)
    """)
    srd(a, 8, 4, 5, 0, WS_END)
    a(f"""
    s_cmp_eq_u32 s50, 7
    s_cbranch_scc1 {name}_wo
    s_cmp_ge_u32 s49, 27
    s_cbranch_scc1 {name}_end
    """)
    srd(a, 12, 40, 41, 0, 2048 * 3456)
    srd(a, 16, 4, 5, HF_OFF, HF_SZ)
    srd(a, 20, 42, 43, 0, 1728 * 2)
    P = dict(mode="TF", srdT=12, srdF=16, strideT=3456, planeF=10240, W=4, TisA=True)
    setup_lane(a, g, S, 0)
    setup_T(a, g, 3456)
    setup_F(a, g, g.vF, 10240)
    a("s_lshl_b32 s51, s49, 7")
    a("s_mul_i32 s52, s48, 1280")
    init_offsets(a, g, S, P, 51, 52)
    prologue_loads(a, g, S, P)
    a(f"s_lshl_b32 s53, s6, 5")
    a(f"s_add_u32 s53, s53, s51")
    a(f"v_lshlrev_b32 v1, 3, v{g.tmp+2}")
    a(f"buffer_load_dwordx2 v[2:3], v1, s[20:23], s53 offen")
    a(f"s_lshl_b32 s54, s49, 3")
    a(f"s_lshl_b32 s55, s6, 1")
    a(f"s_add_u32 s54, s54, s55")
    a(f"s_mul_i32 s54, s54, 10240")
    a(f"s_add_u32 s54, s54, s52")
    a(f"s_add_u32 s54, s54, {UF_OFF}")
    zero_acc(a, g)
    if stamp: stamp_mid(a, 0)
    main_loop(a, g, S, P, name, 16)
    if stamp: stamp_mid(a, 1)
    reduce4(a, g, S, 0, lambda: a("s_barrier"))
    b1_epilogue(a, g, S, 8, 54, 2)
    if stamp: stamp_end(a, 8, 6, 0)
    a("s_endpgm")
    a.label(f"{name}_wo")
    a(f"""
    s_and_b32 s47, s47, 3
    s_lshl_b32 s47, s47, 3
    s_add_u32 s47, s47, s46
    s_lshl_b32 s47, s47, 2
    s_add_u32 s47, s47, s6           ; task
    s_cmp_ge_u32 s47, 80
    s_cbranch_scc1 {name}_end
    s_mul_i32 s51, s47, 10240
    s_add_u32 s52, s51, {WOF_OFF}
    s_mul_i32 s53, s6, {REGION}
    """)
    srd(a, 12, 44, 45, 0, 640 * 1280)
    transpose_task(a, 8, S, 12, 51, 8, 52, 53)
    a.label(f"{name}_end")
    a("s_endpgm")
    return finish(a, name, g.nv, (256, 256, 4 * REGION))

def k3_kernel(name="k3_kernel", stamp=False, NB=3, with_b2=True):
    a = Asm(); S = GS; g = G(NB=NB, ff=True)
    XR = g.nv; nv = XR + 12
    a.label(name)
    a(f"""
    s_cmp_ge_u32 s2, 256
    s_cbranch_scc1 {name}_end
    s_load_dwordx2 s[4:5], s[0:1], 96
    s_load_dwordx4 s[40:43], s[0:1], 64
    s_load_dwordx2 s[44:45], s[0:1], 0
    s_load_dwordx2 s[56:57], s[0:1], 80
    v_lshrrev_b32 v1, 6, v0
    s_nop 0
    v_readfirstlane_b32 s6, v1
    """)
    if stamp: stamp_begin(a)
    a(f"""
    s_and_b32 s46, s2, 7
    s_lshr_b32 s47, s2, 3
    s_and_b32 s48, s47, 7            ; db
    s_lshl_b32 s49, s46, 2
    s_lshr_b32 s50, s47, 3
    s_add_u32 s49, s49, s50          ; sb
    s_waitcnt lgkmcnt(0)
    """)
    srd(a, 8, 4, 5, 0, WS_END)
    srd(a, 12, 4, 5, OF_OFF, OF_SZ)
    srd(a, 16, 4, 5, WOF_OFF, WOF_SZ)
    setup_lane(a, g, S, 0)
    P1 = dict(mode="FF", srdT=12, srdF=16, plane2=32768, planeF=10240, W=4, TisA=False)
    setup_F(a, g, g.vT, 32768)
    setup_F(a, g, g.vF, 10240)
    a("s_lshl_b32 s51, s49, 10")
    a("s_mul_i32 s52, s48, 1280")
    init_offsets(a, g, S, P1, 51, 52)
    if not with_b2:
        YR = g.ACC
        a(f"""
        s_lshl_b32 s7, s2, 2
        s_add_u32 s7, s7, s6
        s_mul_i32 s7, s7, 5120
        s_add_u32 s7, s7, {Y_OFF}
        s_add_u32 s58, s7, 4096
        v_lshlrev_b32 v3, 4, v{g.tmp}
        """)
        for j in range(4):
            a(f"buffer_load_dwordx4 {vr(YR+4*j,4)}, v3, s[8:11], s7 offen offset:{j*1024}")
        a(f"buffer_load_dwordx4 {vr(YR+16,4)}, v3, s[8:11], s58 offen")
    prologue_loads(a, g, S, P1)
    srd(a, 20, 44, 45, 0, 2048 * 1280)
    srd(a, 24, 42, 43, 0, 4096)
    srd(a, 60, 56, 57, 0, 2048 * 1280)
    a(f"""
    s_lshl_b32 s53, s49, 2
    s_add_u32 s53, s53, s6
    s_lshl_b32 s55, s53, 5               ; (s0+16w)*2
    s_mul_i32 s53, s53, {16*1280}
    s_mul_i32 s54, s48, 160
    s_add_u32 s53, s53, s54
    v_mul_u32_u24 v1, 1280, v{g.tmp+1}
    v_lshl_add_u32 v1, v{g.tmp+2}, 3, v1
    v_lshlrev_b32 v2, 1, v{g.tmp+1}
    """)
    for j in range(5):
        a(f"buffer_load_dwordx2 {vr(XR+2*j,2)}, v1, s[20:23], s53 offen offset:{j*32}")
    a(f"buffer_load_ushort v{XR+10}, v2, s[24:27], s55 offen")
    if not with_b2:
        for i in range(20, 80): a(f"v_mov_b32 v{g.ACC+i}, 0")
    else:
        zero_acc(a, g)
    if stamp: stamp_mid(a, 0)
    main_loop(a, g, S, P1, name + "_a", 5)
    if with_b2:
        srd(a, 12, 40, 41, 0, 1728 * 4096)
        srd(a, 16, 4, 5, UF_OFF, UF_SZ)
        P2 = dict(mode="TF", srdT=12, srdF=16, strideT=4096, planeF=10240, W=4, TisA=False)
        setup_T(a, g, 4096)
        a("s_lshl_b32 s51, s49, 7")
        init_offsets(a, g, S, P2, 51, 52)
        prologue_loads(a, g, S, P2)
        main_loop(a, g, S, P2, name + "_b", 14)
    if stamp: stamp_mid(a, 1)
    reduce4(a, g, S, 0, lambda: a("s_barrier"))
    A = g.ACC; t = g.tmp
    a(f"v_lshlrev_b32 v{t+4}, 16, v{XR+10}")
    for j in range(5):
        a(f"v_lshlrev_b32 v{t}, 16, v{XR+2*j}")
        a(f"v_and_b32 v{t+1}, 0xffff0000, v{XR+2*j}")
        a(f"v_lshlrev_b32 v{t+2}, 16, v{XR+2*j+1}")
        a(f"v_and_b32 v{t+3}, 0xffff0000, v{XR+2*j+1}")
        for i in range(4):
            a(f"v_add_f32 v{A+4*j+i}, v{A+4*j+i}, v{t+4}")
        a(f"v_pk_add_f32 {vr(A+4*j,2)}, {vr(A+4*j,2)}, {vr(t,2)}")
        a(f"v_pk_add_f32 {vr(A+4*j+2,2)}, {vr(A+4*j+2,2)}, {vr(t+2,2)}")
    pack_store(a, g, A, 60, 53, PLANE=0, rowstride=1280, mode="R")
    if stamp: stamp_end(a, 8, 6, 1)
    a.label(f"{name}_end")
    a("s_endpgm")
    return finish(a, name, nv, (256, 256, 4 * REGION))
```

```python
from k1b import k1_kernel
from k2 import k2_kernel
from k3b import k3_kernel
from build import build
PFC = ("k2_kernel", "code_end")
def mk(nm, k1kw={}, k2kw={}, k3kw={}):
    kw = dict(pfmode=5, pfc=PFC); kw.update(k1kw)
    k2 = dict(p1=[1,0,0,0], p2=[1,0,0,0]); k2.update(k2kw)
    open(f"h_{nm}.s", "w").write(build([k1_kernel(**kw), k2_kernel(**k2), k3_kernel(**k3kw)]))
mk("a")
mk("b", {}, dict(p1=None, p2=None))
mk("c", {}, dict(p1=[1,0,1,0], p2=[1,0,1,0]))
mk("d", {}, dict(pch=11, pf_at=6))
```

```python
from asmlib import *
from layout import *
from gemm import f2u

V_L16 = 1
V_AV  = 2
V_AK1 = 3
V_T0  = 4
QA0, QB0, QA1, QB1 = 8, 12, 16, 18
K0 = [20, 24]; K1 = [28, 30]
VV = [[32, 36], [40, 44]]
PA, PB = 48, 56
SA, SB, OA, OB = 64, 80, 96, 112
TMP = 128
V_FLAG = 144
V_ONE = 145
V_POLL = 146
V_PADDR = 147
MA, MB = 148, 149
NV_ATT = 152

CHUNK = 12288
T_BOUND = 48.0
ONE_ROW = V_OFF_T + 26 * 16

def mfma32(d, a, b, c):
    cs = "0" if c is None else vr(c, 16)
    return f"v_mfma_f32_32x32x16_bf16 {vr(d,16)}, {vr(a,4)}, {vr(b,4)}, {cs}"
def mfma8(d, a, b):
    return f"v_mfma_f32_32x32x8_bf16 {vr(d,16)}, {vr(a,2)}, {vr(b,2)}, {vr(d,16)}"

SREG = dict(ws=4, w=6, wg=2, srdw=8, t0=12, t1=13, t2=14, soff=15, wb=16, qo=17, oo=18, cnt=19, slow=20, srdk=24, flag_addr=4*CHUNK)

def valu_stream(S_, P_):
    out = []
    for k in range(4):
        for i in range(4):
            out.append(f"v_exp_f32 {vr(S_+4*k+i)}, {vr(S_+4*k+i)}")
        out.append(f"v_cvt_pk_bf16_f32 {vr(P_+2*k)}, {vr(S_+4*k)}, {vr(S_+4*k+1)}")
        out.append(f"v_cvt_pk_bf16_f32 {vr(P_+2*k+1)}, {vr(S_+4*k+2)}, {vr(S_+4*k+3)}")
    return out

def emit_phase(a, mf, aux, valu, pat):
    p = 0
    for k in range(4):
        a(mf[k])
        for x in aux[k]:
            if x.startswith("LABEL "): a.label(x[6:])
            else: a(x)
        for x in valu[p:p + pat[k]]: a(x)
        p += pat[k]
    assert p == len(valu)

W_LAND, W_GO, W_KM, W_QD, W_XN, W_OP, W_LW, W_CW, W_ARR, W_SY, W_SH = 0, 16, 20, 24, 28, 32, 40, 80, 120, 136, 168

def setup(a, S, LWORD):
    ws, w, wg = S["ws"], S["w"], S["wg"]
    srdw = S["srdw"]
    t0, t1, t2 = S["t0"], S["t1"], S["t2"]
    a(f"""
    v_and_b32 v{V_T0}, 63, v0
    v_mov_b32 v{V_PADDR}, {LWORD}
    v_mov_b32 v{V_ONE}, 1
    v_lshlrev_b32 v{V_L16}, 4, v{V_T0}
    s_mov_b32 s{srdw}, s{ws}
    s_and_b32 s{srdw+1}, s{ws+1}, 0xffff
    s_mov_b32 s{srdw+2}, {WS_END}
    s_mov_b32 s{srdw+3}, 0x20000
    v_and_b32 v{V_T0+1}, 31, v0
    v_bfe_u32 v{V_T0+2}, v0, 5, 1          ; hf
    s_bfe_u32 s{t0}, s{wg}, 0x20003
    s_lshl_b32 s{t0}, s{t0}, 2
    s_add_u32 s{t0}, s{t0}, s{w}
    s_and_b32 s{t1}, s{wg}, 7
    s_lshl_b32 s{t1}, s{t1}, 3
    s_lshr_b32 s{t2}, s{wg}, 5
    s_add_u32 s{t1}, s{t1}, s{t2}
    s_mul_i32 s{S['oo']}, s{t0}, {5*32768}
    s_lshl_b32 s{t1}, s{t1}, 9
    s_add_u32 s{S['oo']}, s{S['oo']}, s{t1}
    s_add_u32 s{S['oo']}, s{S['oo']}, {OF_OFF}
    v_min_u32 v{V_AV}, 27, v{V_T0+1}
    v_lshlrev_b32 v{V_AV}, 4, v{V_AV}
    v_mul_u32_u24 v{TMP+5}, {V_PLANE}, v{V_T0+2}
    v_add_u32 v{V_AV}, v{V_AV}, v{TMP+5}
    v_add_u32 v{V_AV}, {V_OFF_T}, v{V_AV}
    v_lshlrev_b32 v{V_AK1}, 3, v{V_T0+1}
    v_add_u32 v{V_AK1}, {K1_OFF_T}, v{V_AK1}
    v_cmp_eq_u32 s[22:23], 1, v{V_T0+2}
    v_mov_b32 v{TMP+5}, {ONE_ROW}
    v_lshlrev_b32 v{V_T0+3}, 4, v{V_T0+1}
    v_cndmask_b32_e64 v{V_AK1}, v{V_AK1}, v{TMP+5}, s[22:23]
    v_lshl_add_u32 v{V_T0+3}, v{V_T0+2}, 15, v{V_T0+3}
    """)

def bound(a, S, tag, wait):
    km = TMP + 4
    tA, tB = TMP + 6, TMP + 8
    for t, q0, q1 in ((tA, QA0, QA1), (tB, QB0, QB1)):
        a(f"v_dot2_f32_bf16 v{t}, v{q0}, v{q0}, 0")
        for r in (q0 + 1, q0 + 2, q0 + 3, q1, q1 + 1):
            a(f"v_dot2_f32_bf16 v{t}, v{r}, v{r}, v{t}")
    for i in range(16):
        a(f"v_mov_b32 v{OA+i}, 0")
        if i == 2: a(f"v_mov_b32 v{tA+1}, v{tA}")
        if i == 3: a(f"v_mov_b32 v{tB+1}, v{tB}")
        if i == 6: a(f"v_permlane32_swap_b32 v{tA}, v{tA+1}")
        if i == 7: a(f"v_permlane32_swap_b32 v{tB}, v{tB+1}")
        if i == 10: a(f"v_add_f32 v{tA}, v{tA}, v{tA+1}")
        if i == 11: a(f"v_add_f32 v{tB}, v{tB}, v{tB+1}")
    for i in range(16): a(f"v_mov_b32 v{OB+i}, 0")
    for i in range(8):
        a(f"v_mov_b32 v{PB+i}, 0")
        a(f"v_mov_b32 v{VV[1][0]+i}, 0")
    wait()
    a(f"ds_read_b32 v{km}, v{V_PADDR} offset:{W_KM}")
    for x in ds_k(0, 0, 0): a(x)
    a("s_waitcnt lgkmcnt(2)")
    for t in (tA, tB):
        a(f"v_mul_f32 v{t}, v{t}, v{km}")
    for t in (tA, tB):
        a(f"v_sqrt_f32 v{t}, v{t}")
    a("s_nop 0")
    a(f"v_max_f32 v{km}, v{tA}, v{tB}")
    for t in (tA, tB):
        a(f"v_cvt_pk_bf16_f32 v{t+1}, -v{t}, 0")
    a(f"v_mov_b32 v{km+1}, {hex(f2u(T_BOUND))}")
    a(f"v_cmp_nle_f32 {sr(S['slow'],2)}, v{km}, v{km+1}")
    a(f"v_cndmask_b32_e64 v{QA1}, v{QA1}, v{tA+1}, s[22:23]")
    a(f"v_cndmask_b32_e64 v{QB1}, v{QB1}, v{tB+1}, s[22:23]")

def ds_k(slot, tile, buf):
    o = slot * CHUNK + tile * TILE_B
    return [f"ds_read_b128 {vr(K0[buf],4)}, v{V_L16} offset:{o}",
            f"ds_read_b64 {vr(K1[buf],2)}, v{V_AK1} offset:{o}"]
def ds_v(slot, tile, buf):
    o = slot * CHUNK + tile * TILE_B
    return [f"ds_read_b128 {vr(VV[buf][0],4)}, v{V_AV} offset:{o}",
            f"ds_read_b128 {vr(VV[buf][1],4)}, v{V_AV} offset:{o+2*V_PLANE}"]

def cmp_landed(S, c):
    return f"v_cmp_{'ge' if c == 3 else 'gt'}_u32 vcc, s{S['cnt']}, v{V_POLL}"

def main(a, S, tag, pat=(6,6,6,6)):
    cnt = S["cnt"]
    a(f"s_mov_b32 s{cnt}, 1")
    a(f"s_cmp_lg_u64 {sr(S['slow'],2)}, 0")
    a(f"s_cbranch_scc1 {tag}_slow")
    a("s_waitcnt lgkmcnt(0)")
    a(mfma32(SA, K0[0], QA0, None))
    a(mfma8(SA, K1[0], QA1))
    for x in ds_k(0, 1, 1): a(x)
    for x in ds_v(0, 0, 0): a(x)
    a("s_nop 7")
    a(".p2align 6")
    a.label(f"{tag}_loop")
    for c in range(4):
        for t in range(4):
            j = 4 * c + t
            kb = vb = j & 1
            j2 = j + 2; j1 = j + 1
            dk = ds_k((j2 >> 2) & 3, j2 & 3, kb)
            dv = ds_v((j1 >> 2) & 3, j1 & 3, vb ^ 1)
            mf = [mfma32(SB, K0[kb], QB0, None), mfma8(SB, K1[kb], QB1),
                  mfma32(OB, VV[vb ^ 1][0], PB, OB), mfma32(OB, VV[vb ^ 1][1], PB + 4, OB)]
            aux = [[], [], [dk[1]], ["s_waitcnt lgkmcnt(0)"]]
            aux2 = [[dk[0]], [], [dv[0]], [dv[1]]]
            if t == 0: aux[0] = ["s_mov_b64 exec, 1", f"ds_add_u32 v{V_PADDR}, v{V_ONE} offset:{W_ARR + c*4}", "s_mov_b64 exec, -1"]
            if t == 1:
                aux[0] = [f"ds_read_b32 v{V_POLL}, v{V_PADDR} offset:{((c+1)&3)*4}"]
                aux2[1] = [cmp_landed(S, c)]
            if t == 2: aux[0] = [f"s_cbranch_vccnz {tag}_spin{c}", f"LABEL {tag}_back{c}"]
            if c == 3 and t == 3:
                aux[0] = [f"s_add_u32 s{cnt}, s{cnt}, 1"]
                aux2[1] = [f"s_cmp_lg_u32 s{cnt}, 5"]
            emit_phase(a, mf, aux, valu_stream(SA, PA), pat)
            mf = [mfma32(SA, K0[kb ^ 1], QA0, None), mfma8(SA, K1[kb ^ 1], QA1),
                  mfma32(OA, VV[vb][0], PA, OA), mfma32(OA, VV[vb][1], PA + 4, OA)]
            emit_phase(a, mf, aux2, valu_stream(SB, PB), pat)
    a(f"s_cbranch_scc1 {tag}_loop")
    a("s_nop 1")
    a(mfma32(OB, VV[1][0], PB, OB))
    a(mfma32(OB, VV[1][1], PB + 4, OB))
    a.label(f"{tag}_fin")

def tails(a, S, tag):
    cnt = S["cnt"]
    t0, t1, t2 = S["t0"], S["t1"], S["t2"]
    for c in range(4):
        a.label(f"{tag}_spin{c}")
        if c == 3:
            a(f"s_cmp_eq_u32 s{cnt}, 4")
            a(f"s_cbranch_scc1 {tag}_back{c}")
        a(f"ds_read_b32 v{V_POLL}, v{V_PADDR} offset:{((c+1)&3)*4}")
        a("s_waitcnt lgkmcnt(0)")
        a(cmp_landed(S, c))
        a("s_nop 4")
        a(f"s_cbranch_vccnz {tag}_spin{c}")
        a(f"s_branch {tag}_back{c}")
    a.label(f"{tag}_slow")
    a(f"""
    s_mov_b32 exec_lo, 0
    v_mov_b32 v{QA1}, 0
    v_mov_b32 v{QB1}, 0
    s_mov_b32 exec_lo, -1
    v_mov_b32 v{MA}, 0xff7fffff
    v_mov_b32 v{MB}, 0xff7fffff
    s_mov_b32 s{t1}, 0
    """)
    a.label(f"{tag}_sl_chunk")
    a(f"""
    s_and_b32 s{t2}, s{t1}, 3
    s_lshl_b32 s{t0}, s{t2}, 2
    v_add_u32 v{TMP+1}, s{t0}, v{V_PADDR}
    s_lshr_b32 s{cnt}, s{t1}, 2
    s_waitcnt lgkmcnt(0)
    s_mov_b64 exec, 1
    ds_add_u32 v{TMP+1}, v{V_ONE} offset:{W_ARR}
    s_mov_b64 exec, -1
    """)
    a.label(f"{tag}_sl_w")
    a(f"""
    ds_read_b32 v{V_POLL}, v{TMP+1}
    s_waitcnt lgkmcnt(0)
    v_cmp_ge_u32 vcc, s{cnt}, v{V_POLL}
    s_nop 4
    s_cbranch_vccnz {tag}_sl_w
    s_mul_i32 s{t0}, s{t2}, {CHUNK}
    s_add_u32 s{t2}, s{t0}, {CHUNK}
    """)
    a.label(f"{tag}_sl_tile")
    a(f"""
    v_add_u32 v{TMP}, s{t0}, v{V_L16}
    v_add_u32 v{TMP+1}, s{t0}, v{V_AK1}
    v_add_u32 v{TMP+2}, s{t0}, v{V_AV}
    ds_read_b128 {vr(K0[0],4)}, v{TMP}
    ds_read_b64 {vr(K1[0],2)}, v{TMP+1}
    ds_read_b128 {vr(VV[0][0],4)}, v{TMP+2}
    ds_read_b128 {vr(VV[0][1],4)}, v{TMP+2} offset:{2*V_PLANE}
    s_waitcnt lgkmcnt(0)
    """)
    for (S_, Q0, Q1) in ((SA, QA0, QA1), (SB, QB0, QB1)):
        a(mfma32(S_, K0[0], Q0, None))
        a(mfma8(S_, K1[0], Q1))
    a("s_nop 7"); a("s_nop 7")
    for (S_, P_, O_, M_) in ((SA, PA, OA, MA), (SB, PB, OB, MB)):
        a(f"v_max3_f32 v{TMP}, v{S_}, v{S_+1}, v{M_}")
        for i in range(2, 16, 2):
            a(f"v_max3_f32 v{TMP}, v{S_+i}, v{S_+i+1}, v{TMP}")
        a(f"v_mov_b32 v{TMP+1}, v{TMP}")
        a("s_nop 1")
        a(f"v_permlane32_swap_b32 v{TMP}, v{TMP+1}")
        a("s_nop 1")
        a(f"v_max_f32 v{TMP}, v{TMP}, v{TMP+1}")
        a(f"v_sub_f32 v{TMP+1}, v{M_}, v{TMP}")
        a(f"v_exp_f32 v{TMP+1}, v{TMP+1}")
        a(f"v_mov_b32 v{M_}, v{TMP}")
        for i in range(16):
            a(f"v_mul_f32 v{O_+i}, v{O_+i}, v{TMP+1}")
        for i in range(16):
            a(f"v_sub_f32 v{S_+i}, v{S_+i}, v{M_}")
        for x in valu_stream(S_, P_): a(x)
        a("s_nop 1")
        a(mfma32(O_, VV[0][0], P_, O_))
        a(mfma32(O_, VV[0][1], P_ + 4, O_))
    a(f"""
    s_add_u32 s{t0}, s{t0}, {TILE_B}
    s_cmp_lg_u32 s{t0}, s{t2}
    s_cbranch_scc1 {tag}_sl_tile
    s_add_u32 s{t1}, s{t1}, 1
    s_cmp_lg_u32 s{t1}, 16
    s_cbranch_scc1 {tag}_sl_chunk
    s_branch {tag}_fin
    """)

def epilogue(a, S, signal=True):
    srdw, oo, t0 = S["srdw"], S["oo"], S["t0"]
    sm = ' sc1' if signal else ''
    def pk(d, s):
        a(f"v_cvt_pk_bf16_f32 v{d}, v{s}, v{s+1}")
        a(f"v_cvt_pk_bf16_f32 v{d+1}, v{s+2}, v{s+3}")
    def norm(O, t):
        a(f"v_mov_b32 v{t}, v{O+8}")
        a(f"v_mov_b32 v{t+1}, v{O+8}")
        a("s_nop 1")
        a(f"v_permlane32_swap_b32 v{t}, v{t+1}")
        a("s_nop 1")
        a(f"v_rcp_f32 v{t+1}, v{t+1}")
        a("s_nop 0")
        for i in range(0, 12, 2):
            a(f"v_pk_mul_f32 {vr(O+i,2)}, {vr(O+i,2)}, {vr(t,2)} op_sel:[0,1] op_sel_hi:[1,1]")
    a("s_nop 7")
    a("s_nop 1")
    norm(OA, TMP + 14)
    pk(TMP, OA); pk(TMP + 2, OA + 4); pk(TMP + 4, OA + 8)
    a("s_nop 1")
    for i in range(2):
        a(f"v_permlane32_swap_b32 v{TMP+i}, v{TMP+2+i}")
    norm(OB, TMP + 14)
    a(f"buffer_store_dwordx4 {vr(TMP,4)}, v{V_T0+3}, {sr(srdw,4)}, s{oo} offen{sm}")
    pk(TMP + 6, OB); pk(TMP + 12, OB + 4); pk(TMP + 10, OB + 8)
    a(f"s_add_u32 s{t0}, s{oo}, {2*32768}")
    for i in range(2):
        a(f"v_permlane32_swap_b32 v{TMP+6+i}, v{TMP+12+i}")
    a("s_nop 1")
    for i in range(2):
        a(f"v_permlane32_swap_b32 v{TMP+4+i}, v{TMP+12+i}")
    a("s_nop 1")
    for i in range(2):
        a(f"v_permlane32_swap_b32 v{TMP+12+i}, v{TMP+8+i}")
    a(f"buffer_store_dwordx4 {vr(TMP+4,4)}, v{V_T0+3}, {sr(srdw,4)}, s{t0} offen{sm}")
    a(f"s_add_u32 s{t0}, s{oo}, {4*32768}")
    a("s_mov_b32 exec_hi, 0")
    a(f"buffer_store_dwordx4 {vr(TMP+8,4)}, v{V_T0+3}, {sr(srdw,4)}, s{t0} offen{sm}")
    if signal:
        wg, ws = S["wg"], S["ws"]
        a(f"""
        s_and_b32 s{t0}, s{wg}, 7
        s_lshl_b32 s{t0}, s{t0}, 2
        s_lshr_b32 s{S['t1']}, s{wg}, 6
        s_add_u32 s{t0}, s{t0}, s{S['t1']}
        s_lshl_b32 s{t0}, s{t0}, 7
        s_add_u32 s{t0}, s{t0}, {FL2_OFF}
        v_mov_b32 v{V_T0}, s{t0}
        s_mov_b64 exec, 1
        s_waitcnt vmcnt(0)
        global_atomic_add v{V_T0}, v{V_ONE}, {sr(ws,2)} sc1
        ds_add_u32 v{V_PADDR}, v{V_ONE} offset:{W_OP}
        """)
```

```python
from asmlib import *
from layout import *

def mfma16(d, a, b, c):
    cs = "0" if c is None else vr(c, 4)
    return f"v_mfma_f32_16x16x32_bf16 {vr(d,4)}, {vr(a,4)}, {vr(b,4)}, {cs}"

def srd(a, d, lo, hi, off, size):
    if off:
        a(f"s_add_u32 s{d}, s{lo}, {off}")
        a(f"s_addc_u32 s{d+1}, s{hi}, 0")
        a(f"s_and_b32 s{d+1}, s{d+1}, 0xffff")
    else:
        a(f"s_mov_b32 s{d}, s{lo}")
        a(f"s_and_b32 s{d+1}, s{hi}, 0xffff")
    a(f"s_mov_b32 s{d+2}, {size}")
    a(f"s_mov_b32 s{d+3}, 0x20000")

class G:
    def __init__(self, NB=3, ff=False, vbase=8):
        self.NB = NB
        v = vbase
        self.ACC = v; v += 80
        self.FB = []
        for i in range(NB): self.FB.append(v); v += 20
        if ff:
            self.F2 = []
            for i in range(NB): self.F2.append(v); v += 16
            self.TB = self.F2[0]
        else:
            self.TB = v; v += 16
        self.vT = v; v += 1
        self.vF = v; v += 1
        self.vR = v; v += 4
        v += v & 1
        self.tmp = v; v += 12
        self.nv = v

class G2:
    NB = 3
    JUNK = 4; vT = 5; vF = 6; ONE = 7; vR = 8; ACC = 12
    FB = [92, 112, 132]; TB = 152; tmp = 112; nv = 168

RING = 4096
REGION = 23552
REDOFF = 8192

def setup_lane(a, g, S, ldsbase):
    w = S["w"]; t0 = S["t0"]; t = g.tmp
    a(f"""
    v_and_b32 v{t}, 63, v0
    v_and_b32 v{t+1}, 15, v0                 ; i4 / r
    v_bfe_u32 v{t+2}, v0, 4, 2               ; kg
    s_mul_i32 s{S['lb']}, s{w}, {REGION}
    s_add_u32 s{S['lb']}, s{S['lb']}, {ldsbase}
    """)
    a(f"""
    v_lshrrev_b32 v{t+3}, 1, v{t+2}
    v_lshlrev_b32 v{t+3}, 4, v{t+3}
    v_and_b32 v{t+4}, 1, v{t+2}
    v_lshl_add_u32 v{t+3}, v{t+4}, 2, v{t+3}
    v_lshrrev_b32 v{t+5}, 2, v{t+1}
    v_add_u32 v{t+3}, v{t+3}, v{t+5}
    v_lshlrev_b32 v{t+3}, 7, v{t+3}          ; slot*128
    v_and_b32 v{t+5}, 3, v{t+1}
    v_lshl_add_u32 v{t+3}, v{t+5}, 3, v{t+3} ; + (i4&3)*8
    v_add_u32 v{t+3}, s{S['lb']}, v{t+3}
    v_lshrrev_b32 v{t+5}, 3, v{t+1}
    v_lshl_add_u32 v{t+5}, v{t+4}, 1, v{t+5} ; swz
    """)
    for b in range(4):
        a(f"s_add_u32 s{t0}, s{w}, {b}")
        a(f"s_and_b32 s{t0}, s{t0}, 3")
        a(f"v_xor_b32 v{t+6}, s{t0}, v{t+5}")
        a(f"v_lshl_add_u32 v{g.vR+b}, v{t+6}, 5, v{t+3}")

def setup_T(a, g, stride):
    t = g.tmp
    a(f"""
    v_bfe_u32 v{t+6}, v0, 3, 2
    v_bfe_u32 v{t+7}, v0, 5, 1
    v_lshl_add_u32 v{t+6}, v{t+7}, 3, v{t+6}
    v_mul_u32_u24 v{g.vT}, {stride}, v{t+6}
    v_and_b32 v{t+6}, 7, v0
    v_lshlrev_b32 v{t+7}, 1, v{t+2}
    v_xor_b32 v{t+6}, v{t+6}, v{t+7}
    v_lshl_add_u32 v{g.vT}, v{t+6}, 4, v{g.vT}
    """)

def setup_F(a, g, vdst, plane):
    t = g.tmp
    a(f"""
    v_mul_u32_u24 v{vdst}, {plane}, v{t+2}
    v_lshl_add_u32 v{vdst}, v{t+1}, 4, v{vdst}
    """)

def issue(a, g, S, b, P, part="TF"):
    so4 = S["so4"]; sf = S["sf"]
    if part == "T":
        a(f"s_add_u32 m0, s{S['lb']}, {b*RING}")
        a("s_nop 0")
        for i in range(4):
            a(f"buffer_load_dwordx4 v{g.vT}, {sr(P['srdT'],4)}, s{so4+i} offen offset:{i*1024} lds")
        for i in range(4):
            a(f"s_add_u32 s{so4+i}, s{so4+i}, {32 * P['W'] * P['strideT']}")
        return
    if part == "F":
        for j in range(5):
            a(f"buffer_load_dwordx4 {vr(g.FB[b]+4*j,4)}, v{g.vF}, {sr(P['srdF'],4)}, s{sf} offen offset:{j*256}{P.get('fmod','')}")
        a(f"s_add_u32 s{sf}, s{sf}, {4*P['W']*P['planeF']}")
        return
    if P["mode"] == "TF":
        a(f"s_add_u32 m0, s{S['lb']}, {b*RING}")
        fm = P.get("fmod", "")
        a(f"buffer_load_dwordx4 {vr(g.FB[b],4)}, v{g.vF}, {sr(P['srdF'],4)}, s{sf} offen{fm}")
        for i in range(4):
            a(f"buffer_load_dwordx4 v{g.vT}, {sr(P['srdT'],4)}, s{so4+i} offen offset:{i*1024} lds")
        for j in range(1, 5):
            a(f"buffer_load_dwordx4 {vr(g.FB[b]+4*j,4)}, v{g.vF}, {sr(P['srdF'],4)}, s{sf} offen offset:{j*256}{fm}")
        inc = 32 * P["W"] * P["strideT"]
    else:
        for i in range(4):
            a(f"buffer_load_dwordx4 {vr(g.F2[b]+4*i,4)}, v{g.vT}, {sr(P['srdT'],4)}, s{so4+i} offen")
        for j in range(5):
            a(f"buffer_load_dwordx4 {vr(g.FB[b]+4*j,4)}, v{g.vF}, {sr(P['srdF'],4)}, s{sf} offen offset:{j*256}")
        inc = 4 * P["W"] * P["plane2"]
    for i in range(4):
        a(f"s_add_u32 s{so4+i}, s{so4+i}, {inc}")
    a(f"s_add_u32 s{sf}, s{sf}, {4*P['W']*P['planeF']}")

def init_offsets(a, g, S, P, sTbase, sFbase):
    so4 = S["so4"]; sf = S["sf"]; w = S["w"]; t0 = S["t0"]
    if P["mode"] == "TF":
        st = P["strideT"]
        a(f"s_mul_i32 s{t0}, s{w}, {32*st}")
        a(f"s_add_u32 s{so4}, s{t0}, s{sTbase}")
        for i in range(1, 4):
            a(f"s_add_u32 s{so4+i}, s{so4}, {(16*(i>>1)+4*(i&1))*st - 1024*i}")
    else:
        a(f"s_mul_i32 s{sf}, s{w}, {4*P['plane2']}")
        a(f"s_add_u32 s{sf}, s{sf}, s{sTbase}")
        for i in range(4):
            a(f"s_add_u32 s{t0}, s{w}, {i}")
            a(f"s_and_b32 s{t0}, s{t0}, 3")
            a(f"s_lshl_b32 s{t0}, s{t0}, 8")
            a(f"s_add_u32 s{so4+i}, s{sf}, s{t0}")
    a(f"s_mul_i32 s{t0}, s{w}, {4*P['planeF']}")
    a(f"s_add_u32 s{sf}, s{t0}, s{sFbase}")

def prologue_loads(a, g, S, P):
    for b in range(g.NB - 1):
        issue(a, g, S, b, P)

def zero_acc(a, g):
    for i in range(80):
        a(f"v_mov_b32 v{g.ACC+i}, 0")

class _L:
    def __init__(self): self.l = []
    def __call__(self, x): self.l += [y.strip() for y in x.split("\n") if y.strip()]

def roll_prologue(a, g, S, P, tpart=True, fpart=True):
    assert g.NB == 3
    if tpart and fpart:
        issue(a, g, S, 0, P, "T"); issue(a, g, S, 0, P, "F"); issue(a, g, S, 1, P, "T")
        issue(a, g, S, 1, P, "F"); issue(a, g, S, 2, P, "T")
    elif tpart:
        for b in range(3): issue(a, g, S, b, P, "T")
    else:
        for b in range(2): issue(a, g, S, b, P, "F")

def main_loop(a, g, S, P, tag, nsteps, midentry=False, czero=0, check=None, prios=None):
    NB = 3; cnt = S["cnt"]
    def rd(b, tb):
        return [f"ds_read_b64_tr_b16 {vr(g.TB+4*tb+2*t,2)}, v{g.vR+tb} offset:{b*RING+t*1024}" for t in range(2)]
    def groups(L):
        out = []
        for x in L:
            if x.startswith("buffer_"): out.append([x])
            else: out[-1].append(x)
        return out
    def sub(b, first):
        L = _L(); issue(L, g, S, b, P, "T")
        m0 = L.l[0]; Tl = groups(L.l[2:])
        L = _L(); issue(L, g, S, (b + 2) % NB, P, "F")
        Fl = groups(L.l)
        a(f"s_waitcnt vmcnt({9 if (first and midentry) else 13})")
        k = 0
        for tb in range(4):
            if prios and not first and (tb == 0 or prios[tb] != prios[tb - 1]): a(f"s_setprio {prios[tb]}")
            a("s_waitcnt lgkmcnt(6)")
            T = g.TB + 4 * tb
            for j in range(5):
                acc = g.ACC + (tb * 5 + j) * 4
                Fr = g.FB[b] + 4 * j
                c = None if (first and k >= czero) else acc
                if P["TisA"]: a(mfma16(acc, T, Fr, c))
                else: a(mfma16(acc, Fr, T, c))
                if k == 0:
                    a(m0)
                    if check: check()
                k += 1
                if tb < 3 and j in (1, 3) and Fl:
                    for x in Fl.pop(0): a(x)
                if tb == 3 and j < 4:
                    for x in Tl.pop(0): a(x)
            if tb == 0: a("s_waitcnt vmcnt(11)")
            for x in rd((b + 1) % NB, tb): a(x)
        assert not Fl and not Tl
    a(f"s_mov_b32 s{cnt}, {nsteps - 1}")
    a(f"s_waitcnt vmcnt({14 if midentry else 18})")
    for tb in range(4):
        for x in rd(0, tb): a(x)
    sub(0, True)
    a.label(f"{tag}_loop")
    for i in range(NB):
        sub((i + 1) % NB, False)
        a(f"s_sub_u32 s{cnt}, s{cnt}, 1")
        a(f"s_cmp_eq_u32 s{cnt}, 0")
        if i < NB - 1:
            a(f"s_cbranch_scc1 {tag}_done")
        else:
            a(f"s_cbranch_scc0 {tag}_loop")
    a.label(f"{tag}_done")

def reduce4(a, g, S, ldsbase, sync, mid=None, post=None):
    t = g.tmp; w = S["w"]; t0 = S["t0"]
    a("s_waitcnt vmcnt(0) lgkmcnt(0)")
    a(f"v_and_b32 v{t}, 63, v0")
    a(f"v_lshlrev_b32 v{t}, 4, v{t}")
    a(f"v_add_u32 v{t+1}, s{S['lb']}, v{t}")
    a("s_nop 7")
    for tb in range(1, 4):
        for j in range(5):
            a(f"ds_write_b128 v{t+1}, {vr(g.ACC+(tb*5+j)*4,4)} offset:{REDOFF+((tb-1)*5+j)*1024}")
    if mid: mid()
    for tb in range(1, 4):
        a(f"s_sub_u32 s{t0}, s{w}, {tb}")
        a(f"s_and_b32 s{t0}, s{t0}, 3")
        a(f"s_mul_i32 s{t0}, s{t0}, {REGION}")
        a(f"s_add_u32 s{t0}, s{t0}, {ldsbase + REDOFF + (tb-1)*5120}")
        a(f"v_add_u32 v{t+1+tb}, s{t0}, v{t}")
    a("s_waitcnt lgkmcnt(0)")
    sync()
    for tb in range(1, 4):
        for j in range(5):
            a(f"ds_read_b128 {vr(g.ACC+(tb*5+j)*4,4)}, v{t+1+tb} offset:{j*1024}")
    if post: post()
    for tb in range(1, 4):
        a(f"s_waitcnt lgkmcnt({15-5*tb})")
        for i in range(0, 20, 2):
            a(f"v_pk_add_f32 {vr(g.ACC+i,2)}, {vr(g.ACC+i,2)}, {vr(g.ACC+tb*20+i,2)}")

def f2u(x):
    import struct
    return struct.unpack("<I", struct.pack("<f", x))[0]

GC1 = -2.0 * 1.4426950408889634 * 0.7978845608028654
GC2 = GC1 * 0.044715

def b1_epilogue(a, g, S, srdU, sUo, vB, store_mod=""):
    t = g.tmp; A = g.ACC; X = g.ACC + 20
    a(f"v_lshlrev_b32 v{t}, 16, v{vB}")
    a(f"v_and_b32 v{t+1}, 0xffff0000, v{vB}")
    a(f"v_lshlrev_b32 v{t+2}, 16, v{vB+1}")
    a(f"v_and_b32 v{t+3}, 0xffff0000, v{vB+1}")
    a(f"v_mov_b32 v{t+4}, {hex(f2u(GC1))}")
    a(f"v_mov_b32 v{t+5}, {hex(f2u(GC2))}")
    for j in range(5):
        for i in (0, 2):
            a(f"v_pk_add_f32 {vr(A+4*j+i,2)}, {vr(A+4*j+i,2)}, {vr(t+i,2)}")
    for i in range(0, 20, 2):
        a(f"v_pk_mul_f32 {vr(X+i,2)}, {vr(A+i,2)}, {vr(A+i,2)}")
    for i in range(0, 20, 2):
        a(f"v_pk_fma_f32 {vr(X+i,2)}, {vr(X+i,2)}, {vr(t+4,2)}, {vr(t+4,2)} op_sel:[0,1,0] op_sel_hi:[1,1,0]")
    for i in range(0, 20, 2):
        a(f"v_pk_mul_f32 {vr(X+i,2)}, {vr(X+i,2)}, {vr(A+i,2)}")
    for i in range(20):
        a(f"v_exp_f32 v{X+i}, v{X+i}")
    for i in range(0, 20, 2):
        a(f"v_pk_add_f32 {vr(X+i,2)}, {vr(X+i,2)}, 1.0 op_sel_hi:[1,0]")
    for i in range(20):
        a(f"v_rcp_f32 v{X+i}, v{X+i}")
    for i in range(0, 20, 2):
        a(f"v_pk_mul_f32 {vr(X+i,2)}, {vr(X+i,2)}, {vr(A+i,2)}")
    pack_store(a, g, X, srdU, sUo, PLANE=10240, rowstride=16, mode="F", store_mod=store_mod)

def pack_store(a, g, X, srdO, sO, PLANE, rowstride, mode, store_mod=""):
    t = g.tmp; Pk = g.ACC + 40
    for j in range(5):
        a(f"v_cvt_pk_bf16_f32 v{Pk+2*j}, v{X+4*j}, v{X+4*j+1}")
        a(f"v_cvt_pk_bf16_f32 v{Pk+2*j+1}, v{X+4*j+2}, v{X+4*j+3}")
    a(f"v_mov_b32 v{Pk+10}, v{Pk+8}")
    a(f"v_mov_b32 v{Pk+11}, v{Pk+9}")
    a(f"v_and_b32 v{t}, 15, v0")
    a(f"v_bfe_u32 v{t+1}, v0, 4, 1")
    a(f"v_bfe_u32 v{t+2}, v0, 5, 1")
    if mode == "F":
        a(f"v_lshl_add_u32 v{t}, v{t+1}, 4, v{t}")
        a(f"v_lshlrev_b32 v{t}, 4, v{t}")
        a(f"v_mul_u32_u24 v{t+2}, {PLANE}, v{t+2}")
        a(f"v_add_u32 v{t}, v{t}, v{t+2}")
        step = 512
    else:
        a(f"v_mul_u32_u24 v{t}, {rowstride}, v{t}")
        a(f"v_lshl_add_u32 v{t}, v{t+1}, 5, v{t}")
        a(f"v_lshl_add_u32 v{t}, v{t+2}, 4, v{t}")
        step = 64
    for p in range(3):
        for i in range(2):
            a(f"v_permlane16_swap_b32 v{Pk+4*p+i}, v{Pk+4*p+2+i}")
    a("s_nop 1")
    for p in range(3):
        if p == 2:
            a("s_mov_b32 exec_lo, 0xffff")
            a("s_mov_b32 exec_hi, 0xffff")
        a(f"buffer_store_dwordx4 {vr(Pk+4*p,4)}, v{t}, {sr(srdO,4)}, s{sO} offen offset:{p*step}{store_mod}")
    a("s_mov_b64 exec, -1")

def transpose_task(a, vb, S, srdI, sIo, srdO, sOo, ldsaddr_s, body=None, store_mod=""):
    X = vb + 8; t = vb
    a(f"""
    v_bfe_u32 v{t}, v0, 3, 3
    v_and_b32 v{t+1}, 7, v0
    v_mul_u32_u24 v{t+2}, 1280, v{t}
    v_lshl_add_u32 v{t+2}, v{t+1}, 4, v{t+2}
    """)
    for i in range(10):
        a(f"buffer_load_dwordx4 {vr(X+4*i,4)}, v{t+2}, {sr(srdI,4)}, s{sIo} offen offset:{i*128}")
    a(f"""
    v_mul_u32_u24 v{t+2}, 1344, v{t}
    v_lshl_add_u32 v{t+2}, v{t+1}, 4, v{t+2}
    v_add_u32 v{t+2}, s{ldsaddr_s}, v{t+2}
    v_bfe_u32 v{t+3}, v0, 2, 2
    v_mul_u32_u24 v{t+3}, 1344, v{t+3}
    v_bfe_u32 v{t+4}, v0, 4, 2
    v_lshl_add_u32 v{t+3}, v{t+4}, 5, v{t+3}
    v_and_b32 v{t+4}, 3, v0
    v_lshl_add_u32 v{t+3}, v{t+4}, 3, v{t+3}
    v_add_u32 v{t+3}, s{ldsaddr_s}, v{t+3}
    v_and_b32 v{t+4}, 63, v0
    v_lshlrev_b32 v{t+4}, 4, v{t+4}
    """)
    if body: body(a, X, t + 5)
    else: a("s_waitcnt vmcnt(0)")
    for i in range(10):
        a(f"ds_write_b128 v{t+2}, {vr(X+4*i,4)} offset:{i*128}")
    a("s_waitcnt lgkmcnt(0)")
    for j in range(10):
        a(f"ds_read_b64_tr_b16 {vr(X+4*j,2)}, v{t+3} offset:{j*128}")
        a(f"ds_read_b64_tr_b16 {vr(X+4*j+2,2)}, v{t+3} offset:{j*128+4*1344}")
    for j in range(10):
        if j in (0, 4, 8):
            a(f"s_waitcnt lgkmcnt({max(0, 20-2*(j+4))})")
        if j in (4, 8):
            a(f"s_add_u32 s{sOo}, s{sOo}, 4096")
        a(f"buffer_store_dwordx4 {vr(X+4*j,4)}, v{t+4}, {sr(srdO,4)}, s{sOo} offen offset:{(j%4)*1024}{store_mod}")


def transpose_tail(a, vb, srdO, sOo, lds, store_mod=""):
    X = vb + 8; t = vb
    a(f"""
    v_bfe_u32 v{t}, v0, 3, 3
    v_and_b32 v{t+1}, 7, v0
    v_mul_u32_u24 v{t+2}, 1344, v{t}
    v_lshl_add_u32 v{t+2}, v{t+1}, 4, v{t+2}
    v_bfe_u32 v{t+3}, v0, 2, 2
    v_mul_u32_u24 v{t+3}, 1344, v{t+3}
    v_bfe_u32 v{t+4}, v0, 4, 2
    v_lshl_add_u32 v{t+3}, v{t+4}, 5, v{t+3}
    v_and_b32 v{t+4}, 3, v0
    v_lshl_add_u32 v{t+3}, v{t+4}, 3, v{t+3}
    v_and_b32 v{t+4}, 63, v0
    v_lshlrev_b32 v{t+4}, 4, v{t+4}
    """)
    for i in range(10):
        a(f"ds_write_b128 v{t+2}, {vr(X+4*i,4)} offset:{lds+i*128}")
    a("s_waitcnt lgkmcnt(0)")
    for j in range(10):
        a(f"ds_read_b64_tr_b16 {vr(X+4*j,2)}, v{t+3} offset:{lds+j*128}")
        a(f"ds_read_b64_tr_b16 {vr(X+4*j+2,2)}, v{t+3} offset:{lds+j*128+4*1344}")
    for j in range(10):
        if j in (0, 4, 8):
            a(f"s_waitcnt lgkmcnt({max(0, 20-2*(j+4))})")
        if j in (4, 8):
            a(f"s_add_u32 s{sOo}, s{sOo}, 4096")
        a(f"buffer_store_dwordx4 {vr(X+4*j,4)}, v{t+4}, {sr(srdO,4)}, s{sOo} offen offset:{(j%4)*1024}{store_mod}")
```

```python
S = 2048; D = 640; H = 32; DH = 20; F = 1728
QP_OFF  = 0
QP_SZ   = 160 * 2048 * 8
KV_OFF  = QP_OFF + QP_SZ
KV_SZ   = 64 * 3072
KM_OFF  = KV_OFF + KV_SZ
KM_SZ   = 20480
FL_OFF  = KM_OFF + 4096
FL2_OFF = FL_OFF + 4096
FL3_OFF = FL2_OFF + 4096
FL4_OFF = FL3_OFF + 4096
FL_SZ = 16384
HF_OFF  = KM_OFF + KM_SZ
HF_SZ   = 256 * 640 * 16
UF_OFF  = HF_OFF + HF_SZ
UF_SZ   = 216 * 640 * 16
OF_OFF  = UF_OFF + UF_SZ
OF_SZ   = 80 * 2048 * 16
WOF_OFF = OF_OFF + OF_SZ
WOF_SZ  = 80 * 640 * 16
Y_OFF   = WOF_OFF + WOF_SZ
Y_SZ    = 2048 * 640 * 4
WS_END  = Y_OFF + Y_SZ + 4 * 65536
TILE_B = 3072
V_OFF_T = 1280
V_PLANE = 448
K1_OFF_T = 1024
if __name__ == "__main__":
    for k, v in list(globals().items()):
        if k.endswith("_OFF") or k == "WS_END": print(k, v, hex(v), v % 4096)
```

```python
from asmlib import *
from layout import *
from gemm import *
import attn3 as attn
from attn import kd
from attn3 import CHUNK, W_LAND, W_GO, W_KM, W_QD, W_XN, W_OP, W_LW, W_CW, W_ARR, W_SY, W_SH
from kernels import finish, stamp_begin, stamp_mid, stamp_end, GS
from k1 import mfma32, mfma8, ln_stats, half_sum, split3, QSCALE

GBASE = 4 * CHUNK
LWORD = 162816
LDS = 163840
HST = 26624; VST = 37376; XN = 39424; WR = XN + 40960; WSL = 20480
assert WR + 4 * WSL <= LWORD
def waddr(k):
    if k < 2: return GBASE + 4 * REGION + 5120 * k
    if k < 8: return ((k - 2) >> 1) * CHUNK + (k & 1) * 5120
    if k < 12: return GBASE + (k - 8) * REGION
    return GBASE + ((k - 12) >> 1) * REGION + REDOFF + (k & 1) * 5120
W_HD = 36
LIM = 0x100000

def mega_kernel(name, stamp=False, eprio=2, psleep=8, lprio=3, pch=10, sm=0, p1=None, p2=None, lsleep=8,
                pf_at=7, osleep=8, hsleep=16, akw={}, qs=0, gsl=2, cprio=2, look=9, pfw=0, w8prio=3, hmode=1, pfq=False, hks=8, dbg=0, pfn0=0, pub0=True, pfm='', pfc=False, pfm2=''):
    a = Asm()
    N = name
    uid = [0]
    def lds_wait(vaddr, off, cmp, val, vtmp, sleep):
        i = uid[0]; uid[0] += 1
        a.label(f"{N}_lw{i}")
        a(f"""
        ds_read_b32 v{vtmp}, v{vaddr} offset:{off}
        s_waitcnt lgkmcnt(0)
        v_cmp_{cmp}_u32 s[84:85], {val}, v{vtmp}
        s_nop 1
        s_cmp_eq_u64 s[84:85], 0
        s_cbranch_scc1 {N}_lx{i}
        s_sleep {sleep}
        s_branch {N}_lw{i}
        """)
        a.label(f"{N}_lx{i}")
    def g_wait(vaddr, val, vtmp, sleep, mask=1, base=4):
        i = uid[0]; uid[0] += 1
        a("s_mov_b32 s71, 0")
        a(f"s_mov_b32 s3, {val}")
        a(f"s_mov_b64 exec, {mask}")
        a.label(f"{N}_gw{i}")
        a(f"""
        global_load_dword v{vtmp}, v{vaddr}, s[{base}:{base+1}] sc1
        s_add_u32 s71, s71, 1
        s_waitcnt vmcnt(0)
        v_cmp_gt_u32 s[84:85], s3, v{vtmp}
        s_cmp_ge_u32 s71, {LIM}
        s_cbranch_scc1 {N}_gx{i}
        s_cmp_eq_u64 s[84:85], 0
        s_cbranch_scc1 {N}_gx{i}
        s_sleep {sleep}
        s_branch {N}_gw{i}
        """)
        a.label(f"{N}_gx{i}")
        a("s_mov_b64 exec, -1")
    def zload(v):
        a(f"v_mov_b32 v{v}, 0")
        a(f"global_load_dword v{v}, v{v}, s[78:79] sc1")
    def publish(vz, vt, soff, mask=1, lane_stride=None):
        i = uid[0]; uid[0] += 1
        a(f"""
        s_mov_b64 exec, -1
        s_waitcnt vmcnt(0)
        v_readfirstlane_b32 s3, v{vz}
        v_mov_b32 v{vz}, 0
        s_cmp_lg_u32 s3, 0
        s_cbranch_scc1 {N}_zk{i}
        """)
        g_wait(vz, 1, vt, 2, base=78)
        a.label(f"{N}_zk{i}")
        if lane_stride is None: a(f"v_mov_b32 v{vt}, s{soff}")
        else:
            a(f"v_and_b32 v{vt}, 63, v0")
            a(f"v_lshl_add_u32 v{vt}, v{vt}, {lane_stride}, s{soff}")
        a(f"""
        v_mov_b32 v{vz}, 1
        s_mov_b64 exec, {mask}
        global_atomic_add v{vt}, v{vz}, s[4:5] sc1
        """)
    def lds_inc(vaddr, vone, off):
        a("s_mov_b64 exec, 1")
        a(f"ds_add_u32 v{vaddr}, v{vone} offset:{off}")
        a("s_mov_b64 exec, -1")
    def ln_pass(X, A0, U, waits):
        for i in range(4): a(f"v_mov_b32 v{A0+i}, 0")
        for i in range(40):
            if i % 4 == 0: a(waits(i // 4))
            a(f"v_dot2_f32_bf16 v{A0+(i&1)}, v{X+i}, s60, v{A0+(i&1)}")
            a(f"v_dot2_f32_bf16 v{A0+2+(i&1)}, v{X+i}, v{X+i}, v{A0+2+(i&1)}")
        a("s_nop 2")
        a(f"v_add_f32 v{A0}, v{A0}, v{A0+1}")
        a(f"v_add_f32 v{A0+2}, v{A0+2}, v{A0+3}")
        for dpp in ("quad_perm:[1,0,3,2]", "quad_perm:[2,3,0,1]", "row_half_mirror"):
            a("s_nop 0")
            a(f"v_add_f32_dpp v{A0}, v{A0}, v{A0} {dpp} row_mask:0xf bank_mask:0xf")
            a(f"v_add_f32_dpp v{A0+2}, v{A0+2}, v{A0+2} {dpp} row_mask:0xf bank_mask:0xf")
        ln_stats(a, A0, A0 + 2, A0 + 1, 61, 62)
        a(f"v_mul_f32 v{A0}, v{A0}, v{A0+2}")
        for i in range(40):
            u = U + 2 * (i & 3)
            a(f"v_lshlrev_b32 v{u}, 16, v{X+i}")
            a(f"v_and_b32 v{u+1}, 0xffff0000, v{X+i}")
            a(f"v_pk_fma_f32 {vr(u,2)}, {vr(u,2)}, {vr(A0+2,2)}, {vr(A0,2)} op_sel_hi:[1,0,0] neg_lo:[0,0,1] neg_hi:[0,0,1]")
            a(f"v_cvt_pk_bf16_f32 v{X+i}, v{u}, v{u+1}")
    def row_addr(d, t, srow):
        a(f"""
        v_bfe_u32 v{t}, v0, 3, 3
        s_lshl_b32 s7, s{srow}, 3
        v_add_u32 v{t}, s7, v{t}
        v_and_b32 v{t+1}, 7, v0
        v_and_b32 v{d}, 15, v{t}
        v_xor_b32 v{t+1}, v{t+1}, v{d}
        v_mul_u32_u24 v{t}, 1280, v{t}
        v_add_u32 v{t}, {XN}, v{t}
        v_lshl_add_u32 v{d}, v{t+1}, 4, v{t}
        v_xor_b32 v{t+1}, 8, v{t+1}
        v_lshl_add_u32 v{d+1}, v{t+1}, 4, v{t}
        """)
    def frag_addr(AX, t):
        a(f"""
        v_and_b32 v{t}, 31, v0
        v_bfe_u32 v{t+1}, v0, 5, 1
        v_and_b32 v{t+2}, 15, v0
        v_xor_b32 v{t+1}, v{t+1}, v{t+2}
        v_mul_u32_u24 v{t}, 1280, v{t}
        v_add_u32 v{t}, {XN}, v{t}
        """)
        for j in range(8):
            a(f"v_xor_b32 v{AX+j}, {2*j}, v{t+1}")
            a(f"v_lshl_add_u32 v{AX+j}, v{AX+j}, 4, v{t}")
    def tr_addr(d, t, pitch):
        a(f"""
        v_bfe_u32 v{t}, v0, 2, 2
        v_bfe_u32 v{t+1}, v0, 5, 1
        v_lshl_add_u32 v{t}, v{t+1}, 3, v{t}
        v_mul_u32_u24 v{d}, {pitch}, v{t}
        v_bfe_u32 v{t}, v0, 4, 1
        v_lshl_add_u32 v{d}, v{t}, 5, v{d}
        v_and_b32 v{t}, 3, v0
        v_lshl_add_u32 v{d}, v{t}, 3, v{d}
        """)

    a.label(N)
    a(f"""
    s_cmp_ge_u32 s2, 256
    s_cbranch_scc1 {N}_end
    s_load_dwordx4 s[56:59], s[0:1], 0
    s_load_dwordx2 s[4:5], s[0:1], 96
    s_load_dwordx4 s[80:83], s[0:1], 16
    s_load_dwordx4 s[40:43], s[0:1], 48
    s_load_dwordx2 s[44:45], s[0:1], 32
    s_load_dwordx2 s[76:77], s[0:1], 64
    s_load_dwordx4 s[72:75], s[0:1], 72
    s_load_dwordx2 s[78:79], s[0:1], 88
    v_lshrrev_b32 v1, 6, v0
    s_and_b32 s46, s2, 7
    v_readfirstlane_b32 s6, v1
    """)
    X_, WQ_, W2_ = 56, 58, 76
    if stamp: stamp_begin(a)
    a(f"""
    s_bfe_u32 s47, s2, 0x20003
    s_lshr_b32 s49, s2, 5
    s_lshl_b32 s7, s46, 3
    s_add_u32 s49, s49, s7
    s_lshr_b32 s48, s49, 1
    s_mov_b32 s60, 0x3f803f80
    s_mov_b32 s61, {hex(f2u(1.0/640))}
    s_mov_b32 s62, {hex(f2u(1e-5))}
    s_mov_b32 s70, s6
    s_cmp_eq_u32 s6, 8
    s_cbranch_scc1 {N}_w8
    s_cmp_ge_u32 s6, 4
    s_cbranch_scc1 {N}_stg
    """)
    X = 64; A0 = 104; U = 108; AX = 24; AW = 20; XF = 32; WF = 104; ACC = 64; PD = 146; ON = 145
    a(f"""
    s_setprio {cprio}
    v_bfe_u32 v8, v0, 3, 3
    v_and_b32 v9, 7, v0
    v_mul_u32_u24 v8, 1280, v8
    v_lshl_add_u32 v8, v9, 4, v8
    s_lshl_b32 s7, s49, 2
    s_add_u32 s7, s7, s6
    s_mul_i32 s20, s7, 10240
    s_waitcnt lgkmcnt(0)
    """)
    srd(a, 12, X_, X_ + 1, 0, 2048 * 1280)
    for i in range(10):
        a(f"buffer_load_dwordx4 {vr(X+4*i,4)}, v8, s[12:15], s20 offen offset:{i*128}")
    a("s_barrier")
    S = dict(attn.SREG)
    attn.setup(a, S, LWORD)
    PD = attn.V_PADDR; ON = attn.V_ONE
    row_addr(22, 8, 6)
    frag_addr(AX, 8)
    tr_addr(AW, 8, 320)
    a(f"""
    s_mul_i32 s7, s6, 80
    s_add_u32 s7, s7, {WR}
    v_add_u32 v{AW}, s7, v{AW}
    v_add_u32 v{AW+1}, {3*WSL}, v{AW}
    """)
    ln_pass(X, A0, U, lambda i: f"s_waitcnt vmcnt({9-i})")
    for i in range(10):
        a(f"ds_write_b128 v{22+(i&1)}, {vr(X+4*i,4)} offset:{(i>>1)*256}")
    a("s_waitcnt lgkmcnt(0)")
    lds_inc(PD, ON, W_XN)
    if hmode == 1:
        a(f"""
        s_cmp_lg_u32 s6, s47
        s_cbranch_scc1 {N}_nh
        s_lshl_b32 s7, s49, 2
        s_add_u32 s7, s7, s47
        s_mul_i32 s24, s7, 10240
        s_add_u32 s24, s24, {HF_OFF}
        """)
        if dbg != 1:
            ln_pass(X, A0, U, lambda i: "")
            transpose_tail(a, X - 8, 8, 24, HST, store_mod=" sc1")
        a.label(f"{N}_nh")
    if stamp and qs == 2: stamp_mid(a, 3)
    lds_wait(PD, W_XN, "gt", 4, 8, 1)
    def qrd(ks):
        c, k = ks >> 2, ks & 3
        sl = c & 3
        L = [f"ds_read_b128 {vr(XF+4*k,4)}, v{AX+(ks&7)} offset:{(ks>>3)*256}"]
        for b in range(2):
            for t in range(2):
                L.append(f"ds_read_b64_tr_b16 {vr(WF+8*k+4*b+2*t,2)}, v{AW+(sl==3)} offset:{(sl%3)*WSL+(16*k+4*t)*320+64*b}")
        return L
    lds_wait(PD, W_LW, "gt", 4, 8, 1)
    for ks in range(2):
        for x in qrd(ks): a(x)
    for ks in range(40):
        c, k = ks >> 2, ks & 3
        if k == 2 and c < 9:
            lds_wait(PD, W_LW + 4 * (c + 1), "gt", 4, 8, 1)
        else:
            a(f"s_waitcnt lgkmcnt({5 if ks < 39 else 0})")
        if k == 0 and c > 0 and c < 7: lds_inc(PD, ON, W_CW + 4 * (c - 1))
        if k == 0 and c == look + 1: lds_inc(PD, ON, W_CW + 4 * (c - 1))
        if stamp and qs == 4 and ks == 16: stamp_mid(a, 3)
        if hmode == 1 and ks == hks:
            a(f"""
            s_cmp_lg_u32 s6, s47
            s_cbranch_scc1 {N}_nh2
            s_waitcnt vmcnt(0)
            """)
            lds_inc(PD, ON, W_HD)
            a.label(f"{N}_nh2")
        fill = qrd(ks + 2) if ks + 2 < 40 else []
        for b in range(2):
            a(mfma32(ACC + 16 * b, WF + 8 * k + 4 * b, XF + 4 * k, (ACC + 16 * b) if ks else None))
            for x in fill[3 * b:3 * b + 3]: a(x)
    lds_inc(PD, ON, W_QD)
    if stamp and qs == 0: stamp_mid(a, 3)
    QA0, QB0, QA1, QB1 = attn.QA0, attn.QB0, attn.QA1, attn.QB1
    a(f"v_mov_b32 v22, {hex(f2u(QSCALE))}")
    a("s_nop 7")
    Y, Z = 32, 34
    for (d, r) in ((QA0, ACC), (QA0 + 2, ACC + 4), (QA1, ACC + 8), (Y, ACC + 12), (Z, ACC + 16)):
        a(f"v_pk_mul_f32 {vr(r,2)}, {vr(r,2)}, v[22:23] op_sel_hi:[1,0]")
        a(f"v_pk_mul_f32 {vr(r+2,2)}, {vr(r+2,2)}, v[22:23] op_sel_hi:[1,0]")
        a(f"v_cvt_pk_bf16_f32 v{d}, v{r}, v{r+1}")
        a(f"v_cvt_pk_bf16_f32 v{d+1}, v{r+2}, v{r+3}")
    a("s_nop 1")
    for i in range(2):
        a(f"v_permlane32_swap_b32 v{QB0+i}, v{Y+i}")
        a(f"v_permlane32_swap_b32 v{QB0+2+i}, v{Z+i}")
    a("s_nop 1")
    for i in range(2):
        a(f"v_permlane32_swap_b32 v{QA1+i}, v{QB0+i}")
        a(f"v_permlane32_swap_b32 v{Y+i}, v{QB0+2+i}")
        a(f"v_permlane32_swap_b32 v{Z+i}, v{QB1+i}")
    a("s_nop 0")
    for r in (QA1, QA1 + 1, QB1, QB1 + 1):
        a(f"v_cndmask_b32_e64 v{r}, v{r}, 0, s[22:23]")
    if stamp: stamp_mid(a, 2)
    attn.bound(a, S, N, lambda: lds_wait(PD, W_LAND, "gt", 1, attn.V_POLL, 1))
    a("s_setprio 0")
    if stamp: stamp_mid(a, 0)
    attn.main(a, S, N, **akw)
    if stamp: stamp_mid(a, 1)
    attn.epilogue(a, S)
    if stamp: stamp_end(a, 8, 70, 0, nw=8)
    a("s_endpgm")
    attn.tails(a, S, N)

    a.label(f"{N}_stg")
    a(f"""
    s_sub_u32 s6, s6, 4
    v_and_b32 v1, 63, v0
    """)
    for i in range(5):
        a(f"""
        v_add_u32 v2, {64*i}, v1
        v_mul_u32_u24 v3, 3277, v2
        v_lshrrev_b32 v3, 16, v3
        v_mul_u32_u24 v3, {1280 - 320}, v3
        v_lshl_add_u32 v{8+i}, v2, 4, v3
        """)
        if 0 < i < 4: a(f"v_subrev_u32 v{8+i}, {1024*i}, v{8+i}")
    a(f"""
    s_mul_i32 s20, s6, {16*1280}
    s_mul_i32 s7, s47, 320
    s_add_u32 s20, s20, s7
    s_mul_i32 s21, s6, 5120
    s_add_u32 s21, s21, {WR}
    v_mov_b32 v1, {LWORD}
    v_mov_b32 v2, 1
    s_waitcnt lgkmcnt(0)
    """)
    srd(a, 12, WQ_, WQ_ + 1, 0, 640 * 1280)
    def wiss(c):
        a(f"s_add_u32 m0, s21, {(c&3)*WSL}")
        a("s_nop 0")
        for i in range(4):
            a(f"buffer_load_dwordx4 v{8+i}, s[12:15], s20 offen offset:{i*1024} lds")
        a(f"s_add_u32 m0, s21, {(c&3)*WSL + 4096}")
        a("s_nop 0")
        a(f"buffer_load_dwordx4 v12, s[12:15], s20 offen lds")
        a(f"s_add_u32 s20, s20, {64*1280}")
    def wpub(c, left):
        a(f"s_waitcnt vmcnt({left})")
        lds_inc(1, 2, W_LW + 4 * c)
    a("s_barrier")
    if pub0:
        wiss(0); wiss(1); wiss(2); wpub(0, 10); wiss(3)
    else:
        for c in range(4): wiss(c)
    if stamp and sm == 6: stamp_mid(a, 2)
    for c in range(1 if pub0 else 0, 4):
        wpub(c, 15 - 5 * c)
        if stamp and sm == 6 and c == 0: stamp_mid(a, 3)
    if stamp and sm == 5: stamp_mid(a, 2)
    for c in range(4, 10):
        lds_wait(1, W_CW + 4 * (c - 4), "gt", 4, 3, 1)
        if stamp and sm == 7 and c == 4: stamp_mid(a, 2)
        wiss(c)
        if stamp and sm == 7 and c == 7: stamp_mid(a, 3)
        if c >= 6: wpub(c - 2, 10)
    wpub(8, 5); wpub(9, 0)
    if stamp and sm == 5: stamp_mid(a, 3)
    a(f"s_branch {N}_g")

    a.label(f"{N}_w8")
    a(f"""
    s_setprio {w8prio}
    v_and_b32 v1, 63, v0
    v_lshlrev_b32 v2, 2, v1
    v_add_u32 v2, {LWORD}, v2
    v_mov_b32 v4, 0
    v_mov_b32 v5, 0
    v_mov_b32 v6, 0
    v_mov_b32 v7, 0
    ds_write_b32 v2, v4
    s_getpc_b64 s[20:21]
    s_lshr_b32 s7, s2, 3
    s_lshl_b32 s7, s7, 7
    v_and_b32 v2, 15, v0
    v_lshlrev_b32 v2, 12, v2
    v_add_u32 v2, s7, v2
    v_subrev_u32 v2, {N}_w8-{N}, v2
    v_min_i32 v2, code_end-{N}_w8-192, v2
    v_ashrrev_i32 v3, 31, v2
    v_mov_b32 v9, s21
    v_add_co_u32 v2, vcc, s20, v2
    s_nop 1
    v_addc_co_u32 v3, vcc, v3, v9, vcc
    global_load_dword v127, v[2:3], off
    v_lshlrev_b32 v1, 4, v1
    s_waitcnt lgkmcnt(0)
    s_barrier
    """)
    if pfq:
        srd(a, 12, WQ_, WQ_ + 1, 0, 640 * 1280)
        a(f"""
        s_lshr_b32 s7, s2, 3
        s_mul_i32 s7, s7, {12*1280}
        s_add_u32 s7, s7, {256*1280}
        v_lshrrev_b32 v2, 4, v1
        v_min_u32 v2, 59, v2
        v_lshlrev_b32 v2, 7, v2
        buffer_load_dword v127, v2, s[12:15], s7 offen{pfm}
        s_add_u32 s7, s7, {60*128}
        buffer_load_dword v127, v2, s[12:15], s7 offen{pfm}
        """)
    srd(a, 8, 4, 5, 0, WS_END)
    a(f"""
    s_cmp_lg_u32 s2, 24
    s_cbranch_scc1 {N}_nz
    s_mov_b32 s20, {FL_OFF}
    """)
    for i in range(16):
        a(f"buffer_store_dwordx4 v[4:7], v1, s[8:11], s20 offen offset:{(i&3)*1024} sc1")
        if i & 3 == 3: a("s_add_u32 s20, s20, 4096")
    a(f"""
    v_mov_b32 v2, 1
    s_waitcnt vmcnt(0)
    s_mov_b64 exec, 1
    global_store_dword v4, v2, s[78:79] sc1
    s_mov_b64 exec, -1
    """)
    a.label(f"{N}_nz")
    a(f"""
    s_cmp_ge_u32 s47, 2
    s_cbranch_scc1 {N}_nw
    s_cmp_eq_u32 s47, 0
    s_cselect_b32 s12, s80, s82
    s_cselect_b32 s13, s81, s83
    s_and_b32 s13, s13, 0xffff
    s_mov_b32 s14, 25600
    s_mov_b32 s15, 0x20000
    s_mov_b32 s7, 0
    """)
    for h in range(7):
        a(f"s_mov_b32 m0, {h*4096}")
        a("s_nop 0")
        for i in range(4 if h < 6 else 1):
            a(f"buffer_load_dwordx4 v1, s[12:15], s7 offen offset:{i*1024} lds")
        a("s_add_u32 s7, s7, 4096")
    a.label(f"{N}_nw")
    def pf_w1(cond=None):
        i_ = uid[0]; uid[0] += 1
        if cond:
            a(f"s_cmp_{cond}_u32 s2, {pfn0}")
            a(f"s_cbranch_scc0 {N}_pw{i_}")
        srd(a, 24, 40, 41, 0, 2048 * 3456)
        if pfc:
            a(f"""
            s_lshr_b32 s7, s2, 3
            s_mul_i32 s7, s7, {64*3456}
            s_lshr_b32 s3, s46, 1
            s_mul_i32 s3, s3, 896
            s_add_u32 s7, s7, s3
            v_and_b32 v2, 63, v0
            v_mul_u32_u24 v2, 3456, v2
            """)
            for i in range(7):
                a(f"buffer_load_dword v127, v2, s[24:27], s7 offen offset:{i*128}{pfm}")
            a.label(f"{N}_pw{i_}")
            return
        a(f"""
        s_mul_i32 s7, s2, {8*3456}
        v_and_b32 v2, 63, v0
        v_min_u32 v2, 53, v2
        v_lshlrev_b32 v2, 7, v2
        """)
        for i in range(4):
            a(f"buffer_load_dword v127, v2, s[24:27], s7 offen{pfm}")
            a(f"s_add_u32 s7, s7, {54*128}")
        a.label(f"{N}_pw{i_}")
    npf = 0
    if pfw == 0:
        pf_w1(); npf = 7 if pfc else 4
    elif pfn0:
        pf_w1("lt")
    T = 10; AX = 16; AW = 24; XF = 28; WF = 44; ACC = 64; PK = 80; SX = 90; ZV = 92
    frag_addr(AX, T); tr_addr(AW, T, 40); row_addr(26, T, 47)
    a(f"""
    v_mov_b32 v3, {LWORD}
    v_mov_b32 v5, 1
    v_and_b32 v{T+3}, 31, v0
    v_bfe_u32 v{T+4}, v0, 5, 1
    s_waitcnt vmcnt({npf})
    """)
    lds_wait(3, W_XN, "gt", 4, 4, 2)
    a(f"""
    s_cmp_ge_u32 s47, {0 if dbg else 2}
    s_cbranch_scc1 {N}_h
    """)
    def krd(ks):
        k = ks & 3
        return [f"ds_read_b128 {vr(XF+4*k,4)}, v{AX+(ks&7)} offset:{(ks>>3)*256}"] + \
               [f"ds_read_b64_tr_b16 {vr(WF+4*k+2*t,2)}, v{AW} offset:{(16*ks+4*t)*40}" for t in range(2)]
    for ks in range(3):
        for x in krd(ks): a(x)
    for ks in range(40):
        a(f"s_waitcnt lgkmcnt({3*min(2, 39-ks)})")
        a(mfma32(ACC, WF + 4 * (ks & 3), XF + 4 * (ks & 3), ACC if ks else None))
        if ks + 3 < 40:
            for x in krd(ks + 3): a(x)
    a(f"""
    s_mul_i32 s20, s49, {TILE_B}
    s_add_u32 s20, s20, {KV_OFF}
    v_cmp_eq_u32 vcc, 1, v{T+4}
    s_nop 7
    s_nop 1
    """)
    for i in range(6): a(f"v_cvt_pk_bf16_f32 v{PK+i}, v{ACC+2*i}, v{ACC+2*i+1}")
    a(f"""
    s_cmp_eq_u32 s47, 1
    s_cbranch_scc1 {N}_v
    buffer_store_dwordx4 {vr(PK,4)}, v1, s[8:11], s20 offen sc1
    v_cndmask_b32_e64 v{PK+4}, v{PK+4}, 0, vcc
    v_cndmask_b32_e64 v{PK+5}, v{PK+5}, 0, vcc
    v_lshlrev_b32 v{T+1}, 3, v{T+3}
    s_mov_b32 exec_hi, 0
    buffer_store_dwordx2 {vr(PK+4,2)}, v{T+1}, s[8:11], s20 offen offset:{K1_OFF_T} sc1
    s_mov_b32 exec_hi, -1
    v_dot2_f32_bf16 v{SX}, v{PK}, v{PK}, 0
    """)
    for i in range(1, 6): a(f"v_dot2_f32_bf16 v{SX}, v{PK+i}, v{PK+i}, v{SX}")
    a("s_nop 2")
    half_sum(a, SX, T)
    def wavemax(r, t, full):
        for k in (8, 4, 2, 1):
            a("s_nop 1")
            a(f"v_max_f32_dpp v{r}, v{r}, v{r} row_ror:{k} row_mask:0xf bank_mask:0xf")
        for sw in ("v_permlane16_swap_b32", "v_permlane32_swap_b32")[:2 if full else 1]:
            a(f"""
            v_mov_b32 v{t}, v{r}
            s_nop 1
            {sw} v{r}, v{t}
            s_nop 1
            v_max_f32 v{r}, v{r}, v{t}
            """)
    wavemax(SX, T, False)
    a(f"""
    s_lshl_b32 s21, s49, 2
    s_add_u32 s21, s21, {KM_OFF}
    v_mov_b32 v{T}, 0
    s_mov_b64 exec, 1
    buffer_store_dword v{SX}, v{T}, s[8:11], s21 offen sc1
    s_mov_b64 exec, -1
    s_branch {N}_h
    """)
    a.label(f"{N}_v")
    a(f"""
    v_lshlrev_b32 v{T}, 6, v{T+3}
    v_lshl_add_u32 v{T}, v{T+4}, 3, v{T}
    ds_write_b64 v{T}, {vr(PK,2)} offset:{VST}
    ds_write_b64 v{T}, {vr(PK+2,2)} offset:{VST+16}
    ds_write_b64 v{T}, {vr(PK+4,2)} offset:{VST+32}
    v_bfe_u32 v{T}, v0, 2, 2
    v_lshl_add_u32 v{T}, v{T+4}, 2, v{T}
    v_lshlrev_b32 v{T}, 6, v{T}
    v_bfe_u32 v{T+1}, v0, 4, 1
    v_lshl_add_u32 v{T}, v{T+1}, 5, v{T}
    v_and_b32 v{T+1}, 3, v0
    v_lshl_add_u32 v{T}, v{T+1}, 3, v{T}
    s_waitcnt lgkmcnt(0)
    """)
    for t in range(2):
        for u in range(2):
            a(f"ds_read_b64_tr_b16 {vr(PK+4*t+2*u,2)}, v{T} offset:{VST+(16*t+8*u)*64}")
    a(f"""
    v_cmp_eq_u32 vcc, 20, v{T+3}
    v_mov_b32 v{T+1}, s60
    s_nop 0
    v_cndmask_b32_e64 v{T+1}, 0, v{T+1}, vcc
    v_cmp_gt_u32 vcc, 20, v{T+3}
    v_mul_u32_u24 v{T+2}, {V_PLANE}, v{T+4}
    v_lshl_add_u32 v{T+2}, v{T+3}, 4, v{T+2}
    s_waitcnt lgkmcnt(0)
    """)
    for i in range(8): a(f"v_cndmask_b32_e64 v{PK+i}, v{T+1}, v{PK+i}, vcc")
    a(f"""
    v_cmp_eq_u32 vcc, 26, v{T+3}
    v_mov_b32 v{T+1}, 0x3f80
    s_nop 0
    v_cndmask_b32_e64 v{PK}, v{PK}, v{T+1}, vcc
    s_mov_b32 exec_lo, 0x0fffffff
    s_mov_b32 exec_hi, 0x0fffffff
    buffer_store_dwordx4 {vr(PK,4)}, v{T+2}, s[8:11], s20 offen offset:{V_OFF_T} sc1
    buffer_store_dwordx4 {vr(PK+4,4)}, v{T+2}, s[8:11], s20 offen offset:{V_OFF_T+2*V_PLANE} sc1
    s_mov_b64 exec, -1
    """)
    a.label(f"{N}_h")
    if stamp: stamp_mid(a, 2)
    if hmode == 0:
        HX = 40
        for i in range(10):
            a(f"ds_read_b128 {vr(HX+4*i,4)}, v{26+(i&1)} offset:{(i>>1)*256}")
        zload(ZV)
        a(f"""
        s_lshl_b32 s7, s49, 2
        s_add_u32 s7, s7, s47
        s_mul_i32 s21, s7, 10240
        s_add_u32 s21, s21, {HF_OFF}
        """)
        ln_pass(HX, 96, 100, lambda i: f"s_waitcnt lgkmcnt({9-i})")
        transpose_tail(a, 32, 8, 21, HST, store_mod=" sc1")
    else:
        zload(ZV)
        lds_wait(3, W_HD, "gt", 1, 4, 2)
    a(f"""
    s_lshr_b32 s7, s49, 2
    s_lshl_b32 s7, s7, 7
    s_add_u32 s7, s7, {FL4_OFF}
    """)
    if stamp: stamp_mid(a, 0)
    publish(ZV, ZV + 1, 7)
    a("s_mov_b64 exec, -1")
    if stamp: stamp_mid(a, 1)
    if pfw == 1: pf_w1('ge' if pfn0 else None)
    a(f"""
    s_setprio {lprio}
    s_add_u32 s8, s4, {KV_OFF}
    s_addc_u32 s9, s5, 0
    s_and_b32 s9, s9, 0xffff
    s_mov_b32 s10, {KV_SZ}
    s_mov_b32 s11, 0x20000
    s_mov_b32 s12, 0
    s_mov_b32 s13, 4                 ; chunk n
    v_lshlrev_b32 v6, 3, v1
    v_add_u32 v6, {FL4_OFF}, v6
    """)
    lds_wait(3, W_QD if look == 9 else W_CW + 4 * look, "gt", 1, 4, 4)
    if pfw == 3: pf_w1('ge' if pfn0 else None)
    g_wait(6, 16, 4, hsleep, mask=0xffff)
    if stamp: stamp_mid(a, 3)
    def iss(n):
        for h in range(3):
            a(f"s_mov_b32 m0, {n*CHUNK + h*4096}")
            a("s_nop 0")
            for i in range(4):
                a(f"buffer_load_dwordx4 v1, s[8:11], s12 offen offset:{i*1024} sc1 lds")
            a(f"s_add_u32 s12, s12, 4096")
    def pub(n, left):
        a(f"s_waitcnt vmcnt({left})")
        lds_inc(3, 5, W_LAND + 4 * n)
    a(f"""
    v_lshrrev_b32 v6, 2, v1
    v_add_u32 v6, {KM_OFF}, v6
    global_load_dword v7, v6, s[4:5] sc1
    ds_write_b32 v3, v5 offset:{W_GO}
    """)
    iss(0); iss(1)
    a("s_waitcnt vmcnt(24)")
    wavemax(7, 6, True)
    a(f"ds_write_b32 v3, v7 offset:{W_KM}")
    pub(0, 12); pub(1, 0)
    lds_wait(3, W_QD, "gt", 4, 4, 2)
    iss(2); iss(3); pub(2, 12); pub(3, 0)
    if pfw == 2: pf_w1('ge' if pfn0 else None)
    a.label(f"{N}_ld")
    a(f"""
    s_and_b32 s14, s13, 3
    s_add_u32 s15, s14, 1
    s_and_b32 s15, s15, 3
    s_lshl_b32 s15, s15, 2
    s_add_u32 s15, s15, {LWORD}
    v_mov_b32 v2, s15
    s_add_u32 s15, s13, 1
    s_andn2_b32 s15, s15, 3          ; needs 4*(((n-3)>>2)+1)
    """)
    lds_wait(2, W_ARR, "gt", "s15", 4, lsleep)
    a(f"s_mul_i32 s16, s14, {CHUNK}")
    for h in range(3):
        a(f"s_add_u32 m0, s16, {h*4096}")
        a("s_nop 0")
        for i in range(4):
            a(f"buffer_load_dwordx4 v1, s[8:11], s12 offen offset:{i*1024} sc1 lds")
        a(f"s_add_u32 s12, s12, 4096")
    a(f"""
    s_lshl_b32 s14, s14, 2
    s_add_u32 s14, s14, {LWORD}
    v_mov_b32 v2, s14
    s_add_u32 s13, s13, 1
    s_waitcnt vmcnt(0)
    """)
    lds_inc(2, 5, W_LAND)
    def l_mid():
        a(f"""
        s_cmp_lt_u32 s2, 224
        s_cbranch_scc1 {N}_ld_np
        """)
        srd(a, 24, W2_, W2_ + 1, 0, 1728 * 4096)
        a(f"""
        s_sub_u32 s17, s2, 224
        s_mul_i32 s18, s17, {54*4096}
        v_and_b32 v6, 63, v0
        v_lshlrev_b32 v6, 7, v6
        s_mov_b32 s17, 27
        """)
        a.label(f"{N}_pfl")
        a(f"""
        buffer_load_dword v8, v6, s[24:27], s18 offen{pfm2}
        s_add_u32 s18, s18, 8192
        s_sub_u32 s17, s17, 1
        s_cmp_lg_u32 s17, 0
        s_cbranch_scc1 {N}_pfl
        """)
    def l_end():
        srd(a, 24, 4, 5, 0, WS_END)
        a(f"v_mov_b32 v6, {FL_OFF + 384}")
        g_wait(6, 80, 7, 8)
        a(f"""
        s_lshr_b32 s17, s2, 3
        s_and_b32 s20, s17, 7
        s_mul_i32 s17, s17, 25600
        s_add_u32 s17, s17, {WOF_OFF}
        v_and_b32 v6, 63, v0
        v_min_u32 v6, 49, v6
        v_lshlrev_b32 v6, 7, v6
        """)
        for i in range(4):
            a("buffer_load_dword v8, v6, s[24:27], s17 offen")
            a("s_add_u32 s17, s17, 6400")
        a(f"""
        v_and_b32 v6, 15, v0
        v_bfe_u32 v7, v0, 4, 2
        v_mul_u32_u24 v7, 10240, v7
        v_lshl_add_u32 v6, v6, 4, v7
        s_mul_i32 s20, s20, 1280
        s_add_u32 s20, s20, {WOF_OFF}
        """)
        for k in range(8):
            if k in (2, 4, 6):
                c = 13 + (k - 2) // 2
                lds_wait(3, W_ARR + 4 * (c & 3), "gt", 16, 4, lsleep)
            for j in range(5):
                a(f"s_mov_b32 m0, {waddr(k) + j*768}")
                a("s_nop 0")
                a(f"buffer_load_dwordx4 v6, s[24:27], s20 offen offset:{j*256} sc1 lds")
            a(f"s_add_u32 s20, s20, 40960")
        a(f"""
        s_lshl_b32 s17, s48, 7
        s_add_u32 s17, s17, {FL2_OFF}
        v_mov_b32 v6, s17
        """)
        lds_wait(3, W_OP, "gt", 4, 4, 2)
        g_wait(6, 32, 4, osleep)
    a(f"s_cmp_lg_u32 s13, {pf_at}")
    a(f"s_cbranch_scc1 {N}_ld_np")
    l_mid()
    a.label(f"{N}_ld_np")
    a(f"""
    s_cmp_lg_u32 s13, 16
    s_cbranch_scc1 {N}_ld
    """)
    l_end()
    if stamp:
        a("s_mov_b32 s70, 0")
        stamp_end(a, 24, 70, 1, nw=1)
    a("s_endpgm")

    a.label(f"{N}_g")
    S = dict(GS); g = G2()
    VFA, VPA, VPOLL = g.tmp + 8, g.tmp + 9, g.tmp + 10
    VONE = g.ONE
    a(f"""
    s_sub_u32 s6, s70, 4
    s_lshr_b32 s47, s2, 3
    s_mov_b32 s60, s48
    s_and_b32 s48, s46, 1
    s_lshl_b32 s48, s48, 2
    s_and_b32 s49, s47, 3
    s_add_u32 s48, s48, s49          ; db
    s_lshr_b32 s49, s46, 1
    s_lshr_b32 s50, s47, 2
    s_and_b32 s64, s47, 7            ; db (B2)
    s_mul_i32 s49, s49, 7
    s_add_u32 s49, s49, s50          ; fb
    s_mul_i32 s52, s48, 1280         ; db*80*16
    v_mov_b32 v{VONE}, 1
    """)
    P2 = dict(mode="TF", srdT=12, srdF=16, strideT=4096, planeF=10240, W=4, TisA=False, fmod=" sc1")
    def b2_early():
        srd(a, 12, W2_, W2_ + 1, 0, 1728 * 4096)
        srd(a, 16, 4, 5, UF_OFF, UF_SZ)
        a(f"v_bfe_u32 v{g.tmp+2}, v0, 4, 2")
        setup_T(a, g, 4096)
        a("s_lshl_b32 s51, s60, 7")
        a("s_mul_i32 s52, s64, 1280")
        init_offsets(a, g, S, P2, 51, 52)
        srd(a, 20, X_, X_ + 1, 0, 2048 * 1280)
        srd(a, 24, 72, 73, 0, 4096)
        a(f"""
        s_lshl_b32 s53, s60, 2
        s_add_u32 s53, s53, s6
        s_lshl_b32 s7, s53, 5
        s_mul_i32 s53, s53, {16*1280}
        s_mul_i32 s55, s64, 160
        s_add_u32 s53, s53, s55
        v_and_b32 v1, 15, v0
        v_lshlrev_b32 v3, 1, v1
        v_mul_u32_u24 v1, 1280, v1
        v_lshl_add_u32 v1, v{g.tmp+2}, 3, v1
        buffer_load_ushort v3, v3, s[24:27], s7 offen
        """)
        for j in range(5):
            a(f"buffer_load_dwordx2 {vr(g.FB[2]+2*j,2)}, v1, s[20:23], s53 offen offset:{j*32}")
        issue(a, g, S, 0, P2, "T"); issue(a, g, S, 1, P2, "T")
    nsy = [0]
    def arrive4():
        a(f"v_mov_b32 v{VFA}, {LWORD}")
        lds_inc(VFA, VONE, W_SY + 4 * nsy[0])
    def wait4():
        lds_wait(VFA, W_SY + 4 * nsy[0], "gt", 4, VPOLL, 1)
        nsy[0] += 1
    def sync4():
        arrive4(); wait4()
    srd(a, 8, 4, 5, 0, WS_END)
    setup_lane(a, g, S, GBASE)
    setup_F(a, g, g.vF, 10240)
    a(f"""
    s_cmp_eq_u32 s50, 7
    s_cbranch_scc1 {N}_wo
    s_cmp_ge_u32 s49, 27
    s_cbranch_scc1 {N}_nob1
    """)
    srd(a, 12, 40, 41, 0, 2048 * 3456)
    srd(a, 16, 4, 5, HF_OFF, HF_SZ)
    srd(a, 20, 42, 43, 0, 1728 * 2)
    P = dict(mode="TF", srdT=12, srdF=16, strideT=3456, planeF=10240, W=4, TisA=True, fmod=" sc1")
    setup_T(a, g, 3456)
    a("s_lshl_b32 s51, s49, 7")
    init_offsets(a, g, S, P, 51, 52)
    a(f"""
    v_lshlrev_b32 v1, 3, v{g.tmp+2}
    s_lshl_b32 s53, s6, 5
    s_add_u32 s53, s53, s51
    buffer_load_dwordx2 v[2:3], v1, s[20:23], s53 offen
    """)
    a(f"""
    s_lshl_b32 s54, s49, 3
    s_lshl_b32 s55, s6, 1
    s_add_u32 s54, s54, s55
    s_mul_i32 s54, s54, 10240
    s_add_u32 s54, s54, s52
    s_add_u32 s54, s54, {UF_OFF}
    v_mov_b32 v1, {LWORD}
    """)
    lds_wait(1, W_QD, "gt", 4, g.JUNK, gsl)
    lds_wait(1, W_GO, "gt", 1, g.JUNK, gsl)
    roll_prologue(a, g, S, P)
    if stamp and sm == 0: stamp_mid(a, 2)
    main_loop(a, g, S, P, N + "_b1", 16, prios=p1)
    a(f"s_setprio {eprio}")
    if stamp: stamp_mid(a, 0)
    reduce4(a, g, S, GBASE, sync4)
    b1_epilogue(a, g, S, 8, 54, 2, store_mod=" sc1")
    if stamp and sm == 0: stamp_mid(a, 3)
    a(f"""
    s_mul_i32 s3, s49, 57
    s_lshr_b32 s3, s3, 9             ; fb / 9
    s_lshl_b32 s7, s48, 2
    s_add_u32 s7, s7, s3
    s_lshl_b32 s7, s7, 7
    s_add_u32 s7, s7, {FL_OFF}
    v_mov_b32 v1, s7
    s_waitcnt vmcnt(0)
    s_mov_b64 exec, 1
    global_atomic_add v1, v{VONE}, s[4:5] sc1
    s_mov_b64 exec, -1
    """)
    b2_early()
    a(f"s_branch {N}_b2")
    a.label(f"{N}_wo")
    a(f"""
    s_and_b32 s47, s47, 3
    s_lshl_b32 s47, s47, 3
    s_add_u32 s47, s47, s46
    s_lshl_b32 s47, s47, 2
    s_add_u32 s47, s47, s6           ; task
    s_cmp_ge_u32 s47, 80
    s_cbranch_scc1 {N}_nob1
    s_mul_i32 s51, s47, 10240
    s_add_u32 s53, s51, {WOF_OFF}
    """)
    srd(a, 12, 44, 45, 0, 640 * 1280)
    a(f"v_mov_b32 v1, {LWORD}")
    lds_wait(1, W_QD, "gt", 4, 2, 4)
    lds_wait(1, W_GO, "gt", 1, 2, 4)
    a("v_mov_b32 v2, 1")
    transpose_task(a, g.ACC, S, 12, 51, 8, 53, S["lb"], store_mod=" sc1")
    a(f"s_mov_b32 s7, {FL_OFF + 384}")
    publish(2, 1, 7, mask=0xff, lane_stride=9)
    a("s_mov_b64 exec, -1")
    a.label(f"{N}_nob1")
    a(f"s_setprio {eprio}")
    a(f"v_mov_b32 v1, {LWORD}")
    lds_wait(1, W_QD, "gt", 4, 2, 4)
    b2_early()
    a(f"v_mov_b32 v{VPA}, {LWORD}")
    lds_wait(VPA, W_ARR + 4 * (pch & 3), "ge", 4 * (pch >> 2), VPOLL, 8)
    a.label(f"{N}_b2")
    a(f"s_waitcnt vmcnt(8)")
    for i in range(10):
        a(f"v_lshlrev_b32 v{g.ACC+2*i}, 16, v{g.FB[2]+i}")
        a(f"v_and_b32 v{g.ACC+2*i+1}, 0xffff0000, v{g.FB[2]+i}")
    a(f"""
    s_lshl_b32 s7, s64, 9
    s_add_u32 s7, s7, {FL_OFF}
    v_and_b32 v1, 3, v0
    v_lshl_add_u32 v1, v1, 7, s7
    s_mov_b32 s62, 0
    s_add_u32 s68, s6, 4
    """)
    def poll(lab, back, first=False):
        a.label(lab)
        a(f"""
        s_mov_b64 exec, 15
        global_load_dword v2, v1, s[4:5] sc1
        s_mov_b64 exec, -1
        s_waitcnt vmcnt(0)
        v_cmp_le_u32 vcc, 36, v2
        s_add_u32 s62, s62, 1
        s_cmp_ge_u32 s62, {LIM}
        s_cbranch_scc1 {back}
        s_and_b32 s66, vcc_lo, 7
        s_xor_b32 s67, s66, 15
        s_ff1_i32_b32 s67, s67
        s_mul_i32 s66, s67, 18
        s_cmp_eq_u32 s67, 3
        s_cselect_b32 s66, 64, s66
        """)
        if first:
            a(f"""
            v_readlane_b32 s69, v2, 3
            s_nop 0
            s_cmp_lt_u32 s69, 80
            s_cselect_b32 s66, 0, s66
            """)
        a(f"""
        s_cmp_lt_u32 s68, s66
        s_cbranch_scc1 {back}
        s_sleep {psleep}
        s_branch {lab}
        """)
    a(f"""
    v_mov_b32 v{g.tmp+11}, {LWORD + W_SH}
    s_cmp_lg_u32 s6, 0
    s_cbranch_scc1 {N}_go2
    """)
    poll(f"{N}_poll", f"{N}_go", True)
    a.label(f"{N}_go")
    a(f"""
    v_mov_b32 v{VFA}, s66
    ds_write_b32 v{g.tmp+11}, v{VFA}
    s_waitcnt lgkmcnt(0)
    """)
    a.label(f"{N}_go2")
    sync4()
    a(f"""
    ds_read_b32 v{VFA}, v{g.tmp+11}
    s_waitcnt lgkmcnt(0)
    v_readfirstlane_b32 s66, v{VFA}
    """)
    stubs = []
    def check():
        i = len(stubs); stubs.append(i)
        a(f"""
        s_add_u32 s68, s68, 4
        s_cmp_ge_u32 s68, s66
        s_cbranch_scc1 {N}_ck{i}
        """)
        a.label(f"{N}_ckb{i}")
    if stamp: stamp_mid(a, 1)
    roll_prologue(a, g, S, P2, tpart=False)
    issue(a, g, S, 2, P2, "T")
    a("s_setprio 0")
    main_loop(a, g, S, P2, N + "_b2l", 14, midentry=True, czero=5, check=check, prios=p2)
    a(f"s_setprio {eprio}")
    if stamp and sm == 3: stamp_mid(a, 2)
    OFR = lambda k: 92 + 4 * k if k < 19 else 8
    def wdma(koff, ldsoff):
        a(f"s_add_u32 s7, s21, {koff*40960}")
        for j in range(5):
            a(f"s_add_u32 m0, s{S['lb']}, {ldsoff + j*768}")
            a("s_nop 0")
            a(f"buffer_load_dwordx4 v2, s[8:11], s7 offen offset:{j*256} sc1 lds")
    def w_first():
        a(f"""
        v_and_b32 v5, 15, v0
        v_bfe_u32 v6, v0, 4, 2
        v_lshlrev_b32 v5, 4, v5
        v_lshl_add_u32 v1, v6, 15, v5
        v_mul_u32_u24 v2, 10240, v6
        v_add_u32 v2, v2, v5
        s_mul_i32 s21, s64, 1280
        s_mul_i32 s7, s6, 40960
        s_add_u32 s21, s21, s7
        s_add_u32 s21, s21, {WOF_OFF}
        s_lshl_b32 s20, s60, 2
        s_add_u32 s20, s20, s6
        s_lshl_b32 s20, s20, 8
        s_add_u32 s20, s20, {OF_OFF}
        """)
        wdma(8, 0)
        a(f"s_mul_i32 s7, s6, 40960")
        a(f"s_add_u32 s21, s21, s7")
    reduce4(a, g, S, GBASE, sync4, mid=w_first)
    if stamp and sm == 3: stamp_mid(a, 3)
    WB = [32, 52, 72]
    arrive4()
    a("v_lshlrev_b32 v3, 16, v3")
    for i in range(20): a(f"v_add_f32 v{g.ACC+i}, v{g.ACC+i}, v3")
    wait4()
    wdma(12, REDOFF); wdma(13, REDOFF + 5120)
    srd(a, 24, 74, 75, 0, 2048 * 1280)
    a(f"""
    v_and_b32 v5, 63, v0
    v_lshlrev_b32 v5, 4, v5
    v_add_u32 v6, 0x10000, v5
    v_add_u32 v7, 0x20000, v5
    s_waitcnt vmcnt(0)
    s_barrier
    """)
    if stamp and sm == 4: stamp_mid(a, 2)
    for k in range(20):
        a(f"buffer_load_dwordx4 {vr(OFR(k),4)}, v1, s[8:11], s20 offen sc1")
        a(f"s_add_u32 s20, s20, {4*32768}")
    def rd1(k, j):
        off = waddr(k) + j * 1024
        return f"ds_read_b128 {vr(WB[k%3]+4*j,4)}, v{5 + (off >> 16)} offset:{off & 65535}"
    for k in range(2):
        for j in range(5): a(rd1(k, j))
    for k in range(20):
        a(f"s_waitcnt vmcnt({19-k}) lgkmcnt({5 if k < 19 else 0})")
        for j in range(5):
            a(mfma16(g.ACC + 4 * j, WB[k % 3] + 4 * j, OFR(k), g.ACC + 4 * j))
            if k + 2 < 20: a(rd1(k + 2, j))
    if stamp and sm == 4: stamp_mid(a, 3)
    a("s_nop 4")
    pack_store(a, g, g.ACC, 24, 53, PLANE=0, rowstride=1280, mode="R")
    if stamp: stamp_end(a, 8, 70, 0, nw=8)
    a.label(f"{N}_end")
    a("s_endpgm")
    for i in stubs:
        a.label(f"{N}_ck{i}")
        a(f"s_setprio {eprio}")
        poll(f"{N}_ckp{i}", f"{N}_ckr{i}")
        a.label(f"{N}_ckr{i}")
        a("s_setprio 0")
        a(f"s_branch {N}_ckb{i}")
    return finish(a, N, 168, (256, 576, LDS))
```

```python
import sys
from mega2 import mega_kernel
from build import build, HDR
KN = "parallel_sum__grouped_kv_mqa__mixer_token_mlp__prompt_kernel"
def final(fn, aslist=False, **kw):
    k = mega_kernel(KN, **kw)
    s = build([k])
    if not aslist:
        s = s.replace(f"; @launch kernel={KN} grid", "; @launch grid")
    open(fn, "w").write(s)
if __name__ == "__main__":
    final("s_a.s")
    for k in range(1, 6): final(f"s_p{k}.s", probe=k)
```

```python
from asmlib import *
from layout import *
from gemm import *
import attn3 as attn
from attn import kd
from attn3 import CHUNK, W_LAND, W_GO, W_KM, W_QD, W_XN, W_OP, W_LW, W_CW, W_ARR, W_SY, W_SH
from kernels import finish, stamp_begin, stamp_mid, stamp_end, GS
from k1 import mfma32, mfma8, ln_stats, half_sum, split3, QSCALE

GBASE = 4 * CHUNK
LWORD = 162816
LDS = 163840
HST = 26624; VST = 37376; XN = 39424; WR = XN + 40960; WSL = 20480
assert WR + 4 * WSL <= LWORD
def waddr(k):
    if k < 2: return GBASE + 4 * REGION + 5120 * k
    if k < 8: return ((k - 2) >> 1) * CHUNK + (k & 1) * 5120
    if k < 12: return GBASE + (k - 8) * REGION
    return GBASE + ((k - 12) >> 1) * REGION + REDOFF + (k & 1) * 5120
W_HD = 36
LIM = 0x100000

def mega_kernel(name, stamp=False, eprio=2, psleep=8, lprio=3, pch=10, sm=0, p1=None, p2=None, lsleep=8,
                pf_at=7, osleep=8, hsleep=16, akw={}, qs=0, gsl=2, cprio=2, look=9, pfw=0, w8prio=3, hmode=1, pfq=False, hks=8, dbg=0, pfn0=0, pub0=True, pfm='', pfc=False, pfm2='', probe=0, pf2=True):
    a = Asm()
    N = name
    uid = [0]
    def lds_wait(vaddr, off, cmp, val, vtmp, sleep):
        i = uid[0]; uid[0] += 1
        a.label(f"{N}_lw{i}")
        a(f"""
        ds_read_b32 v{vtmp}, v{vaddr} offset:{off}
        s_waitcnt lgkmcnt(0)
        v_cmp_{cmp}_u32 s[84:85], {val}, v{vtmp}
        s_nop 1
        s_cmp_eq_u64 s[84:85], 0
        s_cbranch_scc1 {N}_lx{i}
        s_sleep {sleep}
        s_branch {N}_lw{i}
        """)
        a.label(f"{N}_lx{i}")
    def g_wait(vaddr, val, vtmp, sleep, mask=1, base=4):
        i = uid[0]; uid[0] += 1
        a("s_mov_b32 s71, 0")
        a(f"s_mov_b32 s3, {val}")
        a(f"s_mov_b64 exec, {mask}")
        a.label(f"{N}_gw{i}")
        a(f"""
        global_load_dword v{vtmp}, v{vaddr}, s[{base}:{base+1}] sc1
        s_add_u32 s71, s71, 1
        s_waitcnt vmcnt(0)
        v_cmp_gt_u32 s[84:85], s3, v{vtmp}
        s_cmp_ge_u32 s71, {LIM}
        s_cbranch_scc1 {N}_gx{i}
        s_cmp_eq_u64 s[84:85], 0
        s_cbranch_scc1 {N}_gx{i}
        s_sleep {sleep}
        s_branch {N}_gw{i}
        """)
        a.label(f"{N}_gx{i}")
        a("s_mov_b64 exec, -1")
    def zload(v):
        a(f"v_mov_b32 v{v}, 0")
        a(f"global_load_dword v{v}, v{v}, s[78:79] sc1")
    def publish(vz, vt, soff, mask=1, lane_stride=None):
        i = uid[0]; uid[0] += 1
        a(f"""
        s_mov_b64 exec, -1
        s_waitcnt vmcnt(0)
        v_readfirstlane_b32 s3, v{vz}
        v_mov_b32 v{vz}, 0
        s_cmp_lg_u32 s3, 0
        s_cbranch_scc1 {N}_zk{i}
        """)
        g_wait(vz, 1, vt, 2, base=78)
        a.label(f"{N}_zk{i}")
        if lane_stride is None: a(f"v_mov_b32 v{vt}, s{soff}")
        else:
            a(f"v_and_b32 v{vt}, 63, v0")
            a(f"v_lshl_add_u32 v{vt}, v{vt}, {lane_stride}, s{soff}")
        a(f"""
        v_mov_b32 v{vz}, 1
        s_mov_b64 exec, {mask}
        global_atomic_add v{vt}, v{vz}, s[4:5] sc1
        """)
    def lds_inc(vaddr, vone, off):
        a("s_mov_b64 exec, 1")
        a(f"ds_add_u32 v{vaddr}, v{vone} offset:{off}")
        a("s_mov_b64 exec, -1")
    def ln_pass(X, A0, U, waits):
        for i in range(4): a(f"v_mov_b32 v{A0+i}, 0")
        for i in range(40):
            if i % 4 == 0: a(waits(i // 4))
            a(f"v_dot2_f32_bf16 v{A0+(i&1)}, v{X+i}, s60, v{A0+(i&1)}")
            a(f"v_dot2_f32_bf16 v{A0+2+(i&1)}, v{X+i}, v{X+i}, v{A0+2+(i&1)}")
        a("s_nop 2")
        a(f"v_add_f32 v{A0}, v{A0}, v{A0+1}")
        a(f"v_add_f32 v{A0+2}, v{A0+2}, v{A0+3}")
        for dpp in ("quad_perm:[1,0,3,2]", "quad_perm:[2,3,0,1]", "row_half_mirror"):
            a("s_nop 0")
            a(f"v_add_f32_dpp v{A0}, v{A0}, v{A0} {dpp} row_mask:0xf bank_mask:0xf")
            a(f"v_add_f32_dpp v{A0+2}, v{A0+2}, v{A0+2} {dpp} row_mask:0xf bank_mask:0xf")
        ln_stats(a, A0, A0 + 2, A0 + 1, 61, 62)
        a(f"v_mul_f32 v{A0}, v{A0}, v{A0+2}")
        for i in range(40):
            u = U + 2 * (i & 3)
            a(f"v_lshlrev_b32 v{u}, 16, v{X+i}")
            a(f"v_and_b32 v{u+1}, 0xffff0000, v{X+i}")
            a(f"v_pk_fma_f32 {vr(u,2)}, {vr(u,2)}, {vr(A0+2,2)}, {vr(A0,2)} op_sel_hi:[1,0,0] neg_lo:[0,0,1] neg_hi:[0,0,1]")
            a(f"v_cvt_pk_bf16_f32 v{X+i}, v{u}, v{u+1}")
    def row_addr(d, t, srow):
        a(f"""
        v_bfe_u32 v{t}, v0, 3, 3
        s_lshl_b32 s7, s{srow}, 3
        v_add_u32 v{t}, s7, v{t}
        v_and_b32 v{t+1}, 7, v0
        v_and_b32 v{d}, 15, v{t}
        v_xor_b32 v{t+1}, v{t+1}, v{d}
        v_mul_u32_u24 v{t}, 1280, v{t}
        v_add_u32 v{t}, {XN}, v{t}
        v_lshl_add_u32 v{d}, v{t+1}, 4, v{t}
        v_xor_b32 v{t+1}, 8, v{t+1}
        v_lshl_add_u32 v{d+1}, v{t+1}, 4, v{t}
        """)
    def frag_addr(AX, t):
        a(f"""
        v_and_b32 v{t}, 31, v0
        v_bfe_u32 v{t+1}, v0, 5, 1
        v_and_b32 v{t+2}, 15, v0
        v_xor_b32 v{t+1}, v{t+1}, v{t+2}
        v_mul_u32_u24 v{t}, 1280, v{t}
        v_add_u32 v{t}, {XN}, v{t}
        """)
        for j in range(8):
            a(f"v_xor_b32 v{AX+j}, {2*j}, v{t+1}")
            a(f"v_lshl_add_u32 v{AX+j}, v{AX+j}, 4, v{t}")
    def tr_addr(d, t, pitch):
        a(f"""
        v_bfe_u32 v{t}, v0, 2, 2
        v_bfe_u32 v{t+1}, v0, 5, 1
        v_lshl_add_u32 v{t}, v{t+1}, 3, v{t}
        v_mul_u32_u24 v{d}, {pitch}, v{t}
        v_bfe_u32 v{t}, v0, 4, 1
        v_lshl_add_u32 v{d}, v{t}, 5, v{d}
        v_and_b32 v{t}, 3, v0
        v_lshl_add_u32 v{d}, v{t}, 3, v{d}
        """)

    a.label(N)
    a(f"""
    s_cmp_ge_u32 s2, 256
    s_cbranch_scc1 {N}_end
    s_load_dwordx4 s[56:59], s[0:1], 0
    s_load_dwordx2 s[4:5], s[0:1], 96
    s_load_dwordx4 s[80:83], s[0:1], 16
    s_load_dwordx4 s[40:43], s[0:1], 48
    s_load_dwordx2 s[44:45], s[0:1], 32
    s_load_dwordx2 s[76:77], s[0:1], 64
    s_load_dwordx4 s[72:75], s[0:1], 72
    s_load_dwordx2 s[78:79], s[0:1], 88
    v_lshrrev_b32 v1, 6, v0
    s_and_b32 s46, s2, 7
    v_readfirstlane_b32 s6, v1
    """)
    X_, WQ_, W2_ = 56, 58, 76
    if probe: a("s_memrealtime s[86:87]")
    def mark(k):
        if probe == k:
            a("s_memrealtime s[88:89]")
    def spin():
        if not probe: return
        i = uid[0]; uid[0] += 1
        a(f"""
        s_cmp_lg_u32 s2, 9
        s_cbranch_scc1 {N}_sx{i}
        s_waitcnt vmcnt(0) lgkmcnt(0)
        s_memrealtime s[90:91]
        s_sub_u32 s88, s88, s86
        s_min_u32 s88, s88, 20000
        s_lshl_b32 s88, s88, 2
        s_waitcnt lgkmcnt(0)
        """)
        a.label(f"{N}_sp{i}")
        a(f"""
        s_memrealtime s[92:93]
        s_waitcnt lgkmcnt(0)
        s_sub_u32 s92, s92, s90
        s_cmp_lt_u32 s92, s88
        s_cbranch_scc1 {N}_sp{i}
        """)
        a.label(f"{N}_sx{i}")
    if stamp: stamp_begin(a)
    a(f"""
    s_bfe_u32 s47, s2, 0x20003
    s_lshr_b32 s49, s2, 5
    s_lshl_b32 s7, s46, 3
    s_add_u32 s49, s49, s7
    s_lshr_b32 s48, s49, 1
    s_mov_b32 s60, 0x3f803f80
    s_mov_b32 s61, {hex(f2u(1.0/640))}
    s_mov_b32 s62, {hex(f2u(1e-5))}
    s_mov_b32 s70, s6
    s_cmp_eq_u32 s6, 8
    s_cbranch_scc1 {N}_w8
    s_cmp_ge_u32 s6, 4
    s_cbranch_scc1 {N}_stg
    """)
    X = 64; A0 = 104; U = 108; AX = 24; AW = 20; XF = 32; WF = 104; ACC = 64; PD = 146; ON = 145
    a(f"""
    s_setprio {cprio}
    v_bfe_u32 v8, v0, 3, 3
    v_and_b32 v9, 7, v0
    v_mul_u32_u24 v8, 1280, v8
    v_lshl_add_u32 v8, v9, 4, v8
    s_lshl_b32 s7, s49, 2
    s_add_u32 s7, s7, s6
    s_mul_i32 s20, s7, 10240
    s_waitcnt lgkmcnt(0)
    """)
    srd(a, 12, X_, X_ + 1, 0, 2048 * 1280)
    for i in range(10):
        a(f"buffer_load_dwordx4 {vr(X+4*i,4)}, v8, s[12:15], s20 offen offset:{i*128}")
    a("s_barrier")
    S = dict(attn.SREG)
    attn.setup(a, S, LWORD)
    PD = attn.V_PADDR; ON = attn.V_ONE
    row_addr(22, 8, 6)
    frag_addr(AX, 8)
    tr_addr(AW, 8, 320)
    a(f"""
    s_mul_i32 s7, s6, 80
    s_add_u32 s7, s7, {WR}
    v_add_u32 v{AW}, s7, v{AW}
    v_add_u32 v{AW+1}, {3*WSL}, v{AW}
    """)
    ln_pass(X, A0, U, lambda i: f"s_waitcnt vmcnt({9-i})")
    for i in range(10):
        a(f"ds_write_b128 v{22+(i&1)}, {vr(X+4*i,4)} offset:{(i>>1)*256}")
    a("s_waitcnt lgkmcnt(0)")
    lds_inc(PD, ON, W_XN)
    if hmode == 1:
        a(f"""
        s_cmp_lg_u32 s6, s47
        s_cbranch_scc1 {N}_nh
        s_lshl_b32 s7, s49, 2
        s_add_u32 s7, s7, s47
        s_mul_i32 s24, s7, 10240
        s_add_u32 s24, s24, {HF_OFF}
        """)
        if dbg != 1:
            ln_pass(X, A0, U, lambda i: "")
            transpose_tail(a, X - 8, 8, 24, HST, store_mod=" sc1")
        a.label(f"{N}_nh")
    if stamp and qs == 2: stamp_mid(a, 3)
    lds_wait(PD, W_XN, "gt", 4, 8, 1)
    def qrd(ks):
        c, k = ks >> 2, ks & 3
        sl = c & 3
        L = [f"ds_read_b128 {vr(XF+4*k,4)}, v{AX+(ks&7)} offset:{(ks>>3)*256}"]
        for b in range(2):
            for t in range(2):
                L.append(f"ds_read_b64_tr_b16 {vr(WF+8*k+4*b+2*t,2)}, v{AW+(sl==3)} offset:{(sl%3)*WSL+(16*k+4*t)*320+64*b}")
        return L
    lds_wait(PD, W_LW, "gt", 4, 8, 1)
    for ks in range(2):
        for x in qrd(ks): a(x)
    for ks in range(40):
        c, k = ks >> 2, ks & 3
        if k == 2 and c < 9:
            lds_wait(PD, W_LW + 4 * (c + 1), "gt", 4, 8, 1)
        else:
            a(f"s_waitcnt lgkmcnt({5 if ks < 39 else 0})")
        if k == 0 and c > 0 and c < 7: lds_inc(PD, ON, W_CW + 4 * (c - 1))
        if k == 0 and c == look + 1: lds_inc(PD, ON, W_CW + 4 * (c - 1))
        if stamp and qs == 4 and ks == 16: stamp_mid(a, 3)
        if hmode == 1 and ks == hks:
            a(f"""
            s_cmp_lg_u32 s6, s47
            s_cbranch_scc1 {N}_nh2
            s_waitcnt vmcnt(0)
            """)
            lds_inc(PD, ON, W_HD)
            a.label(f"{N}_nh2")
        fill = qrd(ks + 2) if ks + 2 < 40 else []
        for b in range(2):
            a(mfma32(ACC + 16 * b, WF + 8 * k + 4 * b, XF + 4 * k, (ACC + 16 * b) if ks else None))
            for x in fill[3 * b:3 * b + 3]: a(x)
    lds_inc(PD, ON, W_QD)
    if stamp and qs == 0: stamp_mid(a, 3)
    QA0, QB0, QA1, QB1 = attn.QA0, attn.QB0, attn.QA1, attn.QB1
    a(f"v_mov_b32 v22, {hex(f2u(QSCALE))}")
    a("s_nop 7")
    Y, Z = 32, 34
    for (d, r) in ((QA0, ACC), (QA0 + 2, ACC + 4), (QA1, ACC + 8), (Y, ACC + 12), (Z, ACC + 16)):
        a(f"v_pk_mul_f32 {vr(r,2)}, {vr(r,2)}, v[22:23] op_sel_hi:[1,0]")
        a(f"v_pk_mul_f32 {vr(r+2,2)}, {vr(r+2,2)}, v[22:23] op_sel_hi:[1,0]")
        a(f"v_cvt_pk_bf16_f32 v{d}, v{r}, v{r+1}")
        a(f"v_cvt_pk_bf16_f32 v{d+1}, v{r+2}, v{r+3}")
    a("s_nop 1")
    for i in range(2):
        a(f"v_permlane32_swap_b32 v{QB0+i}, v{Y+i}")
        a(f"v_permlane32_swap_b32 v{QB0+2+i}, v{Z+i}")
    a("s_nop 1")
    for i in range(2):
        a(f"v_permlane32_swap_b32 v{QA1+i}, v{QB0+i}")
        a(f"v_permlane32_swap_b32 v{Y+i}, v{QB0+2+i}")
        a(f"v_permlane32_swap_b32 v{Z+i}, v{QB1+i}")
    a("s_nop 0")
    for r in (QA1, QA1 + 1, QB1, QB1 + 1):
        a(f"v_cndmask_b32_e64 v{r}, v{r}, 0, s[22:23]")
    if stamp: stamp_mid(a, 2)
    attn.bound(a, S, N, lambda: lds_wait(PD, W_LAND, "gt", 1, attn.V_POLL, 1))
    a("s_setprio 0")
    if stamp: stamp_mid(a, 0)
    attn.main(a, S, N, **akw)
    if stamp: stamp_mid(a, 1)
    attn.epilogue(a, S)
    if stamp: stamp_end(a, 8, 70, 0, nw=8)
    a("s_endpgm")
    attn.tails(a, S, N)

    a.label(f"{N}_stg")
    a(f"""
    s_sub_u32 s6, s6, 4
    v_and_b32 v1, 63, v0
    """)
    for i in range(5):
        a(f"""
        v_add_u32 v2, {64*i}, v1
        v_mul_u32_u24 v3, 3277, v2
        v_lshrrev_b32 v3, 16, v3
        v_mul_u32_u24 v3, {1280 - 320}, v3
        v_lshl_add_u32 v{8+i}, v2, 4, v3
        """)
        if 0 < i < 4: a(f"v_subrev_u32 v{8+i}, {1024*i}, v{8+i}")
    a(f"""
    s_mul_i32 s20, s6, {16*1280}
    s_mul_i32 s7, s47, 320
    s_add_u32 s20, s20, s7
    s_mul_i32 s21, s6, 5120
    s_add_u32 s21, s21, {WR}
    v_mov_b32 v1, {LWORD}
    v_mov_b32 v2, 1
    s_waitcnt lgkmcnt(0)
    """)
    srd(a, 12, WQ_, WQ_ + 1, 0, 640 * 1280)
    def wiss(c):
        a(f"s_add_u32 m0, s21, {(c&3)*WSL}")
        a("s_nop 0")
        for i in range(4):
            a(f"buffer_load_dwordx4 v{8+i}, s[12:15], s20 offen offset:{i*1024} lds")
        a(f"s_add_u32 m0, s21, {(c&3)*WSL + 4096}")
        a("s_nop 0")
        a(f"buffer_load_dwordx4 v12, s[12:15], s20 offen lds")
        a(f"s_add_u32 s20, s20, {64*1280}")
    def wpub(c, left):
        a(f"s_waitcnt vmcnt({left})")
        lds_inc(1, 2, W_LW + 4 * c)
    a("s_barrier")
    if pub0:
        wiss(0); wiss(1); wiss(2); wpub(0, 10); wiss(3)
    else:
        for c in range(4): wiss(c)
    if stamp and sm == 6: stamp_mid(a, 2)
    for c in range(1 if pub0 else 0, 4):
        wpub(c, 15 - 5 * c)
        if stamp and sm == 6 and c == 0: stamp_mid(a, 3)
    if stamp and sm == 5: stamp_mid(a, 2)
    for c in range(4, 10):
        lds_wait(1, W_CW + 4 * (c - 4), "gt", 4, 3, 1)
        if stamp and sm == 7 and c == 4: stamp_mid(a, 2)
        wiss(c)
        if stamp and sm == 7 and c == 7: stamp_mid(a, 3)
        if c >= 6: wpub(c - 2, 10)
    wpub(8, 5); wpub(9, 0)
    if stamp and sm == 5: stamp_mid(a, 3)
    a(f"s_branch {N}_g")

    a.label(f"{N}_w8")
    a(f"""
    s_setprio {w8prio}
    v_and_b32 v1, 63, v0
    v_lshlrev_b32 v2, 2, v1
    v_add_u32 v2, {LWORD}, v2
    v_mov_b32 v4, 0
    v_mov_b32 v5, 0
    v_mov_b32 v6, 0
    v_mov_b32 v7, 0
    ds_write_b32 v2, v4
    s_getpc_b64 s[20:21]
    s_lshr_b32 s7, s2, 3
    s_lshl_b32 s7, s7, 7
    v_and_b32 v2, 15, v0
    v_lshlrev_b32 v2, 12, v2
    v_add_u32 v2, s7, v2
    v_subrev_u32 v2, {N}_w8-{N}, v2
    v_min_i32 v2, code_end-{N}_w8-192, v2
    v_ashrrev_i32 v3, 31, v2
    v_mov_b32 v9, s21
    v_add_co_u32 v2, vcc, s20, v2
    s_nop 1
    v_addc_co_u32 v3, vcc, v3, v9, vcc
    global_load_dword v127, v[2:3], off
    v_lshlrev_b32 v1, 4, v1
    s_waitcnt lgkmcnt(0)
    s_barrier
    """)
    if pfq:
        srd(a, 12, WQ_, WQ_ + 1, 0, 640 * 1280)
        a(f"""
        s_lshr_b32 s7, s2, 3
        s_mul_i32 s7, s7, {12*1280}
        s_add_u32 s7, s7, {256*1280}
        v_lshrrev_b32 v2, 4, v1
        v_min_u32 v2, 59, v2
        v_lshlrev_b32 v2, 7, v2
        buffer_load_dword v127, v2, s[12:15], s7 offen{pfm}
        s_add_u32 s7, s7, {60*128}
        buffer_load_dword v127, v2, s[12:15], s7 offen{pfm}
        """)
    srd(a, 8, 4, 5, 0, WS_END)
    a(f"""
    s_cmp_lg_u32 s2, 24
    s_cbranch_scc1 {N}_nz
    s_mov_b32 s20, {FL_OFF}
    """)
    for i in range(16):
        a(f"buffer_store_dwordx4 v[4:7], v1, s[8:11], s20 offen offset:{(i&3)*1024} sc1")
        if i & 3 == 3: a("s_add_u32 s20, s20, 4096")
    a(f"""
    v_mov_b32 v2, 1
    s_waitcnt vmcnt(0)
    s_mov_b64 exec, 1
    global_store_dword v4, v2, s[78:79] sc1
    s_mov_b64 exec, -1
    """)
    a.label(f"{N}_nz")
    a(f"""
    s_cmp_ge_u32 s47, 2
    s_cbranch_scc1 {N}_nw
    s_cmp_eq_u32 s47, 0
    s_cselect_b32 s12, s80, s82
    s_cselect_b32 s13, s81, s83
    s_and_b32 s13, s13, 0xffff
    s_mov_b32 s14, 25600
    s_mov_b32 s15, 0x20000
    s_mov_b32 s7, 0
    """)
    for h in range(7):
        a(f"s_mov_b32 m0, {h*4096}")
        a("s_nop 0")
        for i in range(4 if h < 6 else 1):
            a(f"buffer_load_dwordx4 v1, s[12:15], s7 offen offset:{i*1024} lds")
        a("s_add_u32 s7, s7, 4096")
    a.label(f"{N}_nw")
    def pf_w1(cond=None):
        i_ = uid[0]; uid[0] += 1
        if cond:
            a(f"s_cmp_{cond}_u32 s2, {pfn0}")
            a(f"s_cbranch_scc0 {N}_pw{i_}")
        srd(a, 24, 40, 41, 0, 2048 * 3456)
        if pfc:
            a(f"""
            s_lshr_b32 s7, s2, 3
            s_mul_i32 s7, s7, {64*3456}
            s_lshr_b32 s3, s46, 1
            s_mul_i32 s3, s3, 896
            s_add_u32 s7, s7, s3
            v_and_b32 v2, 63, v0
            v_mul_u32_u24 v2, 3456, v2
            """)
            for i in range(7):
                a(f"buffer_load_dword v127, v2, s[24:27], s7 offen offset:{i*128}{pfm}")
            a.label(f"{N}_pw{i_}")
            return
        a(f"""
        s_mul_i32 s7, s2, {8*3456}
        v_and_b32 v2, 63, v0
        v_min_u32 v2, 53, v2
        v_lshlrev_b32 v2, 7, v2
        """)
        for i in range(4):
            a(f"buffer_load_dword v127, v2, s[24:27], s7 offen{pfm}")
            a(f"s_add_u32 s7, s7, {54*128}")
        a.label(f"{N}_pw{i_}")
    npf = 0
    if pfw == 0:
        pf_w1(); npf = 7 if pfc else 4
    elif pfn0:
        pf_w1("lt")
    T = 10; AX = 16; AW = 24; XF = 28; WF = 44; ACC = 64; PK = 80; SX = 90; ZV = 92
    frag_addr(AX, T); tr_addr(AW, T, 40); row_addr(26, T, 47)
    a(f"""
    v_mov_b32 v3, {LWORD}
    v_mov_b32 v5, 1
    v_and_b32 v{T+3}, 31, v0
    v_bfe_u32 v{T+4}, v0, 5, 1
    s_waitcnt vmcnt({npf})
    """)
    lds_wait(3, W_XN, "gt", 4, 4, 2)
    a(f"""
    s_cmp_ge_u32 s47, {0 if dbg else 2}
    s_cbranch_scc1 {N}_h
    """)
    def krd(ks):
        k = ks & 3
        return [f"ds_read_b128 {vr(XF+4*k,4)}, v{AX+(ks&7)} offset:{(ks>>3)*256}"] + \
               [f"ds_read_b64_tr_b16 {vr(WF+4*k+2*t,2)}, v{AW} offset:{(16*ks+4*t)*40}" for t in range(2)]
    for ks in range(3):
        for x in krd(ks): a(x)
    for ks in range(40):
        a(f"s_waitcnt lgkmcnt({3*min(2, 39-ks)})")
        a(mfma32(ACC, WF + 4 * (ks & 3), XF + 4 * (ks & 3), ACC if ks else None))
        if ks + 3 < 40:
            for x in krd(ks + 3): a(x)
    a(f"""
    s_mul_i32 s20, s49, {TILE_B}
    s_add_u32 s20, s20, {KV_OFF}
    v_cmp_eq_u32 vcc, 1, v{T+4}
    s_nop 7
    s_nop 1
    """)
    for i in range(6): a(f"v_cvt_pk_bf16_f32 v{PK+i}, v{ACC+2*i}, v{ACC+2*i+1}")
    a(f"""
    s_cmp_eq_u32 s47, 1
    s_cbranch_scc1 {N}_v
    buffer_store_dwordx4 {vr(PK,4)}, v1, s[8:11], s20 offen sc1
    v_cndmask_b32_e64 v{PK+4}, v{PK+4}, 0, vcc
    v_cndmask_b32_e64 v{PK+5}, v{PK+5}, 0, vcc
    v_lshlrev_b32 v{T+1}, 3, v{T+3}
    s_mov_b32 exec_hi, 0
    buffer_store_dwordx2 {vr(PK+4,2)}, v{T+1}, s[8:11], s20 offen offset:{K1_OFF_T} sc1
    s_mov_b32 exec_hi, -1
    v_dot2_f32_bf16 v{SX}, v{PK}, v{PK}, 0
    """)
    for i in range(1, 6): a(f"v_dot2_f32_bf16 v{SX}, v{PK+i}, v{PK+i}, v{SX}")
    a("s_nop 2")
    half_sum(a, SX, T)
    def wavemax(r, t, full):
        for k in (8, 4, 2, 1):
            a("s_nop 1")
            a(f"v_max_f32_dpp v{r}, v{r}, v{r} row_ror:{k} row_mask:0xf bank_mask:0xf")
        for sw in ("v_permlane16_swap_b32", "v_permlane32_swap_b32")[:2 if full else 1]:
            a(f"""
            v_mov_b32 v{t}, v{r}
            s_nop 1
            {sw} v{r}, v{t}
            s_nop 1
            v_max_f32 v{r}, v{r}, v{t}
            """)
    wavemax(SX, T, False)
    a(f"""
    s_lshl_b32 s21, s49, 2
    s_add_u32 s21, s21, {KM_OFF}
    v_mov_b32 v{T}, 0
    s_mov_b64 exec, 1
    buffer_store_dword v{SX}, v{T}, s[8:11], s21 offen sc1
    s_mov_b64 exec, -1
    s_branch {N}_h
    """)
    a.label(f"{N}_v")
    a(f"""
    v_lshlrev_b32 v{T}, 6, v{T+3}
    v_lshl_add_u32 v{T}, v{T+4}, 3, v{T}
    ds_write_b64 v{T}, {vr(PK,2)} offset:{VST}
    ds_write_b64 v{T}, {vr(PK+2,2)} offset:{VST+16}
    ds_write_b64 v{T}, {vr(PK+4,2)} offset:{VST+32}
    v_bfe_u32 v{T}, v0, 2, 2
    v_lshl_add_u32 v{T}, v{T+4}, 2, v{T}
    v_lshlrev_b32 v{T}, 6, v{T}
    v_bfe_u32 v{T+1}, v0, 4, 1
    v_lshl_add_u32 v{T}, v{T+1}, 5, v{T}
    v_and_b32 v{T+1}, 3, v0
    v_lshl_add_u32 v{T}, v{T+1}, 3, v{T}
    s_waitcnt lgkmcnt(0)
    """)
    for t in range(2):
        for u in range(2):
            a(f"ds_read_b64_tr_b16 {vr(PK+4*t+2*u,2)}, v{T} offset:{VST+(16*t+8*u)*64}")
    a(f"""
    v_cmp_eq_u32 vcc, 20, v{T+3}
    v_mov_b32 v{T+1}, s60
    s_nop 0
    v_cndmask_b32_e64 v{T+1}, 0, v{T+1}, vcc
    v_cmp_gt_u32 vcc, 20, v{T+3}
    v_mul_u32_u24 v{T+2}, {V_PLANE}, v{T+4}
    v_lshl_add_u32 v{T+2}, v{T+3}, 4, v{T+2}
    s_waitcnt lgkmcnt(0)
    """)
    for i in range(8): a(f"v_cndmask_b32_e64 v{PK+i}, v{T+1}, v{PK+i}, vcc")
    a(f"""
    v_cmp_eq_u32 vcc, 26, v{T+3}
    v_mov_b32 v{T+1}, 0x3f80
    s_nop 0
    v_cndmask_b32_e64 v{PK}, v{PK}, v{T+1}, vcc
    s_mov_b32 exec_lo, 0x0fffffff
    s_mov_b32 exec_hi, 0x0fffffff
    buffer_store_dwordx4 {vr(PK,4)}, v{T+2}, s[8:11], s20 offen offset:{V_OFF_T} sc1
    buffer_store_dwordx4 {vr(PK+4,4)}, v{T+2}, s[8:11], s20 offen offset:{V_OFF_T+2*V_PLANE} sc1
    s_mov_b64 exec, -1
    """)
    a.label(f"{N}_h")
    if stamp: stamp_mid(a, 2)
    if hmode == 0:
        HX = 40
        for i in range(10):
            a(f"ds_read_b128 {vr(HX+4*i,4)}, v{26+(i&1)} offset:{(i>>1)*256}")
        zload(ZV)
        a(f"""
        s_lshl_b32 s7, s49, 2
        s_add_u32 s7, s7, s47
        s_mul_i32 s21, s7, 10240
        s_add_u32 s21, s21, {HF_OFF}
        """)
        ln_pass(HX, 96, 100, lambda i: f"s_waitcnt lgkmcnt({9-i})")
        transpose_tail(a, 32, 8, 21, HST, store_mod=" sc1")
    else:
        zload(ZV)
        lds_wait(3, W_HD, "gt", 1, 4, 2)
    a(f"""
    s_lshr_b32 s7, s49, 2
    s_lshl_b32 s7, s7, 7
    s_add_u32 s7, s7, {FL4_OFF}
    """)
    if stamp: stamp_mid(a, 0)
    publish(ZV, ZV + 1, 7)
    a("s_mov_b64 exec, -1")
    if stamp: stamp_mid(a, 1)
    if pfw == 1: pf_w1('ge' if pfn0 else None)
    a(f"""
    s_setprio {lprio}
    s_add_u32 s8, s4, {KV_OFF}
    s_addc_u32 s9, s5, 0
    s_and_b32 s9, s9, 0xffff
    s_mov_b32 s10, {KV_SZ}
    s_mov_b32 s11, 0x20000
    s_mov_b32 s12, 0
    s_mov_b32 s13, 4                 ; chunk n
    v_lshlrev_b32 v6, 3, v1
    v_add_u32 v6, {FL4_OFF}, v6
    """)
    lds_wait(3, W_QD if look == 9 else W_CW + 4 * look, "gt", 1, 4, 4)
    if pfw == 3: pf_w1('ge' if pfn0 else None)
    g_wait(6, 16, 4, hsleep, mask=0xffff)
    if stamp: stamp_mid(a, 3)
    def iss(n):
        for h in range(3):
            a(f"s_mov_b32 m0, {n*CHUNK + h*4096}")
            a("s_nop 0")
            for i in range(4):
                a(f"buffer_load_dwordx4 v1, s[8:11], s12 offen offset:{i*1024} sc1 lds")
            a(f"s_add_u32 s12, s12, 4096")
    def pub(n, left):
        a(f"s_waitcnt vmcnt({left})")
        lds_inc(3, 5, W_LAND + 4 * n)
    a(f"""
    v_lshrrev_b32 v6, 2, v1
    v_add_u32 v6, {KM_OFF}, v6
    global_load_dword v7, v6, s[4:5] sc1
    ds_write_b32 v3, v5 offset:{W_GO}
    """)
    iss(0); iss(1)
    a("s_waitcnt vmcnt(24)")
    wavemax(7, 6, True)
    a(f"ds_write_b32 v3, v7 offset:{W_KM}")
    pub(0, 12); pub(1, 0)
    lds_wait(3, W_QD, "gt", 4, 4, 2)
    iss(2); iss(3); pub(2, 12); pub(3, 0)
    if pfw == 2: pf_w1('ge' if pfn0 else None)
    a.label(f"{N}_ld")
    a(f"""
    s_and_b32 s14, s13, 3
    s_add_u32 s15, s14, 1
    s_and_b32 s15, s15, 3
    s_lshl_b32 s15, s15, 2
    s_add_u32 s15, s15, {LWORD}
    v_mov_b32 v2, s15
    s_add_u32 s15, s13, 1
    s_andn2_b32 s15, s15, 3          ; needs 4*(((n-3)>>2)+1)
    """)
    lds_wait(2, W_ARR, "gt", "s15", 4, lsleep)
    a(f"s_mul_i32 s16, s14, {CHUNK}")
    for h in range(3):
        a(f"s_add_u32 m0, s16, {h*4096}")
        a("s_nop 0")
        for i in range(4):
            a(f"buffer_load_dwordx4 v1, s[8:11], s12 offen offset:{i*1024} sc1 lds")
        a(f"s_add_u32 s12, s12, 4096")
    a(f"""
    s_lshl_b32 s14, s14, 2
    s_add_u32 s14, s14, {LWORD}
    v_mov_b32 v2, s14
    s_add_u32 s13, s13, 1
    s_waitcnt vmcnt(0)
    """)
    lds_inc(2, 5, W_LAND)
    def l_mid():
        a(f"""
        s_cmp_lt_u32 s2, 224
        s_cbranch_scc1 {N}_ld_np
        """)
        srd(a, 24, W2_, W2_ + 1, 0, 1728 * 4096)
        a(f"""
        s_sub_u32 s17, s2, 224
        s_mul_i32 s18, s17, {54*4096}
        v_and_b32 v6, 63, v0
        v_lshlrev_b32 v6, 7, v6
        s_mov_b32 s17, 27
        """)
        a.label(f"{N}_pfl")
        a(f"""
        buffer_load_dword v8, v6, s[24:27], s18 offen{pfm2}
        s_add_u32 s18, s18, 8192
        s_sub_u32 s17, s17, 1
        s_cmp_lg_u32 s17, 0
        s_cbranch_scc1 {N}_pfl
        """)
    def l_end():
        srd(a, 24, 4, 5, 0, WS_END)
        a(f"v_mov_b32 v6, {FL_OFF + 384}")
        g_wait(6, 80, 7, 8)
        a(f"""
        s_lshr_b32 s17, s2, 3
        s_and_b32 s20, s17, 7
        s_mul_i32 s17, s17, 25600
        s_add_u32 s17, s17, {WOF_OFF}
        v_and_b32 v6, 63, v0
        v_min_u32 v6, 49, v6
        v_lshlrev_b32 v6, 7, v6
        """)
        for i in range(4):
            a("buffer_load_dword v8, v6, s[24:27], s17 offen")
            a("s_add_u32 s17, s17, 6400")
        a(f"""
        v_and_b32 v6, 15, v0
        v_bfe_u32 v7, v0, 4, 2
        v_mul_u32_u24 v7, 10240, v7
        v_lshl_add_u32 v6, v6, 4, v7
        s_mul_i32 s20, s20, 1280
        s_add_u32 s20, s20, {WOF_OFF}
        """)
        for k in range(8):
            if k in (2, 4, 6):
                c = 13 + (k - 2) // 2
                lds_wait(3, W_ARR + 4 * (c & 3), "gt", 16, 4, lsleep)
            for j in range(5):
                a(f"s_mov_b32 m0, {waddr(k) + j*768}")
                a("s_nop 0")
                a(f"buffer_load_dwordx4 v6, s[24:27], s20 offen offset:{j*256} sc1 lds")
            a(f"s_add_u32 s20, s20, 40960")
        a(f"""
        s_lshl_b32 s17, s48, 7
        s_add_u32 s17, s17, {FL2_OFF}
        v_mov_b32 v6, s17
        """)
        lds_wait(3, W_OP, "gt", 4, 4, 2)
        g_wait(6, 32, 4, osleep)
    a(f"s_cmp_lg_u32 s13, {pf_at if pf2 else 99}")
    a(f"s_cbranch_scc1 {N}_ld_np")
    l_mid()
    a.label(f"{N}_ld_np")
    a(f"""
    s_cmp_lg_u32 s13, 16
    s_cbranch_scc1 {N}_ld
    """)
    l_end()
    if stamp:
        a("s_mov_b32 s70, 0")
        stamp_end(a, 24, 70, 1, nw=1)
    a("s_endpgm")

    a.label(f"{N}_g")
    S = dict(GS); g = G2()
    VFA, VPA, VPOLL = g.tmp + 8, g.tmp + 9, g.tmp + 10
    VONE = g.ONE
    a(f"""
    s_sub_u32 s6, s70, 4
    s_lshr_b32 s47, s2, 3
    s_mov_b32 s60, s48
    s_and_b32 s48, s46, 1
    s_lshl_b32 s48, s48, 2
    s_and_b32 s49, s47, 3
    s_add_u32 s48, s48, s49          ; db
    s_lshr_b32 s49, s46, 1
    s_lshr_b32 s50, s47, 2
    s_and_b32 s64, s47, 7            ; db (B2)
    s_mul_i32 s49, s49, 7
    s_add_u32 s49, s49, s50          ; fb
    s_mul_i32 s52, s48, 1280         ; db*80*16
    v_mov_b32 v{VONE}, 1
    """)
    P2 = dict(mode="TF", srdT=12, srdF=16, strideT=4096, planeF=10240, W=4, TisA=False, fmod=" sc1")
    def b2_early():
        srd(a, 12, W2_, W2_ + 1, 0, 1728 * 4096)
        srd(a, 16, 4, 5, UF_OFF, UF_SZ)
        a(f"v_bfe_u32 v{g.tmp+2}, v0, 4, 2")
        setup_T(a, g, 4096)
        a("s_lshl_b32 s51, s60, 7")
        a("s_mul_i32 s52, s64, 1280")
        init_offsets(a, g, S, P2, 51, 52)
        srd(a, 20, X_, X_ + 1, 0, 2048 * 1280)
        srd(a, 24, 72, 73, 0, 4096)
        a(f"""
        s_lshl_b32 s53, s60, 2
        s_add_u32 s53, s53, s6
        s_lshl_b32 s7, s53, 5
        s_mul_i32 s53, s53, {16*1280}
        s_mul_i32 s55, s64, 160
        s_add_u32 s53, s53, s55
        v_and_b32 v1, 15, v0
        v_lshlrev_b32 v3, 1, v1
        v_mul_u32_u24 v1, 1280, v1
        v_lshl_add_u32 v1, v{g.tmp+2}, 3, v1
        buffer_load_ushort v3, v3, s[24:27], s7 offen
        """)
        for j in range(5):
            a(f"buffer_load_dwordx2 {vr(g.FB[2]+2*j,2)}, v1, s[20:23], s53 offen offset:{j*32}")
        issue(a, g, S, 0, P2, "T"); issue(a, g, S, 1, P2, "T")
    nsy = [0]
    def arrive4():
        a(f"v_mov_b32 v{VFA}, {LWORD}")
        lds_inc(VFA, VONE, W_SY + 4 * nsy[0])
    def wait4():
        lds_wait(VFA, W_SY + 4 * nsy[0], "gt", 4, VPOLL, 1)
        nsy[0] += 1
    def sync4():
        arrive4(); wait4()
    srd(a, 8, 4, 5, 0, WS_END)
    setup_lane(a, g, S, GBASE)
    setup_F(a, g, g.vF, 10240)
    a(f"""
    s_cmp_eq_u32 s50, 7
    s_cbranch_scc1 {N}_wo
    s_cmp_ge_u32 s49, 27
    s_cbranch_scc1 {N}_nob1
    """)
    srd(a, 12, 40, 41, 0, 2048 * 3456)
    srd(a, 16, 4, 5, HF_OFF, HF_SZ)
    srd(a, 20, 42, 43, 0, 1728 * 2)
    P = dict(mode="TF", srdT=12, srdF=16, strideT=3456, planeF=10240, W=4, TisA=True, fmod=" sc1")
    setup_T(a, g, 3456)
    a("s_lshl_b32 s51, s49, 7")
    init_offsets(a, g, S, P, 51, 52)
    a(f"""
    v_lshlrev_b32 v1, 3, v{g.tmp+2}
    s_lshl_b32 s53, s6, 5
    s_add_u32 s53, s53, s51
    buffer_load_dwordx2 v[2:3], v1, s[20:23], s53 offen
    """)
    a(f"""
    s_lshl_b32 s54, s49, 3
    s_lshl_b32 s55, s6, 1
    s_add_u32 s54, s54, s55
    s_mul_i32 s54, s54, 10240
    s_add_u32 s54, s54, s52
    s_add_u32 s54, s54, {UF_OFF}
    v_mov_b32 v1, {LWORD}
    """)
    lds_wait(1, W_QD, "gt", 4, g.JUNK, gsl)
    lds_wait(1, W_GO, "gt", 1, g.JUNK, gsl)
    mark(1)
    roll_prologue(a, g, S, P)
    if stamp and sm == 0: stamp_mid(a, 2)
    main_loop(a, g, S, P, N + "_b1", 16, prios=p1)
    a(f"s_setprio {eprio}")
    if stamp: stamp_mid(a, 0)
    mark(2)
    reduce4(a, g, S, GBASE, sync4)
    b1_epilogue(a, g, S, 8, 54, 2, store_mod=" sc1")
    if stamp and sm == 0: stamp_mid(a, 3)
    a(f"""
    s_mul_i32 s3, s49, 57
    s_lshr_b32 s3, s3, 9             ; fb / 9
    s_lshl_b32 s7, s48, 2
    s_add_u32 s7, s7, s3
    s_lshl_b32 s7, s7, 7
    s_add_u32 s7, s7, {FL_OFF}
    v_mov_b32 v1, s7
    s_waitcnt vmcnt(0)
    s_mov_b64 exec, 1
    global_atomic_add v1, v{VONE}, s[4:5] sc1
    s_mov_b64 exec, -1
    """)
    b2_early()
    a(f"s_branch {N}_b2")
    a.label(f"{N}_wo")
    a(f"""
    s_and_b32 s47, s47, 3
    s_lshl_b32 s47, s47, 3
    s_add_u32 s47, s47, s46
    s_lshl_b32 s47, s47, 2
    s_add_u32 s47, s47, s6           ; task
    s_cmp_ge_u32 s47, 80
    s_cbranch_scc1 {N}_nob1
    s_mul_i32 s51, s47, 10240
    s_add_u32 s53, s51, {WOF_OFF}
    """)
    srd(a, 12, 44, 45, 0, 640 * 1280)
    a(f"v_mov_b32 v1, {LWORD}")
    lds_wait(1, W_QD, "gt", 4, 2, 4)
    lds_wait(1, W_GO, "gt", 1, 2, 4)
    a("v_mov_b32 v2, 1")
    transpose_task(a, g.ACC, S, 12, 51, 8, 53, S["lb"], store_mod=" sc1")
    a(f"s_mov_b32 s7, {FL_OFF + 384}")
    publish(2, 1, 7, mask=0xff, lane_stride=9)
    a("s_mov_b64 exec, -1")
    a.label(f"{N}_nob1")
    a(f"s_setprio {eprio}")
    a(f"v_mov_b32 v1, {LWORD}")
    lds_wait(1, W_QD, "gt", 4, 2, 4)
    b2_early()
    a(f"v_mov_b32 v{VPA}, {LWORD}")
    lds_wait(VPA, W_ARR + 4 * (pch & 3), "ge", 4 * (pch >> 2), VPOLL, 8)
    a.label(f"{N}_b2")
    a(f"s_waitcnt vmcnt(8)")
    for i in range(10):
        a(f"v_lshlrev_b32 v{g.ACC+2*i}, 16, v{g.FB[2]+i}")
        a(f"v_and_b32 v{g.ACC+2*i+1}, 0xffff0000, v{g.FB[2]+i}")
    a(f"""
    s_lshl_b32 s7, s64, 9
    s_add_u32 s7, s7, {FL_OFF}
    v_and_b32 v1, 3, v0
    v_lshl_add_u32 v1, v1, 7, s7
    s_mov_b32 s62, 0
    s_add_u32 s68, s6, 4
    """)
    def poll(lab, back, first=False):
        a.label(lab)
        a(f"""
        s_mov_b64 exec, 15
        global_load_dword v2, v1, s[4:5] sc1
        s_mov_b64 exec, -1
        s_waitcnt vmcnt(0)
        v_cmp_le_u32 vcc, 36, v2
        s_add_u32 s62, s62, 1
        s_cmp_ge_u32 s62, {LIM}
        s_cbranch_scc1 {back}
        s_and_b32 s66, vcc_lo, 7
        s_xor_b32 s67, s66, 15
        s_ff1_i32_b32 s67, s67
        s_mul_i32 s66, s67, 18
        s_cmp_eq_u32 s67, 3
        s_cselect_b32 s66, 64, s66
        """)
        if first:
            a(f"""
            v_readlane_b32 s69, v2, 3
            s_nop 0
            s_cmp_lt_u32 s69, 80
            s_cselect_b32 s66, 0, s66
            """)
        a(f"""
        s_cmp_lt_u32 s68, s66
        s_cbranch_scc1 {back}
        s_sleep {psleep}
        s_branch {lab}
        """)
    a(f"""
    v_mov_b32 v{g.tmp+11}, {LWORD + W_SH}
    s_cmp_lg_u32 s6, 0
    s_cbranch_scc1 {N}_go2
    """)
    poll(f"{N}_poll", f"{N}_go", True)
    a.label(f"{N}_go")
    a(f"""
    v_mov_b32 v{VFA}, s66
    ds_write_b32 v{g.tmp+11}, v{VFA}
    s_waitcnt lgkmcnt(0)
    """)
    a.label(f"{N}_go2")
    sync4()
    a(f"""
    ds_read_b32 v{VFA}, v{g.tmp+11}
    s_waitcnt lgkmcnt(0)
    v_readfirstlane_b32 s66, v{VFA}
    """)
    stubs = []
    def check():
        i = len(stubs); stubs.append(i)
        a(f"""
        s_add_u32 s68, s68, 4
        s_cmp_ge_u32 s68, s66
        s_cbranch_scc1 {N}_ck{i}
        """)
        a.label(f"{N}_ckb{i}")
    if stamp: stamp_mid(a, 1)
    mark(3)
    roll_prologue(a, g, S, P2, tpart=False)
    issue(a, g, S, 2, P2, "T")
    a("s_setprio 0")
    main_loop(a, g, S, P2, N + "_b2l", 14, midentry=True, czero=5, check=check, prios=p2)
    a(f"s_setprio {eprio}")
    if stamp and sm == 3: stamp_mid(a, 2)
    OFR = lambda k: 92 + 4 * k if k < 19 else 8
    def wdma(koff, ldsoff):
        a(f"s_add_u32 s7, s21, {koff*40960}")
        for j in range(5):
            a(f"s_add_u32 m0, s{S['lb']}, {ldsoff + j*768}")
            a("s_nop 0")
            a(f"buffer_load_dwordx4 v2, s[8:11], s7 offen offset:{j*256} sc1 lds")
    def w_first():
        a(f"""
        v_and_b32 v5, 15, v0
        v_bfe_u32 v6, v0, 4, 2
        v_lshlrev_b32 v5, 4, v5
        v_lshl_add_u32 v1, v6, 15, v5
        v_mul_u32_u24 v2, 10240, v6
        v_add_u32 v2, v2, v5
        s_mul_i32 s21, s64, 1280
        s_mul_i32 s7, s6, 40960
        s_add_u32 s21, s21, s7
        s_add_u32 s21, s21, {WOF_OFF}
        s_lshl_b32 s20, s60, 2
        s_add_u32 s20, s20, s6
        s_lshl_b32 s20, s20, 8
        s_add_u32 s20, s20, {OF_OFF}
        """)
        wdma(8, 0)
        a(f"s_mul_i32 s7, s6, 40960")
        a(f"s_add_u32 s21, s21, s7")
    reduce4(a, g, S, GBASE, sync4, mid=w_first)
    if stamp and sm == 3: stamp_mid(a, 3)
    WB = [32, 52, 72]
    arrive4()
    a("v_lshlrev_b32 v3, 16, v3")
    for i in range(20): a(f"v_add_f32 v{g.ACC+i}, v{g.ACC+i}, v3")
    wait4()
    wdma(12, REDOFF); wdma(13, REDOFF + 5120)
    srd(a, 24, 74, 75, 0, 2048 * 1280)
    a(f"""
    v_and_b32 v5, 63, v0
    v_lshlrev_b32 v5, 4, v5
    v_add_u32 v6, 0x10000, v5
    v_add_u32 v7, 0x20000, v5
    s_waitcnt vmcnt(0)
    s_barrier
    """)
    if stamp and sm == 4: stamp_mid(a, 2)
    mark(4)
    for k in range(20):
        a(f"buffer_load_dwordx4 {vr(OFR(k),4)}, v1, s[8:11], s20 offen sc1")
        a(f"s_add_u32 s20, s20, {4*32768}")
    def rd1(k, j):
        off = waddr(k) + j * 1024
        return f"ds_read_b128 {vr(WB[k%3]+4*j,4)}, v{5 + (off >> 16)} offset:{off & 65535}"
    for k in range(2):
        for j in range(5): a(rd1(k, j))
    for k in range(20):
        a(f"s_waitcnt vmcnt({19-k}) lgkmcnt({5 if k < 19 else 0})")
        for j in range(5):
            a(mfma16(g.ACC + 4 * j, WB[k % 3] + 4 * j, OFR(k), g.ACC + 4 * j))
            if k + 2 < 20: a(rd1(k + 2, j))
    if stamp and sm == 4: stamp_mid(a, 3)
    a("s_nop 4")
    pack_store(a, g, g.ACC, 24, 53, PLANE=0, rowstride=1280, mode="R")
    mark(5)
    spin()
    if stamp: stamp_end(a, 8, 70, 0, nw=8)
    a.label(f"{N}_end")
    a("s_endpgm")
    for i in stubs:
        a.label(f"{N}_ck{i}")
        a(f"s_setprio {eprio}")
        poll(f"{N}_ckp{i}", f"{N}_ckr{i}")
        a.label(f"{N}_ckr{i}")
        a("s_setprio 0")
        a(f"s_branch {N}_ckb{i}")
    return finish(a, N, 168, (256, 576, LDS))
```

```python
import sys
from mega2 import mega_kernel
from build import build, HDR
KN = "parallel_sum__grouped_kv_mqa__mixer_token_mlp__prompt_kernel"
def final(fn, aslist=False, **kw):
    k = mega_kernel(KN, **kw)
    s = build([k])
    if not aslist:
        s = s.replace(f"; @launch kernel={KN} grid", "; @launch grid")
    open(fn, "w").write(s)
if __name__ == "__main__":
    final("s_a.s", pfq=True, pf2=False)
    final("s_b.s", pfq=True, pf2=False, pfc=True)
    final("s_c.s", pfq=True, pf2=False, hmode=0)
    final("s_d.s", pfq=True, pf2=False, look=8)
```

```python
from asmlib import *
from layout import *
from gemm import f2u

V_L16 = 1
V_AV  = 2
V_AK1 = 3
V_T0  = 4
QA0, QB0, QA1, QB1 = 8, 12, 16, 18
K0 = [20, 24]; K1 = [28, 30]
VV = [[32, 36], [40, 44]]
PA, PB = 48, 56
SA, SB, OA, OB = 64, 80, 96, 112
TMP = 128
V_FLAG = 144
V_ONE = 145
V_POLL = 146
V_PADDR = 147
MA, MB = 148, 149
NV_ATT = 152

CHUNK = 12288
T_BOUND = 48.0
ONE_ROW = V_OFF_T + 26 * 16

def mfma32(d, a, b, c):
    cs = "0" if c is None else vr(c, 16)
    return f"v_mfma_f32_32x32x16_bf16 {vr(d,16)}, {vr(a,4)}, {vr(b,4)}, {cs}"
def mfma8(d, a, b):
    return f"v_mfma_f32_32x32x8_bf16 {vr(d,16)}, {vr(a,2)}, {vr(b,2)}, {vr(d,16)}"

SREG = dict(ws=4, w=6, wg=2, srdw=8, t0=12, t1=13, t2=14, soff=15, wb=16, qo=17, oo=18, cnt=19, slow=20, srdk=24, flag_addr=4*CHUNK)

def valu_stream(S_, P_):
    out = []
    for k in range(4):
        for i in range(4):
            out.append(f"v_exp_f32 {vr(S_+4*k+i)}, {vr(S_+4*k+i)}")
        out.append(f"v_cvt_pk_bf16_f32 {vr(P_+2*k)}, {vr(S_+4*k)}, {vr(S_+4*k+1)}")
        out.append(f"v_cvt_pk_bf16_f32 {vr(P_+2*k+1)}, {vr(S_+4*k+2)}, {vr(S_+4*k+3)}")
    return out

def emit_phase(a, mf, aux, valu, pat):
    p = 0
    for k in range(4):
        a(mf[k])
        for x in aux[k]:
            if x.startswith("LABEL "): a.label(x[6:])
            else: a(x)
        for x in valu[p:p + pat[k]]: a(x)
        p += pat[k]
    assert p == len(valu)

W_LAND, W_GO, W_KM, W_QD, W_XN, W_OP, W_LW, W_CW, W_ARR, W_SY, W_SH = 0, 16, 20, 24, 28, 32, 40, 80, 120, 136, 168

def setup(a, S, LWORD):
    ws, w, wg = S["ws"], S["w"], S["wg"]
    srdw = S["srdw"]
    t0, t1, t2 = S["t0"], S["t1"], S["t2"]
    a(f"""
    v_and_b32 v{V_T0}, 63, v0
    v_mov_b32 v{V_PADDR}, {LWORD}
    v_mov_b32 v{V_ONE}, 1
    v_lshlrev_b32 v{V_L16}, 4, v{V_T0}
    s_mov_b32 s{srdw}, s{ws}
    s_and_b32 s{srdw+1}, s{ws+1}, 0xffff
    s_mov_b32 s{srdw+2}, {WS_END}
    s_mov_b32 s{srdw+3}, 0x20000
    v_and_b32 v{V_T0+1}, 31, v0
    v_bfe_u32 v{V_T0+2}, v0, 5, 1          ; hf
    s_bfe_u32 s{t0}, s{wg}, 0x20003
    s_lshl_b32 s{t0}, s{t0}, 2
    s_add_u32 s{t0}, s{t0}, s{w}
    s_and_b32 s{t1}, s{wg}, 7
    s_lshl_b32 s{t1}, s{t1}, 3
    s_lshr_b32 s{t2}, s{wg}, 5
    s_add_u32 s{t1}, s{t1}, s{t2}
    s_mul_i32 s{S['oo']}, s{t0}, {5*32768}
    s_lshl_b32 s{t1}, s{t1}, 9
    s_add_u32 s{S['oo']}, s{S['oo']}, s{t1}
    s_add_u32 s{S['oo']}, s{S['oo']}, {OF_OFF}
    v_min_u32 v{V_AV}, 27, v{V_T0+1}
    v_lshlrev_b32 v{V_AV}, 4, v{V_AV}
    v_mul_u32_u24 v{TMP+5}, {V_PLANE}, v{V_T0+2}
    v_add_u32 v{V_AV}, v{V_AV}, v{TMP+5}
    v_add_u32 v{V_AV}, {V_OFF_T}, v{V_AV}
    v_lshlrev_b32 v{V_AK1}, 3, v{V_T0+1}
    v_add_u32 v{V_AK1}, {K1_OFF_T}, v{V_AK1}
    v_cmp_eq_u32 s[22:23], 1, v{V_T0+2}
    v_mov_b32 v{TMP+5}, {ONE_ROW}
    v_lshlrev_b32 v{V_T0+3}, 4, v{V_T0+1}
    v_cndmask_b32_e64 v{V_AK1}, v{V_AK1}, v{TMP+5}, s[22:23]
    v_lshl_add_u32 v{V_T0+3}, v{V_T0+2}, 15, v{V_T0+3}
    """)

def bound(a, S, tag, wait):
    km = TMP + 4
    tA, tB = TMP + 6, TMP + 8
    for t, q0, q1 in ((tA, QA0, QA1), (tB, QB0, QB1)):
        a(f"v_dot2_f32_bf16 v{t}, v{q0}, v{q0}, 0")
        for r in (q0 + 1, q0 + 2, q0 + 3, q1, q1 + 1):
            a(f"v_dot2_f32_bf16 v{t}, v{r}, v{r}, v{t}")
    for i in range(16):
        a(f"v_mov_b32 v{OA+i}, 0")
        if i == 2: a(f"v_mov_b32 v{tA+1}, v{tA}")
        if i == 3: a(f"v_mov_b32 v{tB+1}, v{tB}")
        if i == 6: a(f"v_permlane32_swap_b32 v{tA}, v{tA+1}")
        if i == 7: a(f"v_permlane32_swap_b32 v{tB}, v{tB+1}")
        if i == 10: a(f"v_add_f32 v{tA}, v{tA}, v{tA+1}")
        if i == 11: a(f"v_add_f32 v{tB}, v{tB}, v{tB+1}")
    for i in range(16): a(f"v_mov_b32 v{OB+i}, 0")
    for i in range(8):
        a(f"v_mov_b32 v{PB+i}, 0")
        a(f"v_mov_b32 v{VV[1][0]+i}, 0")
    wait()
    a(f"ds_read_b32 v{km}, v{V_PADDR} offset:{W_KM}")
    for x in ds_k(0, 0, 0): a(x)
    a("s_waitcnt lgkmcnt(2)")
    for t in (tA, tB):
        a(f"v_mul_f32 v{t}, v{t}, v{km}")
    for t in (tA, tB):
        a(f"v_sqrt_f32 v{t}, v{t}")
    a("s_nop 0")
    a(f"v_max_f32 v{km}, v{tA}, v{tB}")
    for t in (tA, tB):
        a(f"v_cvt_pk_bf16_f32 v{t+1}, -v{t}, 0")
    a(f"v_mov_b32 v{km+1}, {hex(f2u(T_BOUND))}")
    a(f"v_cmp_nle_f32 {sr(S['slow'],2)}, v{km}, v{km+1}")
    a(f"v_cndmask_b32_e64 v{QA1}, v{QA1}, v{tA+1}, s[22:23]")
    a(f"v_cndmask_b32_e64 v{QB1}, v{QB1}, v{tB+1}, s[22:23]")

def ds_k(slot, tile, buf):
    o = slot * CHUNK + tile * TILE_B
    return [f"ds_read_b128 {vr(K0[buf],4)}, v{V_L16} offset:{o}",
            f"ds_read_b64 {vr(K1[buf],2)}, v{V_AK1} offset:{o}"]
def ds_v(slot, tile, buf):
    o = slot * CHUNK + tile * TILE_B
    return [f"ds_read_b128 {vr(VV[buf][0],4)}, v{V_AV} offset:{o}",
            f"ds_read_b128 {vr(VV[buf][1],4)}, v{V_AV} offset:{o+2*V_PLANE}"]

def cmp_landed(S, c):
    return f"v_cmp_{'ge' if c == 3 else 'gt'}_u32 vcc, s{S['cnt']}, v{V_POLL}"

def main(a, S, tag, pat=(6,6,6,6), clk=False):
    cnt = S["cnt"]
    a(f"s_mov_b32 s{cnt}, 1")
    a(f"s_cmp_lg_u64 {sr(S['slow'],2)}, 0")
    a(f"s_cbranch_scc1 {tag}_slow")
    a("s_waitcnt lgkmcnt(0)")
    a(mfma32(SA, K0[0], QA0, None))
    a(mfma8(SA, K1[0], QA1))
    for x in ds_k(0, 1, 1): a(x)
    for x in ds_v(0, 0, 0): a(x)
    a("s_nop 7")
    if clk:
        a("s_memtime s[24:25]"); a("s_memrealtime s[26:27]"); a("s_waitcnt lgkmcnt(0)"); a("s_mov_b32 s25, s26")
    a(".p2align 6")
    a.label(f"{tag}_loop")
    for c in range(4):
        for t in range(4):
            j = 4 * c + t
            kb = vb = j & 1
            j2 = j + 2; j1 = j + 1
            dk = ds_k((j2 >> 2) & 3, j2 & 3, kb)
            dv = ds_v((j1 >> 2) & 3, j1 & 3, vb ^ 1)
            mf = [mfma32(SB, K0[kb], QB0, None), mfma8(SB, K1[kb], QB1),
                  mfma32(OB, VV[vb ^ 1][0], PB, OB), mfma32(OB, VV[vb ^ 1][1], PB + 4, OB)]
            aux = [[], [], [dk[1]], ["s_waitcnt lgkmcnt(0)"]]
            aux2 = [[dk[0]], [], [dv[0]], [dv[1]]]
            if t == 0: aux[0] = ["s_mov_b64 exec, 1", f"ds_add_u32 v{V_PADDR}, v{V_ONE} offset:{W_ARR + c*4}", "s_mov_b64 exec, -1"]
            if t == 1:
                aux[0] = [f"ds_read_b32 v{V_POLL}, v{V_PADDR} offset:{((c+1)&3)*4}"]
                aux2[1] = [cmp_landed(S, c)]
            if t == 2: aux[0] = [f"s_cbranch_vccnz {tag}_spin{c}", f"LABEL {tag}_back{c}"]
            if c == 3 and t == 3:
                aux[0] = [f"s_add_u32 s{cnt}, s{cnt}, 1"]
                aux2[1] = [f"s_cmp_lg_u32 s{cnt}, 5"]
            emit_phase(a, mf, aux, valu_stream(SA, PA), pat)
            mf = [mfma32(SA, K0[kb ^ 1], QA0, None), mfma8(SA, K1[kb ^ 1], QA1),
                  mfma32(OA, VV[vb][0], PA, OA), mfma32(OA, VV[vb][1], PA + 4, OA)]
            emit_phase(a, mf, aux2, valu_stream(SB, PB), pat)
    if clk:
        for r in (34, 32, 30, 28):
            a(f"s_mov_b32 s{r}, s{r-2 if r > 28 else 24}"); a(f"s_mov_b32 s{r+1}, s{r-1 if r > 28 else 25}")
        a("s_memtime s[24:25]"); a("s_memrealtime s[26:27]"); a("s_waitcnt lgkmcnt(0)"); a("s_mov_b32 s25, s26")
    a(f"s_cbranch_scc1 {tag}_loop")
    a("s_nop 1")
    a(mfma32(OB, VV[1][0], PB, OB))
    a(mfma32(OB, VV[1][1], PB + 4, OB))
    a.label(f"{tag}_fin")

def tails(a, S, tag):
    cnt = S["cnt"]
    t0, t1, t2 = S["t0"], S["t1"], S["t2"]
    for c in range(4):
        a.label(f"{tag}_spin{c}")
        if c == 3:
            a(f"s_cmp_eq_u32 s{cnt}, 4")
            a(f"s_cbranch_scc1 {tag}_back{c}")
        a(f"ds_read_b32 v{V_POLL}, v{V_PADDR} offset:{((c+1)&3)*4}")
        a("s_waitcnt lgkmcnt(0)")
        a(cmp_landed(S, c))
        a("s_nop 4")
        a(f"s_cbranch_vccnz {tag}_spin{c}")
        a(f"s_branch {tag}_back{c}")
    a.label(f"{tag}_slow")
    a(f"""
    s_mov_b32 exec_lo, 0
    v_mov_b32 v{QA1}, 0
    v_mov_b32 v{QB1}, 0
    s_mov_b32 exec_lo, -1
    v_mov_b32 v{MA}, 0xff7fffff
    v_mov_b32 v{MB}, 0xff7fffff
    s_mov_b32 s{t1}, 0
    """)
    a.label(f"{tag}_sl_chunk")
    a(f"""
    s_and_b32 s{t2}, s{t1}, 3
    s_lshl_b32 s{t0}, s{t2}, 2
    v_add_u32 v{TMP+1}, s{t0}, v{V_PADDR}
    s_lshr_b32 s{cnt}, s{t1}, 2
    s_waitcnt lgkmcnt(0)
    s_mov_b64 exec, 1
    ds_add_u32 v{TMP+1}, v{V_ONE} offset:{W_ARR}
    s_mov_b64 exec, -1
    """)
    a.label(f"{tag}_sl_w")
    a(f"""
    ds_read_b32 v{V_POLL}, v{TMP+1}
    s_waitcnt lgkmcnt(0)
    v_cmp_ge_u32 vcc, s{cnt}, v{V_POLL}
    s_nop 4
    s_cbranch_vccnz {tag}_sl_w
    s_mul_i32 s{t0}, s{t2}, {CHUNK}
    s_add_u32 s{t2}, s{t0}, {CHUNK}
    """)
    a.label(f"{tag}_sl_tile")
    a(f"""
    v_add_u32 v{TMP}, s{t0}, v{V_L16}
    v_add_u32 v{TMP+1}, s{t0}, v{V_AK1}
    v_add_u32 v{TMP+2}, s{t0}, v{V_AV}
    ds_read_b128 {vr(K0[0],4)}, v{TMP}
    ds_read_b64 {vr(K1[0],2)}, v{TMP+1}
    ds_read_b128 {vr(VV[0][0],4)}, v{TMP+2}
    ds_read_b128 {vr(VV[0][1],4)}, v{TMP+2} offset:{2*V_PLANE}
    s_waitcnt lgkmcnt(0)
    """)
    for (S_, Q0, Q1) in ((SA, QA0, QA1), (SB, QB0, QB1)):
        a(mfma32(S_, K0[0], Q0, None))
        a(mfma8(S_, K1[0], Q1))
    a("s_nop 7"); a("s_nop 7")
    for (S_, P_, O_, M_) in ((SA, PA, OA, MA), (SB, PB, OB, MB)):
        a(f"v_max3_f32 v{TMP}, v{S_}, v{S_+1}, v{M_}")
        for i in range(2, 16, 2):
            a(f"v_max3_f32 v{TMP}, v{S_+i}, v{S_+i+1}, v{TMP}")
        a(f"v_mov_b32 v{TMP+1}, v{TMP}")
        a("s_nop 1")
        a(f"v_permlane32_swap_b32 v{TMP}, v{TMP+1}")
        a("s_nop 1")
        a(f"v_max_f32 v{TMP}, v{TMP}, v{TMP+1}")
        a(f"v_sub_f32 v{TMP+1}, v{M_}, v{TMP}")
        a(f"v_exp_f32 v{TMP+1}, v{TMP+1}")
        a(f"v_mov_b32 v{M_}, v{TMP}")
        for i in range(16):
            a(f"v_mul_f32 v{O_+i}, v{O_+i}, v{TMP+1}")
        for i in range(16):
            a(f"v_sub_f32 v{S_+i}, v{S_+i}, v{M_}")
        for x in valu_stream(S_, P_): a(x)
        a("s_nop 1")
        a(mfma32(O_, VV[0][0], P_, O_))
        a(mfma32(O_, VV[0][1], P_ + 4, O_))
    a(f"""
    s_add_u32 s{t0}, s{t0}, {TILE_B}
    s_cmp_lg_u32 s{t0}, s{t2}
    s_cbranch_scc1 {tag}_sl_tile
    s_add_u32 s{t1}, s{t1}, 1
    s_cmp_lg_u32 s{t1}, 16
    s_cbranch_scc1 {tag}_sl_chunk
    s_branch {tag}_fin
    """)

def epilogue(a, S, signal=True):
    srdw, oo, t0 = S["srdw"], S["oo"], S["t0"]
    sm = ' sc1' if signal else ''
    def pk(d, s):
        a(f"v_cvt_pk_bf16_f32 v{d}, v{s}, v{s+1}")
        a(f"v_cvt_pk_bf16_f32 v{d+1}, v{s+2}, v{s+3}")
    def norm(O, t):
        a(f"v_mov_b32 v{t}, v{O+8}")
        a(f"v_mov_b32 v{t+1}, v{O+8}")
        a("s_nop 1")
        a(f"v_permlane32_swap_b32 v{t}, v{t+1}")
        a("s_nop 1")
        a(f"v_rcp_f32 v{t}, v{t+1}")
        a(f"v_rcp_f32 v{t+1}, v{t+1}")
        a("s_nop 0")
        for i in range(0, 12, 2):
            a(f"v_pk_mul_f32 {vr(O+i,2)}, {vr(O+i,2)}, {vr(t,2)}")
    a("s_nop 7")
    a("s_nop 1")
    norm(OA, TMP + 14)
    pk(TMP, OA); pk(TMP + 2, OA + 4); pk(TMP + 4, OA + 8)
    a("s_nop 1")
    for i in range(2):
        a(f"v_permlane32_swap_b32 v{TMP+i}, v{TMP+2+i}")
    norm(OB, TMP + 14)
    a(f"buffer_store_dwordx4 {vr(TMP,4)}, v{V_T0+3}, {sr(srdw,4)}, s{oo} offen{sm}")
    pk(TMP + 6, OB); pk(TMP + 12, OB + 4); pk(TMP + 10, OB + 8)
    a(f"s_add_u32 s{t0}, s{oo}, {2*32768}")
    for i in range(2):
        a(f"v_permlane32_swap_b32 v{TMP+6+i}, v{TMP+12+i}")
    a("s_nop 1")
    for i in range(2):
        a(f"v_permlane32_swap_b32 v{TMP+4+i}, v{TMP+12+i}")
    a("s_nop 1")
    for i in range(2):
        a(f"v_permlane32_swap_b32 v{TMP+12+i}, v{TMP+8+i}")
    a(f"buffer_store_dwordx4 {vr(TMP+4,4)}, v{V_T0+3}, {sr(srdw,4)}, s{t0} offen{sm}")
    a(f"s_add_u32 s{t0}, s{oo}, {4*32768}")
    a("s_mov_b32 exec_hi, 0")
    a(f"buffer_store_dwordx4 {vr(TMP+8,4)}, v{V_T0+3}, {sr(srdw,4)}, s{t0} offen{sm}")
    if signal == 1:
        wg, ws = S["wg"], S["ws"]
        a(f"""
        s_and_b32 s{t0}, s{wg}, 7
        s_lshl_b32 s{t0}, s{t0}, 2
        s_lshr_b32 s{S['t1']}, s{wg}, 6
        s_add_u32 s{t0}, s{t0}, s{S['t1']}
        s_lshl_b32 s{t0}, s{t0}, 7
        s_add_u32 s{t0}, s{t0}, {FL2_OFF}
        v_mov_b32 v{V_T0}, s{t0}
        s_mov_b64 exec, 1
        s_waitcnt vmcnt(0)
        global_atomic_add v{V_T0}, v{V_ONE}, {sr(ws,2)} sc1
        ds_add_u32 v{V_PADDR}, v{V_ONE} offset:{W_OP}
        """)
    if signal == 2:
        a("s_mov_b64 exec, 1")
        a(f"ds_add_u32 v{V_PADDR}, v{V_ONE} offset:{W_OP}")
```

```python
from asmlib import *
from layout import *

def mfma16(d, a, b, c):
    cs = "0" if c is None else vr(c, 4)
    return f"v_mfma_f32_16x16x32_bf16 {vr(d,4)}, {vr(a,4)}, {vr(b,4)}, {cs}"

def srd(a, d, lo, hi, off, size):
    if off:
        a(f"s_add_u32 s{d}, s{lo}, {off}")
        a(f"s_addc_u32 s{d+1}, s{hi}, 0")
        a(f"s_and_b32 s{d+1}, s{d+1}, 0xffff")
    else:
        a(f"s_mov_b32 s{d}, s{lo}")
        a(f"s_and_b32 s{d+1}, s{hi}, 0xffff")
    a(f"s_mov_b32 s{d+2}, {size}")
    a(f"s_mov_b32 s{d+3}, 0x20000")

class G:
    def __init__(self, NB=3, ff=False, vbase=8):
        self.NB = NB
        v = vbase
        self.ACC = v; v += 80
        self.FB = []
        for i in range(NB): self.FB.append(v); v += 20
        if ff:
            self.F2 = []
            for i in range(NB): self.F2.append(v); v += 16
            self.TB = self.F2[0]
        else:
            self.TB = v; v += 16
        self.vT = v; v += 1
        self.vF = v; v += 1
        self.vR = v; v += 4
        v += v & 1
        self.tmp = v; v += 12
        self.nv = v

class G2:
    NB = 3
    JUNK = 4; vT = 5; vF = 6; ONE = 7; vR = 8; ACC = 12
    FB = [92, 112, 132]; TB = 152; tmp = 112; nv = 168

RING = 4096
REGION = 23552
REDOFF = 8192

def setup_lane(a, g, S, ldsbase):
    w = S["w"]; t0 = S["t0"]; t = g.tmp
    a(f"""
    v_and_b32 v{t}, 63, v0
    v_and_b32 v{t+1}, 15, v0                 ; i4 / r
    v_bfe_u32 v{t+2}, v0, 4, 2               ; kg
    s_mul_i32 s{S['lb']}, s{w}, {REGION}
    s_add_u32 s{S['lb']}, s{S['lb']}, {ldsbase}
    """)
    a(f"""
    v_lshrrev_b32 v{t+3}, 1, v{t+2}
    v_lshlrev_b32 v{t+3}, 4, v{t+3}
    v_and_b32 v{t+4}, 1, v{t+2}
    v_lshl_add_u32 v{t+3}, v{t+4}, 2, v{t+3}
    v_lshrrev_b32 v{t+5}, 2, v{t+1}
    v_add_u32 v{t+3}, v{t+3}, v{t+5}
    v_lshlrev_b32 v{t+3}, 7, v{t+3}          ; slot*128
    v_and_b32 v{t+5}, 3, v{t+1}
    v_lshl_add_u32 v{t+3}, v{t+5}, 3, v{t+3} ; + (i4&3)*8
    v_add_u32 v{t+3}, s{S['lb']}, v{t+3}
    v_lshrrev_b32 v{t+5}, 3, v{t+1}
    v_lshl_add_u32 v{t+5}, v{t+4}, 1, v{t+5} ; swz
    """)
    for b in range(4):
        a(f"s_add_u32 s{t0}, s{w}, {b}")
        a(f"s_and_b32 s{t0}, s{t0}, 3")
        a(f"v_xor_b32 v{t+6}, s{t0}, v{t+5}")
        a(f"v_lshl_add_u32 v{g.vR+b}, v{t+6}, 5, v{t+3}")

def setup_T(a, g, stride):
    t = g.tmp
    a(f"""
    v_bfe_u32 v{t+6}, v0, 3, 2
    v_bfe_u32 v{t+7}, v0, 5, 1
    v_lshl_add_u32 v{t+6}, v{t+7}, 3, v{t+6}
    v_mul_u32_u24 v{g.vT}, {stride}, v{t+6}
    v_and_b32 v{t+6}, 7, v0
    v_lshlrev_b32 v{t+7}, 1, v{t+2}
    v_xor_b32 v{t+6}, v{t+6}, v{t+7}
    v_lshl_add_u32 v{g.vT}, v{t+6}, 4, v{g.vT}
    """)

def setup_F(a, g, vdst, plane):
    t = g.tmp
    a(f"""
    v_mul_u32_u24 v{vdst}, {plane}, v{t+2}
    v_lshl_add_u32 v{vdst}, v{t+1}, 4, v{vdst}
    """)

def issue(a, g, S, b, P, part="TF"):
    so4 = S["so4"]; sf = S["sf"]
    if part == "T":
        a(f"s_add_u32 m0, s{S['lb']}, {b*RING}")
        a("s_nop 0")
        for i in range(4):
            a(f"buffer_load_dwordx4 v{g.vT}, {sr(P['srdT'],4)}, s{so4+i} offen offset:{i*1024}{P.get('tmod','')} lds")
        for i in range(4):
            a(f"s_add_u32 s{so4+i}, s{so4+i}, {32 * P['W'] * P['strideT']}")
        return
    if part == "F":
        for j in range(5):
            a(f"buffer_load_dwordx4 {vr(g.FB[b]+4*j,4)}, v{g.vF}, {sr(P['srdF'],4)}, s{sf} offen offset:{j*256}{P.get('fmod','')}")
        a(f"s_add_u32 s{sf}, s{sf}, {4*P['W']*P['planeF']}")
        return
    if P["mode"] == "TF":
        a(f"s_add_u32 m0, s{S['lb']}, {b*RING}")
        fm = P.get("fmod", "")
        a(f"buffer_load_dwordx4 {vr(g.FB[b],4)}, v{g.vF}, {sr(P['srdF'],4)}, s{sf} offen{fm}")
        for i in range(4):
            a(f"buffer_load_dwordx4 v{g.vT}, {sr(P['srdT'],4)}, s{so4+i} offen offset:{i*1024} lds")
        for j in range(1, 5):
            a(f"buffer_load_dwordx4 {vr(g.FB[b]+4*j,4)}, v{g.vF}, {sr(P['srdF'],4)}, s{sf} offen offset:{j*256}{fm}")
        inc = 32 * P["W"] * P["strideT"]
    else:
        for i in range(4):
            a(f"buffer_load_dwordx4 {vr(g.F2[b]+4*i,4)}, v{g.vT}, {sr(P['srdT'],4)}, s{so4+i} offen")
        for j in range(5):
            a(f"buffer_load_dwordx4 {vr(g.FB[b]+4*j,4)}, v{g.vF}, {sr(P['srdF'],4)}, s{sf} offen offset:{j*256}")
        inc = 4 * P["W"] * P["plane2"]
    for i in range(4):
        a(f"s_add_u32 s{so4+i}, s{so4+i}, {inc}")
    a(f"s_add_u32 s{sf}, s{sf}, {4*P['W']*P['planeF']}")

def init_offsets(a, g, S, P, sTbase, sFbase):
    so4 = S["so4"]; sf = S["sf"]; w = S["w"]; t0 = S["t0"]
    if P["mode"] == "TF":
        st = P["strideT"]
        a(f"s_mul_i32 s{t0}, s{w}, {32*st}")
        a(f"s_add_u32 s{so4}, s{t0}, s{sTbase}")
        for i in range(1, 4):
            a(f"s_add_u32 s{so4+i}, s{so4}, {(16*(i>>1)+4*(i&1))*st - 1024*i}")
    else:
        a(f"s_mul_i32 s{sf}, s{w}, {4*P['plane2']}")
        a(f"s_add_u32 s{sf}, s{sf}, s{sTbase}")
        for i in range(4):
            a(f"s_add_u32 s{t0}, s{w}, {i}")
            a(f"s_and_b32 s{t0}, s{t0}, 3")
            a(f"s_lshl_b32 s{t0}, s{t0}, 8")
            a(f"s_add_u32 s{so4+i}, s{sf}, s{t0}")
    a(f"s_mul_i32 s{t0}, s{w}, {4*P['planeF']}")
    a(f"s_add_u32 s{sf}, s{t0}, s{sFbase}")

def prologue_loads(a, g, S, P):
    for b in range(g.NB - 1):
        issue(a, g, S, b, P)

def zero_acc(a, g):
    for i in range(80):
        a(f"v_mov_b32 v{g.ACC+i}, 0")

class _L:
    def __init__(self): self.l = []
    def __call__(self, x): self.l += [y.strip() for y in x.split("\n") if y.strip()]

def roll_prologue(a, g, S, P, tpart=True, fpart=True):
    assert g.NB == 3
    if tpart and fpart:
        issue(a, g, S, 0, P, "T"); issue(a, g, S, 0, P, "F"); issue(a, g, S, 1, P, "T")
        issue(a, g, S, 1, P, "F"); issue(a, g, S, 2, P, "T")
    elif tpart:
        for b in range(3): issue(a, g, S, b, P, "T")
    else:
        for b in range(2): issue(a, g, S, b, P, "F")

def main_loop(a, g, S, P, tag, nsteps, midentry=False, czero=0, check=None, prios=None, fcheck=None, ffirst=False, cnt_s=None):
    NB = 3; cnt = S["cnt"]
    def rd(b, tb):
        return [f"ds_read_b64_tr_b16 {vr(g.TB+4*tb+2*t,2)}, v{g.vR+tb} offset:{b*RING+t*1024}" for t in range(2)]
    def groups(L):
        out = []
        for x in L:
            if x.startswith("buffer_"): out.append([x])
            else: out[-1].append(x)
        return out
    def sub(b, first):
        L = _L(); issue(L, g, S, b, P, "T")
        m0 = L.l[0]; Tl = groups(L.l[2:])
        L = _L(); issue(L, g, S, (b + 2) % NB, P, "F")
        Fl = groups(L.l)
        a(f"s_waitcnt vmcnt({9 if (first and midentry) else 13})")
        if fcheck: fcheck(b)
        k = 0
        for tb in range(4):
            if prios and not first and (tb == 0 or prios[tb] != prios[tb - 1]): a(f"s_setprio {prios[tb]}")
            a("s_waitcnt lgkmcnt(6)")
            T = g.TB + 4 * tb
            for j in range(5):
                acc = g.ACC + (tb * 5 + j) * 4
                Fr = g.FB[b] + 4 * j
                c = None if (first and k >= czero) else acc
                if P["TisA"]: a(mfma16(acc, T, Fr, c))
                else: a(mfma16(acc, Fr, T, c))
                if k == 0:
                    a(m0)
                    if check: check()
                k += 1
                if tb < 3 and j in (1, 3) and Fl:
                    for x in Fl.pop(0): a(x)
                if tb == 3 and j < 4:
                    for x in Tl.pop(0): a(x)
            if tb == 0: a(f"s_waitcnt vmcnt({6 if (first and ffirst) else 11})")
            for x in rd((b + 1) % NB, tb): a(x)
        assert not Fl and not Tl
    a(f"s_mov_b32 s{cnt}, {nsteps - 1}" if cnt_s is None else f"s_mov_b32 s{cnt}, s{cnt_s}")
    a(f"s_waitcnt vmcnt({8 if ffirst else 14 if midentry else 18})")
    for tb in range(4):
        for x in rd(0, tb): a(x)
    sub(0, True)
    a.label(f"{tag}_loop")
    for i in range(NB):
        sub((i + 1) % NB, False)
        a(f"s_sub_u32 s{cnt}, s{cnt}, 1")
        a(f"s_cmp_eq_u32 s{cnt}, 0")
        if i < NB - 1:
            a(f"s_cbranch_scc1 {tag}_done")
        else:
            a(f"s_cbranch_scc0 {tag}_loop")
    a.label(f"{tag}_done")

def reduce4(a, g, S, ldsbase, sync, mid=None, post=None, va=None):
    t = g.tmp; w = S["w"]; t0 = S["t0"]
    if va is None:
        a("s_waitcnt vmcnt(0) lgkmcnt(0)")
        a(f"v_and_b32 v{t}, 63, v0")
        a(f"v_lshlrev_b32 v{t}, 4, v{t}")
        a(f"v_add_u32 v{t+1}, s{S['lb']}, v{t}")
        a("s_nop 7")
        for tb in range(1, 4):
            for j in range(5):
                a(f"ds_write_b128 v{t+1}, {vr(g.ACC+(tb*5+j)*4,4)} offset:{REDOFF+((tb-1)*5+j)*1024}")
    else:
        a(f"v_and_b32 v{va}, 63, v0")
        a(f"v_lshlrev_b32 v{va}, 4, v{va}")
        a(f"v_add_u32 v{va}, s{S['lb']}, v{va}")
        for n in list(range(4, 15)) + list(range(4)):
            if n == 0: a("s_waitcnt vmcnt(0)")
            a(f"ds_write_b128 v{va}, {vr(g.ACC+(5+n)*4,4)} offset:{REDOFF+n*1024}")
        a(f"v_and_b32 v{t}, 63, v0")
        a(f"v_lshlrev_b32 v{t}, 4, v{t}")
    if mid: mid()
    for tb in range(1, 4):
        a(f"s_sub_u32 s{t0}, s{w}, {tb}")
        a(f"s_and_b32 s{t0}, s{t0}, 3")
        a(f"s_mul_i32 s{t0}, s{t0}, {REGION}")
        a(f"s_add_u32 s{t0}, s{t0}, {ldsbase + REDOFF + (tb-1)*5120}")
        a(f"v_add_u32 v{t+1+tb}, s{t0}, v{t}")
    a("s_waitcnt lgkmcnt(0)")
    sync()
    for tb in range(1, 4):
        for j in range(5):
            a(f"ds_read_b128 {vr(g.ACC+(tb*5+j)*4,4)}, v{t+1+tb} offset:{j*1024}")
    if post: post()
    for tb in range(1, 4):
        a(f"s_waitcnt lgkmcnt({15-5*tb})")
        for i in range(0, 20, 2):
            a(f"v_pk_add_f32 {vr(g.ACC+i,2)}, {vr(g.ACC+i,2)}, {vr(g.ACC+tb*20+i,2)}")

def f2u(x):
    import struct
    return struct.unpack("<I", struct.pack("<f", x))[0]

import os
GV = int(os.environ.get('GV', '0'))
GC1 = -2.0 * 1.4426950408889634 * 0.7978845608028654
GC2 = GC1 * 0.044715

def b1_epilogue(a, g, S, srdU, sUo, vB, store_mod=""):
    t = g.tmp; A = g.ACC; X = g.ACC + 20; C = g.ACC + 60
    a(f"v_lshlrev_b32 v{t}, 16, v{vB}")
    a(f"v_and_b32 v{t+1}, 0xffff0000, v{vB}")
    a(f"v_lshlrev_b32 v{t+2}, 16, v{vB+1}")
    a(f"v_and_b32 v{t+3}, 0xffff0000, v{vB+1}")
    for i, c in enumerate((GC1, GC2, 1.0)):
        a(f"v_mov_b32 v{C+2*i}, {hex(f2u(c))}")
        a(f"v_mov_b32 v{C+2*i+1}, {hex(f2u(c))}")
    for j in range(5):
        for i in (0, 2):
            a(f"v_pk_add_f32 {vr(A+4*j+i,2)}, {vr(A+4*j+i,2)}, {vr(t+i,2)}")
    for i in range(0, 20, 2):
        a(f"v_pk_mul_f32 {vr(X+i,2)}, {vr(A+i,2)}, {vr(A+i,2)}")
    for i in range(0, 20, 2):
        a(f"v_pk_fma_f32 {vr(X+i,2)}, {vr(X+i,2)}, {vr(C+2,2)}, {vr(C,2)}")
    for i in range(0, 20, 2):
        a(f"v_pk_mul_f32 {vr(X+i,2)}, {vr(X+i,2)}, {vr(A+i,2)}")
    for i in range(20):
        a(f"v_exp_f32 v{X+i}, v{X+i}")
    for i in range(0, 20, 2):
        a(f"v_pk_add_f32 {vr(X+i,2)}, {vr(X+i,2)}, {vr(C+4,2)}")
    for i in range(20):
        a(f"v_rcp_f32 v{X+i}, v{X+i}")
    for i in range(0, 20, 2):
        a(f"v_pk_mul_f32 {vr(X+i,2)}, {vr(X+i,2)}, {vr(A+i,2)}")
    pack_store(a, g, X, srdU, sUo, PLANE=10240, rowstride=16, mode="F", store_mod=store_mod)

def pack_store(a, g, X, srdO, sO, PLANE, rowstride, mode, store_mod=""):
    t = g.tmp; Pk = g.ACC + 40
    for j in range(5):
        a(f"v_cvt_pk_bf16_f32 v{Pk+2*j}, v{X+4*j}, v{X+4*j+1}")
        a(f"v_cvt_pk_bf16_f32 v{Pk+2*j+1}, v{X+4*j+2}, v{X+4*j+3}")
    a(f"v_mov_b32 v{Pk+10}, v{Pk+8}")
    a(f"v_mov_b32 v{Pk+11}, v{Pk+9}")
    a(f"v_and_b32 v{t}, 15, v0")
    a(f"v_bfe_u32 v{t+1}, v0, 4, 1")
    a(f"v_bfe_u32 v{t+2}, v0, 5, 1")
    if mode == "F":
        a(f"v_lshl_add_u32 v{t}, v{t+1}, 4, v{t}")
        a(f"v_lshlrev_b32 v{t}, 4, v{t}")
        a(f"v_mul_u32_u24 v{t+2}, {PLANE}, v{t+2}")
        a(f"v_add_u32 v{t}, v{t}, v{t+2}")
        step = 512
    else:
        a(f"v_mul_u32_u24 v{t}, {rowstride}, v{t}")
        a(f"v_lshl_add_u32 v{t}, v{t+1}, 5, v{t}")
        a(f"v_lshl_add_u32 v{t}, v{t+2}, 4, v{t}")
        step = 64
    for p in range(3):
        for i in range(2):
            a(f"v_permlane16_swap_b32 v{Pk+4*p+i}, v{Pk+4*p+2+i}")
    a("s_nop 1")
    for p in range(3):
        if p == 2:
            a("s_mov_b32 exec_lo, 0xffff")
            a("s_mov_b32 exec_hi, 0xffff")
        a(f"buffer_store_dwordx4 {vr(Pk+4*p,4)}, v{t}, {sr(srdO,4)}, s{sO} offen offset:{p*step}{store_mod}")
    a("s_mov_b64 exec, -1")

def transpose_task(a, vb, S, srdI, sIo, srdO, sOo, ldsaddr_s, body=None, store_mod=""):
    X = vb + 8; t = vb
    a(f"""
    v_bfe_u32 v{t}, v0, 3, 3
    v_and_b32 v{t+1}, 7, v0
    v_mul_u32_u24 v{t+2}, 1280, v{t}
    v_lshl_add_u32 v{t+2}, v{t+1}, 4, v{t+2}
    """)
    for i in range(10):
        a(f"buffer_load_dwordx4 {vr(X+4*i,4)}, v{t+2}, {sr(srdI,4)}, s{sIo} offen offset:{i*128}")
    a(f"""
    v_mul_u32_u24 v{t+2}, 1344, v{t}
    v_lshl_add_u32 v{t+2}, v{t+1}, 4, v{t+2}
    v_add_u32 v{t+2}, s{ldsaddr_s}, v{t+2}
    v_bfe_u32 v{t+3}, v0, 2, 2
    v_mul_u32_u24 v{t+3}, 1344, v{t+3}
    v_bfe_u32 v{t+4}, v0, 4, 2
    v_lshl_add_u32 v{t+3}, v{t+4}, 5, v{t+3}
    v_and_b32 v{t+4}, 3, v0
    v_lshl_add_u32 v{t+3}, v{t+4}, 3, v{t+3}
    v_add_u32 v{t+3}, s{ldsaddr_s}, v{t+3}
    v_and_b32 v{t+4}, 63, v0
    v_lshlrev_b32 v{t+4}, 4, v{t+4}
    """)
    if body: body(a, X, t + 5)
    else: a("s_waitcnt vmcnt(0)")
    for i in range(10):
        a(f"ds_write_b128 v{t+2}, {vr(X+4*i,4)} offset:{i*128}")
    a("s_waitcnt lgkmcnt(0)")
    for j in range(10):
        a(f"ds_read_b64_tr_b16 {vr(X+4*j,2)}, v{t+3} offset:{j*128}")
        a(f"ds_read_b64_tr_b16 {vr(X+4*j+2,2)}, v{t+3} offset:{j*128+4*1344}")
    for j in range(10):
        if j in (0, 4, 8):
            a(f"s_waitcnt lgkmcnt({max(0, 20-2*(j+4))})")
        if j in (4, 8):
            a(f"s_add_u32 s{sOo}, s{sOo}, 4096")
        a(f"buffer_store_dwordx4 {vr(X+4*j,4)}, v{t+4}, {sr(srdO,4)}, s{sOo} offen offset:{(j%4)*1024}{store_mod}")


def transpose_tail(a, vb, srdO, sOo, lds, store_mod=""):
    X = vb + 8; t = vb
    a(f"""
    v_bfe_u32 v{t}, v0, 3, 3
    v_and_b32 v{t+1}, 7, v0
    v_mul_u32_u24 v{t+2}, 1344, v{t}
    v_lshl_add_u32 v{t+2}, v{t+1}, 4, v{t+2}
    v_bfe_u32 v{t+3}, v0, 2, 2
    v_mul_u32_u24 v{t+3}, 1344, v{t+3}
    v_bfe_u32 v{t+4}, v0, 4, 2
    v_lshl_add_u32 v{t+3}, v{t+4}, 5, v{t+3}
    v_and_b32 v{t+4}, 3, v0
    v_lshl_add_u32 v{t+3}, v{t+4}, 3, v{t+3}
    v_and_b32 v{t+4}, 63, v0
    v_lshlrev_b32 v{t+4}, 4, v{t+4}
    """)
    for i in range(10):
        a(f"ds_write_b128 v{t+2}, {vr(X+4*i,4)} offset:{lds+i*128}")
    a("s_waitcnt lgkmcnt(0)")
    for j in range(10):
        a(f"ds_read_b64_tr_b16 {vr(X+4*j,2)}, v{t+3} offset:{lds+j*128}")
        a(f"ds_read_b64_tr_b16 {vr(X+4*j+2,2)}, v{t+3} offset:{lds+j*128+4*1344}")
    for j in range(10):
        if j in (0, 4, 8):
            a(f"s_waitcnt lgkmcnt({max(0, 20-2*(j+4))})")
        if j in (4, 8):
            a(f"s_add_u32 s{sOo}, s{sOo}, 4096")
        a(f"buffer_store_dwordx4 {vr(X+4*j,4)}, v{t+4}, {sr(srdO,4)}, s{sOo} offen offset:{(j%4)*1024}{store_mod}")
```

```python
from asmlib import *
from layout import *
from gemm import *
import attn3 as attn
from attn import kd
from attn3 import CHUNK, W_LAND, W_GO, W_KM, W_QD, W_XN, W_OP, W_LW, W_CW, W_ARR, W_SY, W_SH
from kernels import finish, stamp_begin, stamp_mid, stamp_end, GS
from k1 import mfma32, mfma8, ln_stats, half_sum, split3, QSCALE

GBASE = 4 * CHUNK
LWORD = 162816
LDS = 163840
HST = 26624; VST = 37376; XN = 39424; WR = XN + 40960; WSL = 20480
assert WR + 4 * WSL <= LWORD
def waddr(k):
    if k < 2: return GBASE + 4 * REGION + 5120 * k
    if k < 8: return ((k - 2) >> 1) * CHUNK + (k & 1) * 5120
    if k < 12: return GBASE + (k - 8) * REGION
    return GBASE + ((k - 12) >> 1) * REGION + REDOFF + (k & 1) * 5120
W_HD = 36; W_WK = 172; W_UD = 176
LIM = 0x100000

def mega_kernel(name, stamp=False, eprio=2, psleep=8, lprio=3, pch=10, sm=0, p1=None, p2=None, lsleep=8,
                pf_at=7, osleep=8, hsleep=16, akw={}, qs=0, gsl=2, cprio=2, look=0, pfw=1, w8prio=3, hmode=2, pfq=True, hks=8, dbg=0, pfn0=0, pub0=True, pfm='', pfc=False, pfm2='', probe=0, pf2=True, la=3, sent=True, ssleep=8, oe=0, b2x=False, usent=False, usleep=8, odelay=8, omod=" nt", bal=False, xe=True, st1=True, rot=3, hat=0, master=True, msleep=1, rsleep=2, spoll=True, wfirst=True, upoll=False, u1=True, rva=True, xmod='', wmod='', fe=False):
    a = Asm()
    N = name
    uid = [0]
    late = []
    def lds_wait(vaddr, off, cmp, val, vtmp, sleep):
        i = uid[0]; uid[0] += 1
        a.label(f"{N}_lw{i}")
        a(f"""
        ds_read_b32 v{vtmp}, v{vaddr} offset:{off}
        s_waitcnt lgkmcnt(0)
        v_cmp_{cmp}_u32 s[84:85], {val}, v{vtmp}
        s_nop 1
        s_cmp_eq_u64 s[84:85], 0
        s_cbranch_scc0 {N}_lx{i}
        """)
        late.append(f"{N}_lx{i}:\ns_sleep {sleep}\ns_branch {N}_lw{i}")
    def lds_check(vaddr, off, cmp, val, vtmp, sleep):
        i = uid[0]; uid[0] += 1
        pre = [f"v_cmp_{cmp}_u32 vcc, {val}, v{vtmp}"]
        post = [f"s_cbranch_vccnz {N}_cx{i}", f"{N}_cb{i}:"]
        late.append(f"""{N}_cx{i}:
        ds_read_b32 v{vtmp}, v{vaddr} offset:{off}
        s_waitcnt lgkmcnt(0)
        v_cmp_{cmp}_u32 vcc, {val}, v{vtmp}
        s_nop 4
        s_cbranch_vccz {N}_cb{i}
        s_sleep {sleep}
        s_branch {N}_cx{i}""")
        return pre, post
    def g_wait(vaddr, val, vtmp, sleep, mask=1, base=4):
        i = uid[0]; uid[0] += 1
        a("s_mov_b32 s71, 0")
        a(f"s_mov_b32 s3, {val}")
        a(f"s_mov_b64 exec, {mask}")
        a.label(f"{N}_gw{i}")
        a(f"""
        global_load_dword v{vtmp}, v{vaddr}, s[{base}:{base+1}] sc1
        s_add_u32 s71, s71, 1
        s_waitcnt vmcnt(0)
        v_cmp_gt_u32 s[84:85], s3, v{vtmp}
        s_nop 1
        s_cmp_eq_u64 s[84:85], 0
        s_cbranch_scc0 {N}_gx{i}
        """)
        a.label(f"{N}_gy{i}")
        a("s_mov_b64 exec, -1")
        late.append(f"""{N}_gx{i}:
        s_cmp_ge_u32 s71, {LIM}
        s_cbranch_scc1 {N}_gy{i}
        s_sleep {sleep}
        s_branch {N}_gw{i}""")
    def s_wait(soff, val, sleep):
        i = uid[0]; uid[0] += 1
        a("s_mov_b32 s71, 0")
        a.label(f"{N}_sw{i}")
        a(f"""
        s_load_dword s3, s[4:5], s{soff} glc
        s_add_u32 s71, s71, 1
        s_waitcnt lgkmcnt(0)
        s_cmp_ge_u32 s3, {val}
        s_cbranch_scc0 {N}_sx{i}
        """)
        a.label(f"{N}_sy{i}")
        late.append(f"""{N}_sx{i}:
        s_cmp_ge_u32 s71, {LIM}
        s_cbranch_scc1 {N}_sy{i}
        s_sleep {sleep}
        s_branch {N}_sw{i}""")
    def zload(v):
        a(f"v_mov_b32 v{v}, 0")
        a(f"global_load_dword v{v}, v{v}, s[78:79] sc1")
    def publish(vz, vt, soff, mask=1, lane_stride=None):
        i = uid[0]; uid[0] += 1
        a(f"""
        s_mov_b64 exec, -1
        s_waitcnt vmcnt(0)
        v_readfirstlane_b32 s3, v{vz}
        v_mov_b32 v{vz}, 0
        s_cmp_lg_u32 s3, 0
        s_cbranch_scc1 {N}_zk{i}
        """)
        g_wait(vz, 1, vt, 2, base=78)
        a.label(f"{N}_zk{i}")
        if lane_stride is None: a(f"v_mov_b32 v{vt}, s{soff}")
        else:
            a(f"v_and_b32 v{vt}, 63, v0")
            a(f"v_lshl_add_u32 v{vt}, v{vt}, {lane_stride}, s{soff}")
        a(f"""
        v_mov_b32 v{vz}, 1
        s_mov_b64 exec, {mask}
        global_atomic_add v{vt}, v{vz}, s[4:5] sc1
        """)
    def lds_inc(vaddr, vone, off):
        a("s_mov_b64 exec, 1")
        a(f"ds_add_u32 v{vaddr}, v{vone} offset:{off}")
        a("s_mov_b64 exec, -1")
    def ln_fin(A0):
        a("s_nop 2")
        a(f"v_add_f32 v{A0}, v{A0}, v{A0+1}")
        a(f"v_add_f32 v{A0+2}, v{A0+2}, v{A0+3}")
        for dpp in ("quad_perm:[1,0,3,2]", "quad_perm:[2,3,0,1]", "row_half_mirror"):
            a("s_nop 0")
            a(f"v_add_f32_dpp v{A0}, v{A0}, v{A0} {dpp} row_mask:0xf bank_mask:0xf")
            a(f"v_add_f32_dpp v{A0+2}, v{A0+2}, v{A0+2} {dpp} row_mask:0xf bank_mask:0xf")
        ln_stats(a, A0, A0 + 2, A0 + 1, 61, 62)
        a(f"v_mul_f32 v{A0}, -v{A0}, v{A0+2}")
        a(f"v_mov_b32 v{A0+3}, v{A0+2}")
        a(f"v_mov_b32 v{A0+1}, v{A0}")
    def ln_sums(X, A0, waits):
        for i in range(4): a(f"v_mov_b32 v{A0+i}, 0")
        for i in range(40):
            if i % 4 == 0: a(waits(i // 4))
            a(f"v_dot2_f32_bf16 v{A0+(i&1)}, v{X+i}, s60, v{A0+(i&1)}")
            a(f"v_dot2_f32_bf16 v{A0+2+(i&1)}, v{X+i}, v{X+i}, v{A0+2+(i&1)}")
        ln_fin(A0)
    def ln_norm(X, A0, U, regs):
        for i in regs:
            u = U + 2 * (i & 3)
            a(f"v_lshlrev_b32 v{u}, 16, v{X+i}")
            a(f"v_and_b32 v{u+1}, 0xffff0000, v{X+i}")
            a(f"v_pk_fma_f32 {vr(u,2)}, {vr(u,2)}, {vr(A0+2,2)}, {vr(A0,2)}")
            a(f"v_cvt_pk_bf16_f32 v{X+i}, v{u}, v{u+1}")
    def ln_pass(X, A0, U, waits):
        ln_sums(X, A0, waits); ln_norm(X, A0, U, range(40))
    def row_addr(d, t, srow):
        a(f"""
        v_bfe_u32 v{t}, v0, 3, 3
        s_lshl_b32 s7, s{srow}, 3
        v_add_u32 v{t}, s7, v{t}
        v_and_b32 v{t+1}, 7, v0
        v_and_b32 v{d}, 15, v{t}
        v_xor_b32 v{t+1}, v{t+1}, v{d}
        v_mul_u32_u24 v{t}, 1280, v{t}
        v_add_u32 v{t}, {XN}, v{t}
        v_lshl_add_u32 v{d}, v{t+1}, 4, v{t}
        v_xor_b32 v{t+1}, 8, v{t+1}
        v_lshl_add_u32 v{d+1}, v{t+1}, 4, v{t}
        """)
    def frag_addr(AX, t):
        a(f"""
        v_and_b32 v{t}, 31, v0
        v_bfe_u32 v{t+1}, v0, 5, 1
        v_and_b32 v{t+2}, 15, v0
        v_xor_b32 v{t+1}, v{t+1}, v{t+2}
        v_mul_u32_u24 v{t}, 1280, v{t}
        v_add_u32 v{t}, {XN}, v{t}
        """)
        for j in range(8):
            a(f"v_xor_b32 v{AX+j}, {2*j}, v{t+1}")
            a(f"v_lshl_add_u32 v{AX+j}, v{AX+j}, 4, v{t}")
    def tr_addr(d, t, pitch):
        a(f"""
        v_bfe_u32 v{t}, v0, 2, 2
        v_bfe_u32 v{t+1}, v0, 5, 1
        v_lshl_add_u32 v{t}, v{t+1}, 3, v{t}
        v_mul_u32_u24 v{d}, {pitch}, v{t}
        v_bfe_u32 v{t}, v0, 4, 1
        v_lshl_add_u32 v{d}, v{t}, 5, v{d}
        v_and_b32 v{t}, 3, v0
        v_lshl_add_u32 v{d}, v{t}, 3, v{d}
        """)

    a.label(N)
    a(f"""
    s_cmp_ge_u32 s2, 256
    s_cbranch_scc1 {N}_end
    s_getpc_b64 s[20:21]
    s_lshr_b32 s7, s2, 3
    s_lshl_b32 s7, s7, 7
    v_lshl_add_u32 v1, v0, 12, s7
    v_cmp_gt_u32 vcc, code_end-{N}-64, v1
    s_nop 0
    s_and_saveexec_b64 s[22:23], vcc
    s_cbranch_execz {N}_npc
    global_load_dword v167, v1, s[20:21]
    """)
    a.label(f"{N}_npc")
    a(f"""
    s_mov_b64 exec, s[22:23]
    s_load_dwordx4 s[56:59], s[0:1], 0
    s_load_dwordx2 s[4:5], s[0:1], 96
    s_load_dwordx4 s[80:83], s[0:1], 16
    s_load_dwordx4 s[40:43], s[0:1], 48
    s_load_dwordx2 s[44:45], s[0:1], 32
    s_load_dwordx2 s[76:77], s[0:1], 64
    s_load_dwordx4 s[72:75], s[0:1], 72
    s_load_dwordx2 s[78:79], s[0:1], 88
    v_lshrrev_b32 v1, 6, v0
    s_and_b32 s46, s2, 7
    v_readfirstlane_b32 s6, v1
    """)
    X_, WQ_, W2_ = 56, 58, 76
    if probe: a("s_memrealtime s[86:87]")
    def mark(k, v=None):
        if probe == k:
            a("s_memrealtime s[88:89]")
            if v is not None:
                a(f"""
                s_waitcnt lgkmcnt(0)
                s_sub_u32 s88, s88, s86
                v_mov_b32 v{v}, s88
                v_mov_b32 v{v+1}, {LWORD}
                ds_write_b32 v{v+1}, v{v} offset:200
                s_waitcnt lgkmcnt(0)
                """)
    def spin():
        if not probe: return
        i = uid[0]; uid[0] += 1
        a(f"""
        s_cmp_lg_u32 s2, 9
        s_cbranch_scc1 {N}_sx{i}
        s_waitcnt vmcnt(0) lgkmcnt(0)
        s_memrealtime s[90:91]
        s_sub_u32 s88, s88, s86
        """)
        if probe > 5:
            a(f"""
            v_mov_b32 v1, {LWORD}
            ds_read_b32 v1, v1 offset:200
            s_waitcnt lgkmcnt(0)
            v_readfirstlane_b32 s88, v1
            s_nop 1
            """)
        a(f"""
        s_min_u32 s88, s88, 20000
        s_lshl_b32 s88, s88, 2
        s_waitcnt lgkmcnt(0)
        """)
        a.label(f"{N}_sp{i}")
        a(f"""
        s_memrealtime s[92:93]
        s_waitcnt lgkmcnt(0)
        s_sub_u32 s92, s92, s90
        s_cmp_lt_u32 s92, s88
        s_cbranch_scc1 {N}_sp{i}
        """)
        a.label(f"{N}_sx{i}")
    if stamp: stamp_begin(a)
    a(f"""
    s_bfe_u32 s47, s2, 0x20003
    s_lshr_b32 s49, s2, 5
    s_lshl_b32 s7, s46, 3
    s_add_u32 s49, s49, s7
    s_lshr_b32 s48, s49, 1
    s_mov_b32 s60, 0x3f803f80
    s_mov_b32 s61, {hex(f2u(1.0/640))}
    s_mov_b32 s62, {hex(f2u(1e-5))}
    s_mov_b32 s70, s6
    s_cmp_eq_u32 s6, 8
    s_cbranch_scc1 {N}_w8
    s_cmp_ge_u32 s6, 4
    s_cbranch_scc1 {N}_stg
    """)
    X = 64; A0 = 136; U = 10; AX = 24; AW = 20; XF = 32; WF = 104; AC = (152, 48)
    a(f"""
    s_setprio {cprio}
    v_bfe_u32 v8, v0, 3, 3
    v_and_b32 v9, 7, v0
    v_mul_u32_u24 v8, 1280, v8
    v_lshl_add_u32 v8, v9, 4, v8
    s_lshl_b32 s7, s49, 2
    s_add_u32 s7, s7, s6
    s_mul_i32 s20, s7, 10240
    s_waitcnt lgkmcnt(0)
    """)
    srd(a, 12, X_, X_ + 1, 0, 2048 * 1280)
    for i in range(10):
        a(f"buffer_load_dwordx4 {vr(X+4*i,4)}, v8, s[12:15], s20 offen offset:{i*128}{xmod}")
    a("s_barrier")
    mark(10, 150)
    S = dict(attn.SREG)
    attn.setup(a, S, LWORD)
    PD = attn.V_PADDR; ON = attn.V_ONE
    row_addr(22, 8, 6)
    frag_addr(AX, 8)
    tr_addr(AW, 8, 320)
    a(f"""
    s_mul_i32 s7, s6, 80
    s_add_u32 s7, s7, {WR}
    v_add_u32 v{AW}, s7, v{AW}
    v_add_u32 v{AW+1}, {3*WSL}, v{AW}
    """)
    ln_pass(X, A0, U, lambda i: f"s_waitcnt vmcnt({9-i})")
    for i in range(10):
        a(f"ds_write_b128 v{22+(i&1)}, {vr(X+4*i,4)} offset:{(i>>1)*256}")
    a("s_waitcnt lgkmcnt(0)")
    lds_inc(PD, ON, W_XN)
    mark(6, 150)
    def h_part():
        t = 140
        a(f"""
        s_lshl_b32 s7, s49, 2
        s_add_u32 s7, s7, s6
        s_mul_i32 s24, s7, 10240
        s_add_u32 s24, s24, {HF_OFF}
        """)
        ln_sums(X, A0, lambda i: "")
        for hg, (g0, n) in enumerate(((0, 2), (2, 2), (4, 3), (7, 3))):
            pitch = 128 * n + 64
            base = HST if n == 2 else 0
            if hg < 3:
                a(f"s_cmp_lg_u32 s47, {hg}")
                a(f"s_cbranch_scc1 {N}_hv{hg+1}")
            a(f"""
            s_mul_i32 s7, s6, {8*pitch}
            s_add_u32 s7, s7, {base}
            v_bfe_u32 v{t}, v0, 3, 3
            v_and_b32 v{t+1}, 7, v0
            v_mul_u32_u24 v{t}, {pitch}, v{t}
            v_lshl_add_u32 v{t}, v{t+1}, 4, v{t}
            v_add_u32 v{t}, s7, v{t}
            v_bfe_u32 v{t+1}, v0, 2, 2
            v_mul_u32_u24 v{t+1}, {pitch}, v{t+1}
            v_bfe_u32 v{t+2}, v0, 4, 2
            v_lshl_add_u32 v{t+1}, v{t+2}, 5, v{t+1}
            v_and_b32 v{t+2}, 3, v0
            v_lshl_add_u32 v{t+1}, v{t+2}, 3, v{t+1}
            v_add_u32 v{t+1}, s7, v{t+1}
            s_add_u32 s24, s24, {g0*1024}
            """)
            for i in range(n):
                ln_norm(X, A0, U, range(4 * (g0 + i), 4 * (g0 + i) + 4))
                a(f"ds_write_b128 v{t}, {vr(X+4*(g0+i),4)} offset:{i*128}")
            a("s_waitcnt lgkmcnt(0)")
            for i in range(n):
                a(f"ds_read_b64_tr_b16 {vr(X+4*(g0+i),2)}, v{t+1} offset:{i*128}")
                a(f"ds_read_b64_tr_b16 {vr(X+4*(g0+i)+2,2)}, v{t+1} offset:{i*128+4*pitch}")
            for i in range(n):
                a(f"s_waitcnt lgkmcnt({2*(n-1-i)})")
                a(f"buffer_store_dwordx4 {vr(X+4*(g0+i),4)}, v{attn.V_L16}, s[8:11], s24 offen offset:{i*1024} sc1")
            if hg < 3:
                a(f"s_branch {N}_hz")
                a.label(f"{N}_hv{hg+1}")
        a.label(f"{N}_hz")
        if sent:
            for i in range(4): a(f"v_mov_b32 v{U+i}, -1")
            a(f"""
            buffer_store_dwordx4 {vr(U,4)}, v{attn.V_T0+3}, s[8:11], s{S['oo']} offen sc1
            s_add_u32 s7, s{S['oo']}, {2*32768}
            buffer_store_dwordx4 {vr(U,4)}, v{attn.V_T0+3}, s[8:11], s7 offen sc1
            s_add_u32 s7, s{S['oo']}, {4*32768}
            s_mov_b32 exec_hi, 0
            buffer_store_dwordx4 {vr(U,4)}, v{attn.V_T0+3}, s[8:11], s7 offen sc1
            s_mov_b32 exec_hi, -1
            """)
    if hmode == 2 and not hat: h_part()
    if hmode == 1:
        a(f"""
        s_cmp_lg_u32 s6, s47
        s_cbranch_scc1 {N}_nh
        s_lshl_b32 s7, s49, 2
        s_add_u32 s7, s7, s47
        s_mul_i32 s24, s7, 10240
        s_add_u32 s24, s24, {HF_OFF}
        """)
        if dbg not in (1, 3):
            ln_pass(X, A0, U, lambda i: "")
            transpose_tail(a, X - 8, 8, 24, HST, store_mod=" sc1")
        a.label(f"{N}_nh")
    if stamp and qs == 2: stamp_mid(a, 3)
    lds_wait(PD, W_XN, "gt", 4, 8, 1)
    def qrd(ks):
        c, k = ks >> 2, ks & 3
        sl = c & 3
        L = [f"ds_read_b128 {vr(XF+4*k,4)}, v{AX+(ks&7)} offset:{(ks>>3)*256}"]
        for b in range(2):
            for t in range(2):
                L.append(f"ds_read_b64_tr_b16 {vr(WF+8*k+4*b+2*t,2)}, v{AW+(sl==3)} offset:{(sl%3)*WSL+(16*k+4*t)*320+64*b}")
        return L
    lds_wait(PD, W_LW, "gt", 1 if st1 else 4, 8, 1)
    for ks in range(la):
        for x in qrd(ks): a(x)
    for ks in range(40):
        c, k = ks >> 2, ks & 3
        a(f"s_waitcnt lgkmcnt({5 if (k == 4 - la and c < 9) else 5*min(la-1, 39-ks)})")
        chk = None
        if k == 4 - la and c < 9:
            chk = lds_check(PD, W_LW + 4 * (c + 1), "gt", 1 if st1 else 4, 8, 1)
            a(chk[0][0])
        if k == 0 and c > 0 and c < 7: lds_inc(PD, ON, W_CW + 4 * (c - 1))
        if k == 0 and c == look + 1 and look >= 6: lds_inc(PD, ON, W_CW + 4 * (c - 1))
        if stamp and qs == 4 and ks == 16: stamp_mid(a, 3)
        if hmode == 2 and hat and ks == hat: h_part()
        if hmode == 2 and ks == hks + hat:
            a("s_waitcnt vmcnt(0)")
            lds_inc(PD, ON, W_HD)
        if hmode == 1 and ks == hks:
            a(f"""
            s_cmp_lg_u32 s6, s47
            s_cbranch_scc1 {N}_nh2
            s_waitcnt vmcnt(0)
            """)
            lds_inc(PD, ON, W_HD)
            a.label(f"{N}_nh2")
        fill = qrd(ks + la) if ks + la < 40 else []
        if k == 3 - la and c < 9: fill = [f"ds_read_b32 v8, v{PD} offset:{W_LW + 4 * (c + 1)}"] + fill
        for b in range(2):
            a(mfma32(AC[b], WF + 8 * k + 4 * b, XF + 4 * k, AC[b] if ks else None))
            if chk and b == 0:
                a("s_nop 3")
                for x in chk[1]: a(x)
            for x in fill[3 * b:3 * b + 3]: a(x)
    lds_inc(PD, ON, W_QD)
    mark(7, 150)
    if stamp and qs == 0: stamp_mid(a, 3)
    QA0, QB0, QA1, QB1 = attn.QA0, attn.QB0, attn.QA1, attn.QB1
    a(f"v_mov_b32 v22, {hex(f2u(QSCALE))}")
    a(f"v_mov_b32 v23, {hex(f2u(QSCALE))}")
    a("s_nop 7")
    Y, Z = 32, 34
    for (d, r) in ((QA0, AC[0]), (QA0 + 2, AC[0] + 4), (QA1, AC[0] + 8), (Y, AC[0] + 12), (Z, AC[1])):
        a(f"v_pk_mul_f32 {vr(r,2)}, {vr(r,2)}, v[22:23]")
        a(f"v_pk_mul_f32 {vr(r+2,2)}, {vr(r+2,2)}, v[22:23]")
        a(f"v_cvt_pk_bf16_f32 v{d}, v{r}, v{r+1}")
        a(f"v_cvt_pk_bf16_f32 v{d+1}, v{r+2}, v{r+3}")
    a("s_nop 1")
    for i in range(2):
        a(f"v_permlane32_swap_b32 v{QB0+i}, v{Y+i}")
        a(f"v_permlane32_swap_b32 v{QB0+2+i}, v{Z+i}")
    a("s_nop 1")
    for i in range(2):
        a(f"v_permlane32_swap_b32 v{QA1+i}, v{QB0+i}")
        a(f"v_permlane32_swap_b32 v{Y+i}, v{QB0+2+i}")
        a(f"v_permlane32_swap_b32 v{Z+i}, v{QB1+i}")
    a("s_nop 0")
    for r in (QA1, QA1 + 1, QB1, QB1 + 1):
        a(f"v_cndmask_b32_e64 v{r}, v{r}, 0, s[22:23]")
    if stamp: stamp_mid(a, 2)
    attn.bound(a, S, N, lambda: lds_wait(PD, W_LAND, "gt", 1, attn.V_POLL, 1))
    a("s_setprio 0")
    if stamp: stamp_mid(a, 0)
    mark(8, 150)
    attn.main(a, S, N, **akw)
    mark(9, 150)
    if stamp: stamp_mid(a, 1)
    attn.epilogue(a, S, signal=2 if sent else 1)
    if akw.get("clk"):
        a(f"""
        s_mov_b64 exec, 1
        s_mul_i32 s36, s2, 4
        s_add_u32 s36, s36, s70
        s_lshl_b32 s36, s36, 6
        s_add_u32 s36, s36, {WS_END - 4*65536}
        v_mov_b32 v8, 0
        """)
        for i, r in enumerate((34, 35, 32, 33, 30, 31, 28, 29, 24, 25)):
            a(f"v_mov_b32 v9, s{r}")
            a(f"buffer_store_dword v9, v8, s[8:11], s36 offen offset:{4*i}")
    if stamp: stamp_end(a, 8, 70, 0, nw=8)
    a("s_endpgm")
    attn.tails(a, S, N)

    a.label(f"{N}_stg")
    a(f"""
    s_sub_u32 s6, s6, 4
    v_and_b32 v1, 63, v0
    """)
    for i in range(5):
        a(f"""
        v_add_u32 v2, {64*i}, v1
        v_mul_u32_u24 v3, 3277, v2
        v_lshrrev_b32 v3, 16, v3
        v_mul_u32_u24 v3, {1280 - 320}, v3
        v_lshl_add_u32 v{8+i}, v2, 4, v3
        """)
        if 0 < i < 4: a(f"v_subrev_u32 v{8+i}, {1024*i}, v{8+i}")
    a(f"""
    s_mul_i32 s20, s6, {16*1280}
    s_mul_i32 s7, s47, 320
    s_add_u32 s20, s20, s7
    s_mul_i32 s21, s6, 5120
    s_add_u32 s21, s21, {WR}
    v_mov_b32 v1, {LWORD}
    v_mov_b32 v2, 1
    s_waitcnt lgkmcnt(0)
    """)
    srd(a, 12, WQ_, WQ_ + 1, 0, 640 * 1280)
    def wiss(c):
        a(f"s_add_u32 m0, s21, {(c&3)*WSL}")
        a("s_nop 0")
        for i in range(4):
            a(f"buffer_load_dwordx4 v{8+i}, s[12:15], s20 offen offset:{i*1024} lds")
        a(f"s_add_u32 m0, s21, {(c&3)*WSL + 4096}")
        a("s_nop 0")
        a(f"buffer_load_dwordx4 v12, s[12:15], s20 offen lds")
        a(f"s_add_u32 s20, s20, {64*1280}")
    def wpub(c, left):
        a(f"s_waitcnt vmcnt({left})")
        lds_inc(1, 2, W_LW + 4 * c)
    if st1:
        assert not usent
        a(f"""
        s_add_u32 s6, s6, {rot}
        s_and_b32 s6, s6, 3
        s_mul_i32 s20, s6, {64*1280}
        s_mul_i32 s7, s47, 320
        s_add_u32 s20, s20, s7
        s_mul_i32 s21, s6, {WSL}
        s_add_u32 s21, s21, {WR}
        s_lshl_b32 s7, s6, 2
        v_add_u32 v1, s7, v1
        s_barrier
        """)
        for r in range(3):
            if r == 2:
                a("s_cmp_ge_u32 s6, 2")
                a(f"s_cbranch_scc1 {N}_{'pf6' if pfw == 6 else 'g'}")
                late.append(f"""{N}_pf6:
                s_mov_b32 s24, s40
                s_and_b32 s25, s41, 0xffff
                s_mov_b32 s26, {2048*3456}
                s_mov_b32 s27, 0x20000
                s_lshl_b32 s7, s2, 1
                s_add_u32 s7, s7, s6
                s_sub_u32 s7, s7, 2
                s_mul_i32 s7, s7, {4*3456}
                v_and_b32 v2, 63, v0
                v_min_u32 v2, 53, v2
                v_lshlrev_b32 v2, 7, v2
                buffer_load_dword v4, v2, s[24:27], s7 offen
                s_add_u32 s7, s7, {54*128}
                buffer_load_dword v4, v2, s[24:27], s7 offen
                s_branch {N}_g""")
            if r: lds_wait(1, W_CW + 16 * (r - 1), "gt", 4, 3, 1)
            for q in range(4):
                a(f"s_add_u32 m0, s21, {q*5120}")
                a("s_nop 0")
                for i in range(4):
                    a(f"buffer_load_dwordx4 v{8+i}, s[12:15], s20 offen offset:{i*1024}{wmod} lds")
                a(f"s_add_u32 m0, s21, {q*5120 + 4096}")
                a("s_nop 0")
                a(f"buffer_load_dwordx4 v12, s[12:15], s20 offen{wmod} lds")
                a(f"s_add_u32 s20, s20, {16*1280}")
            a(f"s_add_u32 s20, s20, {192*1280}")
            a("s_waitcnt vmcnt(0)")
            lds_inc(1, 2, W_LW + 16 * r)
            if stamp and sm == 5 and r < 2: stamp_mid(a, 2 + r)
    else:
        a("s_barrier")
        if pub0:
            wiss(0); wiss(1); wiss(2); wpub(0, 10); wiss(3)
        else:
            for c in range(4): wiss(c)
        if usent:
            srd(a, 16, 4, 5, 0, WS_END)
            a(f"""
            s_lshr_b32 s25, s2, 5
            s_lshr_b32 s26, s46, 1
            s_mul_i32 s26, s26, 7
            s_add_u32 s26, s26, s25
            s_and_b32 s25, s25, 7
            s_cmp_eq_u32 s25, 7
            s_cselect_b32 s26, 27, s26
            s_cmp_ge_u32 s26, 27
            s_cselect_b32 s27, 0x40000000, 0
            s_and_b32 s25, s46, 1
            s_lshl_b32 s25, s25, 2
            s_add_u32 s25, s25, s47          ; db
            s_lshl_b32 s26, s26, 2
            s_add_u32 s26, s26, s6
            s_mul_i32 s26, s26, 20480
            s_mul_i32 s25, s25, 1280
            s_add_u32 s26, s26, s25
            s_add_u32 s26, s26, {UF_OFF}
            s_add_u32 s26, s26, s27
            v_and_b32 v14, 31, v0
            v_lshlrev_b32 v14, 4, v14
            v_bfe_u32 v15, v0, 5, 1
            v_mul_u32_u24 v15, 10240, v15
            v_add_u32 v14, v14, v15
            v_mov_b32 v16, -1
            v_mov_b32 v17, -1
            v_mov_b32 v18, -1
            v_mov_b32 v19, -1
            buffer_store_dwordx4 v[16:19], v14, s[16:19], s26 offen sc1
            buffer_store_dwordx4 v[16:19], v14, s[16:19], s26 offen offset:512 sc1
            s_mov_b32 exec_lo, 0xffff
            s_mov_b32 exec_hi, 0xffff
            buffer_store_dwordx4 v[16:19], v14, s[16:19], s26 offen offset:1024 sc1
            s_mov_b64 exec, -1
            """)
        if stamp and sm == 6: stamp_mid(a, 2)
        for c in range(1 if pub0 else 0, 4):
            wpub(c, 15 - 5 * c + (3 if usent else 0))
            if stamp and sm == 6 and c == 0: stamp_mid(a, 3)
        if stamp and sm == 5: stamp_mid(a, 2)
        if usent:
            a("s_waitcnt vmcnt(0)")
            lds_inc(1, 2, W_HD)
        for c in range(4, 10):
            if dbg != 3: lds_wait(1, W_CW + 4 * (c - 4), "gt", 4, 3, 1)
            if stamp and sm == 7 and c == 4: stamp_mid(a, 2)
            wiss(c)
            if stamp and sm == 7 and c == 7: stamp_mid(a, 3)
            if c >= 6: wpub(c - 2, 10)
        wpub(8, 5); wpub(9, 0)
        if stamp and sm == 5: stamp_mid(a, 3)
    a(f"s_branch {N}_g")

    a.label(f"{N}_w8")
    a(f"""
    s_setprio {w8prio}
    v_and_b32 v1, 63, v0
    v_lshlrev_b32 v2, 2, v1
    v_add_u32 v2, {LWORD}, v2
    v_mov_b32 v4, 0
    v_mov_b32 v5, 0
    v_mov_b32 v6, 0
    v_mov_b32 v7, 0
    ds_write_b32 v2, v4
    v_lshlrev_b32 v1, 4, v1
    s_waitcnt lgkmcnt(0)
    s_barrier
    """)
    def wdma_kv():
        a(f"""
        s_cmp_ge_u32 s47, 2
        s_cbranch_scc1 {N}_nw
        s_cmp_eq_u32 s47, 0
        s_cselect_b32 s12, s80, s82
        s_cselect_b32 s13, s81, s83
        s_and_b32 s13, s13, 0xffff
        s_mov_b32 s14, 25600
        s_mov_b32 s15, 0x20000
        s_mov_b32 s7, 0
        """)
        for h in range(7):
            a(f"s_mov_b32 m0, {h*4096}")
            a("s_nop 0")
            for i in range(4 if h < 6 else 1):
                a(f"buffer_load_dwordx4 v1, s[12:15], s7 offen offset:{i*1024} lds")
            a("s_add_u32 s7, s7, 4096")
        a.label(f"{N}_nw")
    if wfirst: wdma_kv()
    if pfq:
        srd(a, 12, WQ_, WQ_ + 1, 0, 640 * 1280)
        a(f"""
        s_lshr_b32 s7, s2, 3
        s_mul_i32 s7, s7, {12*1280}
        s_add_u32 s7, s7, {256*1280}
        v_lshrrev_b32 v2, 4, v1
        v_min_u32 v2, 59, v2
        v_lshlrev_b32 v2, 7, v2
        buffer_load_dword v127, v2, s[12:15], s7 offen{pfm}
        s_add_u32 s7, s7, {60*128}
        buffer_load_dword v127, v2, s[12:15], s7 offen{pfm}
        """)
    srd(a, 8, 4, 5, 0, WS_END)
    a(f"""
    s_cmp_lg_u32 s2, 24
    s_cbranch_scc1 {N}_nz
    s_mov_b32 s20, {FL_OFF}
    """)
    for i in range(16):
        a(f"buffer_store_dwordx4 v[4:7], v1, s[8:11], s20 offen offset:{(i&3)*1024} sc1")
        if i & 3 == 3: a("s_add_u32 s20, s20, 4096")
    a(f"""
    v_mov_b32 v2, 1
    s_waitcnt vmcnt(0)
    s_mov_b64 exec, 1
    global_store_dword v4, v2, s[78:79] sc1
    s_mov_b64 exec, -1
    """)
    a.label(f"{N}_nz")
    if not wfirst: wdma_kv()
    def pf_w1(cond=None):
        i_ = uid[0]; uid[0] += 1
        if cond:
            a(f"s_cmp_{cond}_u32 s2, {pfn0}")
            a(f"s_cbranch_scc0 {N}_pw{i_}")
        srd(a, 24, 40, 41, 0, 2048 * 3456)
        if pfc:
            a(f"""
            s_lshr_b32 s7, s2, 3
            s_mul_i32 s7, s7, {64*3456}
            s_lshr_b32 s3, s46, 1
            s_mul_i32 s3, s3, 896
            s_add_u32 s7, s7, s3
            v_and_b32 v2, 63, v0
            v_mul_u32_u24 v2, 3456, v2
            """)
            for i in range(7):
                a(f"buffer_load_dword v127, v2, s[24:27], s7 offen offset:{i*128}{pfm}")
            a.label(f"{N}_pw{i_}")
            return
        a(f"""
        s_mul_i32 s7, s2, {8*3456}
        v_and_b32 v2, 63, v0
        v_min_u32 v2, 53, v2
        v_lshlrev_b32 v2, 7, v2
        """)
        if bal:
            a(f"""
            s_cmp_lt_u32 s47, 2
            s_cbranch_scc1 {N}_pw{i_}
            s_lshr_b32 s7, s2, 5
            s_lshl_b32 s7, s7, 4
            s_and_b32 s3, s2, 15
            s_add_u32 s7, s7, s3
            s_mul_i32 s7, s7, {16*3456}
            """)
        for i in range(8 if bal else 4):
            a(f"buffer_load_dword v127, v2, s[24:27], s7 offen{pfm}")
            a(f"s_add_u32 s7, s7, {54*128}")
        a.label(f"{N}_pw{i_}")
    npf = 0
    if pfw == 0:
        pf_w1(); npf = 7 if pfc else 0 if bal else 4
    elif pfn0:
        pf_w1("lt")
    T = 10; AX = 16; AW = 24; XF = 28; WF = 44; ACC = 64; PK = 80; SX = 90; ZV = 92
    frag_addr(AX, T); tr_addr(AW, T, 40); row_addr(26, T, 47)
    a(f"""
    v_mov_b32 v3, {LWORD}
    v_mov_b32 v5, 1
    v_and_b32 v{T+3}, 31, v0
    v_bfe_u32 v{T+4}, v0, 5, 1
    s_waitcnt vmcnt({npf + (2 if (pfq and wfirst) else 0)})
    """)
    if pfw == 5:
        lds_wait(3, W_LW + 4, "gt", 4, 4, 2)
        pf_w1()
    lds_wait(3, W_XN, "gt", 4, 4, 2)
    if pfw == 4: pf_w1()
    a(f"""
    s_cmp_ge_u32 s47, {0 if dbg in (1,2,3) else 2}
    s_cbranch_scc1 {N}_h
    """)
    def krd(ks):
        k = ks & 3
        return [f"ds_read_b128 {vr(XF+4*k,4)}, v{AX+(ks&7)} offset:{(ks>>3)*256}"] + \
               [f"ds_read_b64_tr_b16 {vr(WF+4*k+2*t,2)}, v{AW} offset:{(16*ks+4*t)*40}" for t in range(2)]
    for ks in range(3):
        for x in krd(ks): a(x)
    for ks in range(40):
        a(f"s_waitcnt lgkmcnt({3*min(2, 39-ks)})")
        a(mfma32(ACC, WF + 4 * (ks & 3), XF + 4 * (ks & 3), ACC if ks else None))
        if ks + 3 < 40:
            for x in krd(ks + 3): a(x)
    a(f"""
    s_mul_i32 s20, s49, {TILE_B}
    s_add_u32 s20, s20, {KV_OFF}
    v_cmp_eq_u32 vcc, 1, v{T+4}
    s_nop 7
    s_nop 1
    """)
    for i in range(6): a(f"v_cvt_pk_bf16_f32 v{PK+i}, v{ACC+2*i}, v{ACC+2*i+1}")
    a(f"""
    s_cmp_eq_u32 s47, 1
    s_cbranch_scc1 {N}_v
    buffer_store_dwordx4 {vr(PK,4)}, v1, s[8:11], s20 offen sc1
    v_cndmask_b32_e64 v{PK+4}, v{PK+4}, 0, vcc
    v_cndmask_b32_e64 v{PK+5}, v{PK+5}, 0, vcc
    v_lshlrev_b32 v{T+1}, 3, v{T+3}
    s_mov_b32 exec_hi, 0
    buffer_store_dwordx2 {vr(PK+4,2)}, v{T+1}, s[8:11], s20 offen offset:{K1_OFF_T} sc1
    s_mov_b32 exec_hi, -1
    v_dot2_f32_bf16 v{SX}, v{PK}, v{PK}, 0
    """)
    for i in range(1, 6): a(f"v_dot2_f32_bf16 v{SX}, v{PK+i}, v{PK+i}, v{SX}")
    a("s_nop 2")
    half_sum(a, SX, T)
    def wavemax(r, t, full):
        for k in (8, 4, 2, 1):
            a("s_nop 1")
            a(f"v_max_f32_dpp v{r}, v{r}, v{r} row_ror:{k} row_mask:0xf bank_mask:0xf")
        for sw in ("v_permlane16_swap_b32", "v_permlane32_swap_b32")[:2 if full else 1]:
            a(f"""
            v_mov_b32 v{t}, v{r}
            s_nop 1
            {sw} v{r}, v{t}
            s_nop 1
            v_max_f32 v{r}, v{r}, v{t}
            """)
    wavemax(SX, T, False)
    a(f"""
    s_lshl_b32 s21, s49, 2
    s_add_u32 s21, s21, {KM_OFF}
    v_mov_b32 v{T}, 0
    s_mov_b64 exec, 1
    buffer_store_dword v{SX}, v{T}, s[8:11], s21 offen sc1
    s_mov_b64 exec, -1
    s_branch {N}_h
    """)
    a.label(f"{N}_v")
    a(f"""
    v_lshlrev_b32 v{T}, 6, v{T+3}
    v_lshl_add_u32 v{T}, v{T+4}, 3, v{T}
    ds_write_b64 v{T}, {vr(PK,2)} offset:{VST}
    ds_write_b64 v{T}, {vr(PK+2,2)} offset:{VST+16}
    ds_write_b64 v{T}, {vr(PK+4,2)} offset:{VST+32}
    v_bfe_u32 v{T}, v0, 2, 2
    v_lshl_add_u32 v{T}, v{T+4}, 2, v{T}
    v_lshlrev_b32 v{T}, 6, v{T}
    v_bfe_u32 v{T+1}, v0, 4, 1
    v_lshl_add_u32 v{T}, v{T+1}, 5, v{T}
    v_and_b32 v{T+1}, 3, v0
    v_lshl_add_u32 v{T}, v{T+1}, 3, v{T}
    s_waitcnt lgkmcnt(0)
    """)
    for t in range(2):
        for u in range(2):
            a(f"ds_read_b64_tr_b16 {vr(PK+4*t+2*u,2)}, v{T} offset:{VST+(16*t+8*u)*64}")
    a(f"""
    v_cmp_eq_u32 vcc, 20, v{T+3}
    v_mov_b32 v{T+1}, s60
    s_nop 0
    v_cndmask_b32_e64 v{T+1}, 0, v{T+1}, vcc
    v_cmp_gt_u32 vcc, 20, v{T+3}
    v_mul_u32_u24 v{T+2}, {V_PLANE}, v{T+4}
    v_lshl_add_u32 v{T+2}, v{T+3}, 4, v{T+2}
    s_waitcnt lgkmcnt(0)
    """)
    for i in range(8): a(f"v_cndmask_b32_e64 v{PK+i}, v{T+1}, v{PK+i}, vcc")
    a(f"""
    v_cmp_eq_u32 vcc, 26, v{T+3}
    v_mov_b32 v{T+1}, 0x3f80
    s_nop 0
    v_cndmask_b32_e64 v{PK}, v{PK}, v{T+1}, vcc
    s_mov_b32 exec_lo, 0x0fffffff
    s_mov_b32 exec_hi, 0x0fffffff
    buffer_store_dwordx4 {vr(PK,4)}, v{T+2}, s[8:11], s20 offen offset:{V_OFF_T} sc1
    buffer_store_dwordx4 {vr(PK+4,4)}, v{T+2}, s[8:11], s20 offen offset:{V_OFF_T+2*V_PLANE} sc1
    s_mov_b64 exec, -1
    """)
    a.label(f"{N}_h")
    if stamp: stamp_mid(a, 2)
    if hmode == 0:
        HX = 40
        for i in range(10):
            a(f"ds_read_b128 {vr(HX+4*i,4)}, v{26+(i&1)} offset:{(i>>1)*256}")
        zload(ZV)
        a(f"""
        s_lshl_b32 s7, s49, 2
        s_add_u32 s7, s7, s47
        s_mul_i32 s21, s7, 10240
        s_add_u32 s21, s21, {HF_OFF}
        """)
        ln_pass(HX, 96, 100, lambda i: f"s_waitcnt lgkmcnt({9-i})")
        transpose_tail(a, 32, 8, 21, HST, store_mod=" sc1")
    else:
        zload(ZV)
        lds_wait(3, W_HD, "gt", (4 if hmode == 2 else 1) + (4 if usent else 0), 4, 2)
    a(f"""
    s_lshr_b32 s7, s49, 2
    s_lshl_b32 s7, s7, 7
    s_add_u32 s7, s7, {FL4_OFF}
    """)
    if stamp: stamp_mid(a, 0)
    publish(ZV, ZV + 1, 7)
    a("s_mov_b64 exec, -1")
    if stamp: stamp_mid(a, 1)
    if pfw == 1: pf_w1('ge' if pfn0 else None)
    a(f"""
    s_setprio {lprio}
    s_add_u32 s8, s4, {KV_OFF}
    s_addc_u32 s9, s5, 0
    s_and_b32 s9, s9, 0xffff
    s_mov_b32 s10, {KV_SZ}
    s_mov_b32 s11, 0x20000
    s_mov_b32 s12, 0
    s_mov_b32 s13, 4                 ; chunk n
    v_lshlrev_b32 v6, 3, v1
    v_add_u32 v6, {FL4_OFF}, v6
    """)
    if master:
        a(f"""
        s_cmp_lg_u32 s2, 24
        s_cbranch_scc1 {N}_nm
        """)
        g_wait(6, 16, 4, msleep, mask=0xffff)
        a(f"""
        v_lshlrev_b32 v6, 3, v1
        v_add_u32 v6, {FL3_OFF}, v6
        s_mov_b32 exec_hi, 0
        global_store_dword v6, v5, s[4:5] sc1
        s_mov_b32 exec_hi, -1
        """)
        a.label(f"{N}_nm")
        a(f"""
        s_lshl_b32 s17, s48, 7
        s_add_u32 s17, s17, {FL3_OFF}
        v_mov_b32 v6, s17
        """)
        if look: lds_wait(3, W_CW + 4 * look, "gt", 1, 4, 4)
        if spoll: s_wait(17, 1, rsleep)
        else: g_wait(6, 1, 4, rsleep)
    else:
        lds_wait(3, W_QD if look == 9 else W_CW + 4 * look, "gt", 1, 4, 4)
        g_wait(6, 16, 4, hsleep, mask=0xffff)
    if stamp: stamp_mid(a, 3)
    def iss(n):
        for h in range(3):
            a(f"s_mov_b32 m0, {n*CHUNK + h*4096}")
            a("s_nop 0")
            for i in range(4):
                a(f"buffer_load_dwordx4 v1, s[8:11], s12 offen offset:{i*1024} sc1 lds")
            a(f"s_add_u32 s12, s12, 4096")
    def pub(n, left):
        a(f"s_waitcnt vmcnt({left})")
        lds_inc(3, 5, W_LAND + 4 * n)
    a(f"""
    v_lshrrev_b32 v6, 2, v1
    v_add_u32 v6, {KM_OFF}, v6
    global_load_dword v7, v6, s[4:5] sc1
    ds_write_b32 v3, v5 offset:{W_GO}
    """)
    iss(0); iss(1)
    a("s_waitcnt vmcnt(24)")
    wavemax(7, 6, True)
    a(f"ds_write_b32 v3, v7 offset:{W_KM}")
    pub(0, 12); pub(1, 0)
    lds_wait(3, W_QD, "gt", 4, 4, 2)
    iss(2); iss(3); pub(2, 12); pub(3, 0)
    if pfw == 2: pf_w1('ge' if pfn0 else None)
    a.label(f"{N}_ld")
    a(f"""
    s_and_b32 s14, s13, 3
    s_add_u32 s15, s14, 1
    s_and_b32 s15, s15, 3
    s_lshl_b32 s15, s15, 2
    s_add_u32 s15, s15, {LWORD}
    v_mov_b32 v2, s15
    s_add_u32 s15, s13, 1
    s_andn2_b32 s15, s15, 3          ; needs 4*(((n-3)>>2)+1)
    """)
    lds_wait(2, W_ARR, "gt", "s15", 4, lsleep)
    a(f"s_mul_i32 s16, s14, {CHUNK}")
    for h in range(3):
        a(f"s_add_u32 m0, s16, {h*4096}")
        a("s_nop 0")
        for i in range(4):
            a(f"buffer_load_dwordx4 v1, s[8:11], s12 offen offset:{i*1024} sc1 lds")
        a(f"s_add_u32 s12, s12, 4096")
    a(f"""
    s_lshl_b32 s14, s14, 2
    s_add_u32 s14, s14, {LWORD}
    v_mov_b32 v2, s14
    s_add_u32 s13, s13, 1
    s_waitcnt vmcnt(0)
    """)
    lds_inc(2, 5, W_LAND)
    def l_mid():
        a(f"""
        s_cmp_lt_u32 s2, 224
        s_cbranch_scc1 {N}_ld_np
        """)
        srd(a, 24, W2_, W2_ + 1, 0, 1728 * 4096)
        a(f"""
        s_sub_u32 s17, s2, 224
        s_mul_i32 s18, s17, {54*4096}
        v_and_b32 v6, 63, v0
        v_lshlrev_b32 v6, 7, v6
        s_mov_b32 s17, 27
        """)
        a.label(f"{N}_pfl")
        a(f"""
        buffer_load_dword v8, v6, s[24:27], s18 offen{pfm2}
        s_add_u32 s18, s18, 8192
        s_sub_u32 s17, s17, 1
        s_cmp_lg_u32 s17, 0
        s_cbranch_scc1 {N}_pfl
        """)
    def l_end():
        srd(a, 24, 4, 5, 0, WS_END)
        a(f"v_mov_b32 v6, {FL_OFF + 384}")
        g_wait(6, 80, 7, 8)
        a(f"ds_write_b32 v3, v5 offset:{W_WK}")
        a(f"""
        s_lshr_b32 s17, s2, 3
        s_and_b32 s20, s17, 7
        s_mul_i32 s17, s17, 25600
        s_add_u32 s17, s17, {WOF_OFF}
        v_and_b32 v6, 63, v0
        v_min_u32 v6, 49, v6
        v_lshlrev_b32 v6, 7, v6
        """)
        for i in range(4):
            a("buffer_load_dword v8, v6, s[24:27], s17 offen")
            a("s_add_u32 s17, s17, 6400")
        a(f"""
        v_and_b32 v6, 15, v0
        v_bfe_u32 v7, v0, 4, 2
        v_mul_u32_u24 v7, 10240, v7
        v_lshl_add_u32 v6, v6, 4, v7
        s_mul_i32 s20, s20, 1280
        s_add_u32 s20, s20, {WOF_OFF}
        """)
        for k in range(8):
            if k in (2, 4, 6):
                c = 13 + (k - 2) // 2
                lds_wait(3, W_ARR + 4 * (c & 3), "gt", 16, 4, lsleep)
            for j in range(5):
                a(f"s_mov_b32 m0, {waddr(k) + j*768}")
                a("s_nop 0")
                a(f"buffer_load_dwordx4 v6, s[24:27], s20 offen offset:{j*256} sc1 lds")
            a(f"s_add_u32 s20, s20, 40960")
        a(f"""
        s_lshl_b32 s17, s48, 7
        s_add_u32 s17, s17, {FL2_OFF}
        v_mov_b32 v6, s17
        """)
        if sent:
            a("s_waitcnt vmcnt(0)")
        else:
            lds_wait(3, W_OP, "gt", 4, 4, 2)
            g_wait(6, 32, 4, osleep)
    a(f"s_cmp_lg_u32 s13, {pf_at if pf2 else 99}")
    a(f"s_cbranch_scc1 {N}_ld_np")
    l_mid()
    a.label(f"{N}_ld_np")
    a(f"""
    s_cmp_lg_u32 s13, 16
    s_cbranch_scc1 {N}_ld
    """)
    l_end()
    if stamp:
        a("s_mov_b32 s70, 0")
        stamp_end(a, 24, 70, 1, nw=1)
    a("s_endpgm")

    a.label(f"{N}_g")
    S = dict(GS); g = G2()
    VFA, VPA, VPOLL = g.tmp + 8, g.tmp + 9, g.tmp + 10
    VONE = g.ONE
    a(f"""
    s_sub_u32 s6, s70, 4
    s_lshr_b32 s47, s2, 3
    s_mov_b32 s60, s48
    s_and_b32 s48, s46, 1
    s_lshl_b32 s48, s48, 2
    s_and_b32 s49, s47, 3
    s_add_u32 s48, s48, s49          ; db
    s_lshr_b32 s49, s46, 1
    s_lshr_b32 s50, s47, 2
    s_and_b32 s64, s47, 7            ; db (B2)
    s_mul_i32 s49, s49, 7
    s_add_u32 s49, s49, s50          ; fb
    s_mul_i32 s52, s48, 1280         ; db*80*16
    v_mov_b32 v{VONE}, 1
    """)
    P2 = dict(mode="TF", srdT=12, srdF=16, strideT=4096, planeF=10240, W=4, TisA=False, fmod=" sc1")
    def b2_x():
        srd(a, 20, X_, X_ + 1, 0, 2048 * 1280)
        srd(a, 24, 72, 73, 0, 4096)
        a(f"""
        s_lshl_b32 s53, s60, 2
        s_add_u32 s53, s53, s6
        s_lshl_b32 s7, s53, 5
        s_mul_i32 s53, s53, {16*1280}
        s_mul_i32 s55, s64, 160
        s_add_u32 s53, s53, s55
        v_and_b32 v1, 15, v0
        v_lshlrev_b32 v4, 1, v1
        v_mul_u32_u24 v1, 1280, v1
        v_bfe_u32 v5, v0, 4, 2
        v_lshl_add_u32 v1, v5, 3, v1
        buffer_load_ushort v4, v4, s[24:27], s7 offen
        """)
        for j in range(5):
            a(f"buffer_load_dwordx2 {vr(g.FB[2]+2*j,2)}, v1, s[20:23], s53 offen offset:{j*32}")
    def b2_t():
        srd(a, 12, W2_, W2_ + 1, 0, 1728 * 4096)
        srd(a, 16, 4, 5, UF_OFF, UF_SZ)
        a(f"v_bfe_u32 v{g.tmp+2}, v0, 4, 2")
        setup_T(a, g, 4096)
        a("s_lshl_b32 s51, s60, 7")
        a("s_mul_i32 s52, s64, 1280")
        init_offsets(a, g, S, P2, 51, 52)
        issue(a, g, S, 0, P2, "T"); issue(a, g, S, 1, P2, "T")
    def b2_early():
        b2_x(); b2_t()
    nsy = [0]
    def arrive4(va=VFA):
        a(f"v_mov_b32 v{va}, {LWORD}")
        lds_inc(va, VONE, W_SY + 4 * nsy[0])
    def wait4(va=VFA, vp=VPOLL):
        lds_wait(va, W_SY + 4 * nsy[0], "gt", 4, vp, 1)
        nsy[0] += 1
    def sync4():
        arrive4(); wait4()
    srd(a, 8, 4, 5, 0, WS_END)
    setup_lane(a, g, S, GBASE)
    setup_F(a, g, g.vF, 10240)
    a(f"""
    s_cmp_eq_u32 s50, 7
    s_cbranch_scc1 {N}_wo
    s_cmp_ge_u32 s49, 27
    s_cbranch_scc1 {N}_nob1
    """)
    srd(a, 12, 40, 41, 0, 2048 * 3456)
    srd(a, 16, 4, 5, HF_OFF, HF_SZ)
    srd(a, 20, 42, 43, 0, 1728 * 2)
    P = dict(mode="TF", srdT=12, srdF=16, strideT=3456, planeF=10240, W=4, TisA=True, fmod=" sc1")
    setup_T(a, g, 3456)
    a("s_lshl_b32 s51, s49, 7")
    init_offsets(a, g, S, P, 51, 52)
    a(f"""
    v_lshlrev_b32 v1, 3, v{g.tmp+2}
    s_lshl_b32 s53, s6, 5
    s_add_u32 s53, s53, s51
    buffer_load_dwordx2 v[2:3], v1, s[20:23], s53 offen
    """)
    a(f"""
    s_lshl_b32 s54, s49, 3
    s_lshl_b32 s55, s6, 1
    s_add_u32 s54, s54, s55
    s_mul_i32 s54, s54, 10240
    s_add_u32 s54, s54, s52
    s_add_u32 s54, s54, {UF_OFF}
    v_mov_b32 v1, {LWORD}
    """)
    if fe:
        lds_wait(1, W_GO, "gt", 1, g.JUNK, gsl)
        roll_prologue(a, g, S, P, tpart=False)
        lds_wait(1, W_QD, "gt", 4, g.JUNK, gsl)
        roll_prologue(a, g, S, P, fpart=False)
    else:
        lds_wait(1, W_QD, "gt", 4, g.JUNK, gsl)
        lds_wait(1, W_GO, "gt", 1, g.JUNK, gsl)
        mark(1)
        roll_prologue(a, g, S, P)
    if stamp and sm == 0: stamp_mid(a, 2)
    main_loop(a, g, S, P, N + "_b1", 16, prios=p1, ffirst=fe)
    a(f"s_setprio {eprio}")
    if stamp: stamp_mid(a, 0)
    mark(2)
    reduce4(a, g, S, GBASE, sync4, mid=b2_x if xe else None, va=1 if rva else None)
    b1_epilogue(a, g, S, 8, 54, 2, store_mod=" sc1")
    if stamp and sm == 0: stamp_mid(a, 3)
    if xe: b2_t()
    if not usent:
        a(f"""
        s_mul_i32 s3, s49, 57
        s_lshr_b32 s3, s3, 9             ; fb / 9
        s_lshl_b32 s7, s48, 2
        s_add_u32 s7, s7, s3
        s_lshl_b32 s7, s7, 7
        s_add_u32 s7, s7, {FL_OFF}
        v_mov_b32 v1, s7
        v_mov_b32 v2, {LWORD}
        s_waitcnt vmcnt({8 if xe else 0})
        s_mov_b64 exec, 1
        """)
        if u1:
            a(f"""
            ds_add_rtn_u32 v2, v2, v{VONE} offset:{W_UD}
            s_waitcnt lgkmcnt(0)
            v_readfirstlane_b32 s3, v2
            s_nop 0
            s_cmp_lg_u32 s3, 3
            s_cbranch_scc1 {N}_nu
            """)
        a(f"global_atomic_add v1, v{VONE}, s[4:5] sc1")
        a.label(f"{N}_nu")
        a("s_mov_b64 exec, -1")
    if not xe:
        b2_early()
        a("s_waitcnt vmcnt(8)")
    if stamp and sm == 1: stamp_mid(a, 2)
    a(f"s_branch {N}_b2")
    a.label(f"{N}_wo")
    a(f"""
    s_and_b32 s47, s47, 3
    s_lshl_b32 s47, s47, 3
    s_add_u32 s47, s47, s46
    s_lshl_b32 s47, s47, 2
    s_add_u32 s47, s47, s6           ; task
    s_cmp_ge_u32 s47, 80
    s_cbranch_scc1 {N}_nob1
    s_mul_i32 s51, s47, 10240
    s_add_u32 s53, s51, {WOF_OFF}
    """)
    srd(a, 12, 44, 45, 0, 640 * 1280)
    a(f"v_mov_b32 v1, {LWORD}")
    lds_wait(1, W_QD, "gt", 4, 2, 4)
    lds_wait(1, W_GO, "gt", 1, 2, 4)
    a("v_mov_b32 v2, 1")
    transpose_task(a, g.ACC, S, 12, 51, 8, 53, S["lb"], store_mod=" sc1")
    a(f"s_mov_b32 s7, {FL_OFF + 384}")
    publish(2, 1, 7, mask=0xff, lane_stride=9)
    a("s_mov_b64 exec, -1")
    a.label(f"{N}_nob1")
    a(f"s_setprio {eprio}")
    a(f"v_mov_b32 v1, {LWORD}")
    lds_wait(1, W_QD, "gt", 4, 2, 4)
    b2_early()
    a(f"v_mov_b32 v{VPA}, {LWORD}")
    lds_wait(VPA, W_ARR + 4 * (pch & 3), "ge", 4 * (pch >> 2), VPOLL, 8)
    a("s_waitcnt vmcnt(8)")
    a.label(f"{N}_b2")
    a("v_mov_b32 v3, v4")
    for i in range(10):
        a(f"v_lshlrev_b32 v{g.ACC+2*i}, 16, v{g.FB[2]+i}")
        a(f"v_and_b32 v{g.ACC+2*i+1}, 0xffff0000, v{g.FB[2]+i}")
    if not usent:
        a(f"""
        s_lshl_b32 s7, s64, 9
        s_add_u32 s7, s7, {FL_OFF}
        v_and_b32 v1, 3, v0
        v_lshl_add_u32 v1, v1, 7, s7
        s_add_u32 s82, s4, s7
        s_addc_u32 s83, s5, 0
        s_mov_b32 s62, 0
        s_add_u32 s68, s6, 4
        """)
    def poll(lab, back, first=False):
        if upoll:
            a.label(lab)
            a(f"""
            s_load_dword s24, s[82:83], 0 glc
            s_load_dword s25, s[82:83], 128 glc
            s_load_dword s26, s[82:83], 256 glc
            s_load_dword s27, s[82:83], 384 glc
            s_add_u32 s62, s62, 1
            s_cmp_ge_u32 s62, {LIM}
            s_waitcnt lgkmcnt(0)
            s_cbranch_scc1 {back}
            s_cmp_ge_u32 s26, {9 if u1 else 36}
            s_cselect_b32 s66, 64, 36
            s_cmp_ge_u32 s25, {9 if u1 else 36}
            s_cselect_b32 s66, s66, 18
            s_cmp_ge_u32 s24, {9 if u1 else 36}
            s_cselect_b32 s66, s66, 0
            """)
            if first:
                a("s_cmp_ge_u32 s27, 80")
                a("s_cselect_b32 s66, s66, 0")
        else:
            a.label(lab)
            a(f"""
            s_mov_b64 exec, 15
            global_load_dword v2, v1, s[4:5] sc1
            s_mov_b64 exec, -1
            s_waitcnt vmcnt(0)
            v_cmp_le_u32 vcc, {0 if dbg == 4 else 9 if u1 else 36}, v2
            s_add_u32 s62, s62, 1
            s_cmp_ge_u32 s62, {LIM}
            s_cbranch_scc1 {back}
            s_and_b32 s66, vcc_lo, 7
            s_xor_b32 s67, s66, 15
            s_ff1_i32_b32 s67, s67
            s_mul_i32 s66, s67, 18
            s_cmp_eq_u32 s67, 3
            s_cselect_b32 s66, 64, s66
            """)
            if first:
                a(f"""
                v_readlane_b32 s69, v2, 3
                s_nop 0
                s_cmp_lt_u32 s69, 80
                s_cselect_b32 s66, 0, s66
                """)
        a(f"""
        s_cmp_lt_u32 s68, s66
        s_cbranch_scc1 {back}
        s_sleep {psleep}
        s_branch {lab}
        """)
    if usent:
        a('s_mov_b32 s62, 0')
        arrive4(4)
    else:
        a(f"""
        v_mov_b32 v{g.tmp+11}, {LWORD + W_SH}
        s_cmp_lg_u32 s6, 0
        s_cbranch_scc1 {N}_go2
        """)
        if stamp and sm == 1: stamp_mid(a, 3)
        poll(f"{N}_poll", f"{N}_go", True)
        a.label(f"{N}_go")
        a(f"""
        v_mov_b32 v{VFA}, s66
        ds_write_b32 v{g.tmp+11}, v{VFA}
        s_waitcnt lgkmcnt(0)
        """)
        a.label(f"{N}_go2")
        sync4()
        a(f"""
        ds_read_b32 v{VFA}, v{g.tmp+11}
        s_waitcnt lgkmcnt(0)
        v_readfirstlane_b32 s66, v{VFA}
        """)
    stubs = []
    def check():
        i = len(stubs); stubs.append(i)
        a(f"""
        s_add_u32 s68, s68, 4
        s_cmp_ge_u32 s68, s66
        s_cbranch_scc1 {N}_ck{i}
        """)
        a.label(f"{N}_ckb{i}")
    def fcheck(b):
        i = uid[0]; uid[0] += 1
        F_ = g.FB[b]
        ck = [f"v_max3_u32 v2, v{F_}, v{F_+1}, v{F_+2}"] + [f"v_max3_u32 v2, v2, v{F_+j}, v{F_+j+1}" for j in range(3, 19, 2)] + \
             [f"v_max_u32 v2, v2, v{F_+19}", "v_cmp_eq_u32 vcc, -1, v2", "s_nop 4"]
        a(f"s_setprio {eprio}")
        for x in ck: a(x)
        a("s_setprio 0")
        a(f"s_cbranch_vccnz {N}_ux{i}")
        a.label(f"{N}_ub{i}")
        sf = S["sf"]
        late.append(f"""{N}_ux{i}:
        s_setprio {eprio}
        s_sub_u32 s7, s{sf}, {2*4*4*10240}
        {N}_uy{i}:
        s_add_u32 s62, s62, 1
        s_cmp_ge_u32 s62, 0x4000
        s_cbranch_scc1 {N}_uz{i}
        s_sleep {usleep}
        """ + "\n".join(f"buffer_load_dwordx4 {vr(F_+4*j,4)}, v{g.vF}, s[16:19], s7 offen offset:{j*256} sc1" for j in range(5)) + f"""
        s_waitcnt vmcnt(0)
        """ + "\n".join(ck) + f"""
        s_cbranch_vccnz {N}_uy{i}
        {N}_uz{i}:
        s_setprio 0
        s_branch {N}_ub{i}""")
    if stamp: stamp_mid(a, 1)
    mark(3)
    roll_prologue(a, g, S, P2, tpart=False)
    if usent: wait4(4, 2)
    issue(a, g, S, 2, P2, "T")
    a("s_setprio 0")
    main_loop(a, g, S, P2, N + "_b2l", 14, midentry=True, czero=5, check=None if usent else check, prios=p2, fcheck=fcheck if usent else None)
    a(f"s_setprio {eprio}")
    if stamp and sm == 3: stamp_mid(a, 2)
    OFR = lambda k: 92 + 4 * k if k < 5 else 124 + 4 * (k - 5) if k < 16 else 8 if k == 16 else 112 + 4 * (k - 17)
    def wdma(koff, ldsoff):
        a(f"s_add_u32 s7, s21, {koff*40960}")
        for j in range(5):
            a(f"s_add_u32 m0, s{S['lb']}, {ldsoff + j*768}")
            a("s_nop 0")
            a(f"buffer_load_dwordx4 v2, s[8:11], s7 offen offset:{j*256} sc1 lds")
    def o_early():
        for k in range(17):
            a(f"buffer_load_dwordx4 {vr(OFR(k),4)}, v1, s[8:11], s20 offen sc1")
            a(f"s_add_u32 s20, s20, {4*32768}")
    def w_first():
        a(f"""
        v_and_b32 v5, 15, v0
        v_bfe_u32 v6, v0, 4, 2
        v_lshlrev_b32 v5, 4, v5
        v_lshl_add_u32 v1, v6, 15, v5
        v_mul_u32_u24 v2, 10240, v6
        v_add_u32 v2, v2, v5
        s_mul_i32 s21, s64, 1280
        s_mul_i32 s7, s6, 40960
        s_add_u32 s21, s21, s7
        s_add_u32 s21, s21, {WOF_OFF}
        s_lshl_b32 s20, s60, 2
        s_add_u32 s20, s20, s6
        s_lshl_b32 s20, s20, 8
        s_add_u32 s20, s20, {OF_OFF}
        """)
        if usent:
            a(f"v_mov_b32 v5, {LWORD}")
            lds_wait(5, W_WK, "gt", 1, 6, 4)
        wdma(8, 0)
        a(f"s_mul_i32 s7, s6, 40960")
        a(f"s_add_u32 s21, s21, s7")
        a("s_mov_b32 s22, s20")
        if oe == 1: o_early()
    reduce4(a, g, S, GBASE, sync4, mid=w_first, post=o_early if oe == 2 else None, va=4 if rva else None)
    if stamp and sm == 3: stamp_mid(a, 3)
    WB = [32, 52, 72]
    arrive4()
    a("v_lshlrev_b32 v3, 16, v3")
    for i in range(20): a(f"v_add_f32 v{g.ACC+i}, v{g.ACC+i}, v3")
    if b2x:
        a(f"v_mov_b32 v5, {LWORD}")
        lds_wait(5, W_OP, "gt", 4, 6, 2)
        if odelay: a(f"s_sleep {odelay}")
        for k in range(17):
            a(f"buffer_load_dwordx4 {vr(OFR(k),4)}, v1, s[8:11], s20 offen sc1")
            a(f"s_add_u32 s20, s20, {4*32768}")
    wait4()
    if b2x:
        for k in range(17, 20):
            a(f"buffer_load_dwordx4 {vr(OFR(k),4)}, v1, s[8:11], s20 offen sc1")
            a(f"s_add_u32 s20, s20, {4*32768}")
    wdma(12, REDOFF); wdma(13, REDOFF + 5120)
    srd(a, 24, 74, 75, 0, 2048 * 1280)
    a(f"""
    v_and_b32 v5, 63, v0
    v_lshlrev_b32 v5, 4, v5
    v_add_u32 v6, 0x10000, v5
    v_add_u32 v7, 0x20000, v5
    s_waitcnt vmcnt({30 if b2x else 0})
    s_barrier
    """)
    if stamp and sm == 4: stamp_mid(a, 2)
    mark(4)
    def rd1(k, j):
        off = waddr(k) + j * 1024
        return f"ds_read_b128 {vr(WB[k%3]+4*j,4)}, v{5 + (off >> 16)} offset:{off & 65535}"
    for k in range(2):
        for j in range(5): a(rd1(k, j))
    def oload(k):
        return f"buffer_load_dwordx4 {vr(OFR(k),4)}, v1, s[8:11], s20 offen sc1\ns_add_u32 s20, s20, {4*32768}"
    def ochk(k):
        r = OFR(k)
        return f"v_max3_u32 v2, v{r}, v{r+1}, v{r+2}\nv_max_u32 v2, v2, v{r+3}\nv_cmp_eq_u32 vcc, {-2 if dbg == 5 else -1}, v2"
    a("s_mov_b32 s62, 0")
    ex = 10 if b2x else 0
    for k in range(20 if b2x else 17 if oe else 0, 20): a(oload(k))
    a(f"s_waitcnt vmcnt({19+ex})")
    a(ochk(0))
    a("s_nop 4")
    for k in range(20):
        a(f"s_cbranch_vccnz {N}_os{k}")
        a.label(f"{N}_ok{k}")
        a(f"s_waitcnt lgkmcnt({5 if k < 19 else 0})")
        if b2x and k == 10:
            a("s_waitcnt vmcnt(0)")
            a("s_barrier")
        for j in range(5):
            a(mfma16(g.ACC + 4 * j, WB[k % 3] + 4 * j, OFR(k), g.ACC + 4 * j))
            if k + 2 < 20: a(rd1(k + 2, j))
            if j == 1 and k < 19:
                a(f"s_waitcnt vmcnt({18-k+ex})")
                a(ochk(k + 1))
        late.append(f"""{N}_os{k}:
        s_mov_b32 s23, {k}
        s_add_u32 s20, s22, {k*4*32768}
        s_add_u32 s62, s62, 1
        s_cmp_ge_u32 s62, 0x4000
        s_cbranch_scc1 {N}_ok{k}
        s_sleep {ssleep}
        s_branch {N}_ol{k}
        {N}_oc{k}:
        s_waitcnt vmcnt(0)
        {ochk(k)}
        s_nop 4
        s_cbranch_vccnz {N}_os{k}
        s_branch {N}_ok{k}""")
    late.append("\n".join(f"{N}_ol{k}:\n{oload(k)}" for k in range(20)) + "\n" +
                "\n".join(f"s_cmp_eq_u32 s23, {k}\ns_cbranch_scc1 {N}_oc{k}" for k in range(19)) + f"\ns_branch {N}_oc19")
    if stamp and sm == 4: stamp_mid(a, 3)
    a("s_nop 4")
    pack_store(a, g, g.ACC, 24, 53, PLANE=0, rowstride=1280, mode="R", store_mod=omod)
    mark(5)
    spin()
    if stamp: stamp_end(a, 8, 70, 0, nw=8)
    a.label(f"{N}_end")
    a("s_endpgm")
    for i in stubs:
        a.label(f"{N}_ck{i}")
        a(f"s_setprio {eprio}")
        poll(f"{N}_ckp{i}", f"{N}_ckr{i}")
        a.label(f"{N}_ckr{i}")
        a("s_setprio 0")
        a(f"s_branch {N}_ckb{i}")
    for x in late: a(x)
    return finish(a, N, 168, (256, 576, LDS))
```

```python
import sys
from mega2 import mega_kernel
from build import build, HDR
KN = "parallel_sum__grouped_kv_mqa__mixer_token_mlp__prompt_kernel"
def final(fn, aslist=False, **kw):
    k = mega_kernel(KN, **kw)
    s = build([k])
    if not aslist:
        s = s.replace(f"; @launch kernel={KN} grid", "; @launch grid")
    open(fn, "w").write(s)
if __name__ == "__main__":
    final("s_a.s")
    final("s_b.s", hks=4)
    final("s_c.s", pfw=0)
    final("s_d.s", pf2=True)
```

```python
from asmlib import *
from layout import *
from gemm import f2u

V_L16 = 1
V_AV  = 2
V_AK1 = 3
V_T0  = 4
QA0, QB0, QA1, QB1 = 8, 12, 16, 18
K0 = [20, 24]; K1 = [28, 30]
VV = [[32, 36], [40, 44]]
PA, PB = 48, 56
SA, SB, OA, OB = 64, 80, 96, 112
TMP = 128
V_FLAG = 144
V_ONE = 145
V_POLL = 146
V_PADDR = 147
MA, MB = 148, 149
NV_ATT = 152

CHUNK = 12288
T_BOUND = 48.0
ONE_ROW = V_OFF_T + 26 * 16

def mfma32(d, a, b, c):
    cs = "0" if c is None else vr(c, 16)
    return f"v_mfma_f32_32x32x16_bf16 {vr(d,16)}, {vr(a,4)}, {vr(b,4)}, {cs}"
def mfma8(d, a, b):
    return f"v_mfma_f32_32x32x8_bf16 {vr(d,16)}, {vr(a,2)}, {vr(b,2)}, {vr(d,16)}"

SREG = dict(ws=4, w=6, wg=2, srdw=8, t0=12, t1=13, t2=14, soff=15, wb=16, qo=17, oo=18, cnt=19, slow=20, srdk=24, flag_addr=4*CHUNK)

def valu_stream(S_, P_):
    out = []
    for k in range(4):
        for i in range(4):
            out.append(f"v_exp_f32 {vr(S_+4*k+i)}, {vr(S_+4*k+i)}")
        out.append(f"v_cvt_pk_bf16_f32 {vr(P_+2*k)}, {vr(S_+4*k)}, {vr(S_+4*k+1)}")
        out.append(f"v_cvt_pk_bf16_f32 {vr(P_+2*k+1)}, {vr(S_+4*k+2)}, {vr(S_+4*k+3)}")
    return out

ALIGN = True
def emit_phase(a, mf, aux, valu, pat):
    p = 0
    for k in range(4):
        a(mf[k])
        odd = 0
        for x in aux[k]:
            if x.startswith("LABEL "): a.label(x[6:])
            else:
                a(x)
                if x.startswith(("s_", "v_cmp")): odd ^= 1
        for x in valu[p:p + pat[k]]:
            if ALIGN and odd and x.startswith("v_exp_f32 "):
                x = x.replace("v_exp_f32 ", "v_exp_f32_e64 "); odd = 0
            a(x)
        p += pat[k]
    assert p == len(valu)

W_LAND, W_GO, W_KM, W_QD, W_XN, W_OP, W_LW, W_CW, W_ARR, W_SY, W_SH = 0, 16, 20, 24, 28, 32, 40, 80, 120, 136, 168

def setup(a, S, LWORD):
    ws, w, wg = S["ws"], S["w"], S["wg"]
    srdw = S["srdw"]
    t0, t1, t2 = S["t0"], S["t1"], S["t2"]
    a(f"""
    v_and_b32 v{V_T0}, 63, v0
    v_mov_b32 v{V_PADDR}, {LWORD}
    v_mov_b32 v{V_ONE}, 1
    v_lshlrev_b32 v{V_L16}, 4, v{V_T0}
    s_mov_b32 s{srdw}, s{ws}
    s_and_b32 s{srdw+1}, s{ws+1}, 0xffff
    s_mov_b32 s{srdw+2}, {WS_END}
    s_mov_b32 s{srdw+3}, 0x20000
    v_and_b32 v{V_T0+1}, 31, v0
    v_bfe_u32 v{V_T0+2}, v0, 5, 1          ; hf
    s_bfe_u32 s{t0}, s{wg}, 0x20003
    s_lshl_b32 s{t0}, s{t0}, 2
    s_add_u32 s{t0}, s{t0}, s{w}
    s_and_b32 s{t1}, s{wg}, 7
    s_lshl_b32 s{t1}, s{t1}, 3
    s_lshr_b32 s{t2}, s{wg}, 5
    s_add_u32 s{t1}, s{t1}, s{t2}
    s_mul_i32 s{S['oo']}, s{t0}, {5*32768}
    s_lshl_b32 s{t1}, s{t1}, 9
    s_add_u32 s{S['oo']}, s{S['oo']}, s{t1}
    s_add_u32 s{S['oo']}, s{S['oo']}, {OF_OFF}
    v_min_u32 v{V_AV}, 27, v{V_T0+1}
    v_lshlrev_b32 v{V_AV}, 4, v{V_AV}
    v_mul_u32_u24 v{TMP+5}, {V_PLANE}, v{V_T0+2}
    v_add_u32 v{V_AV}, v{V_AV}, v{TMP+5}
    v_add_u32 v{V_AV}, {V_OFF_T}, v{V_AV}
    v_lshlrev_b32 v{V_AK1}, 3, v{V_T0+1}
    v_add_u32 v{V_AK1}, {K1_OFF_T}, v{V_AK1}
    v_cmp_eq_u32 s[22:23], 1, v{V_T0+2}
    v_mov_b32 v{TMP+5}, {ONE_ROW}
    v_lshlrev_b32 v{V_T0+3}, 4, v{V_T0+1}
    v_cndmask_b32_e64 v{V_AK1}, v{V_AK1}, v{TMP+5}, s[22:23]
    v_lshl_add_u32 v{V_T0+3}, v{V_T0+2}, 15, v{V_T0+3}
    """)

def bound(a, S, tag, wait):
    km = TMP + 4
    tA, tB = TMP + 6, TMP + 8
    for t, q0, q1 in ((tA, QA0, QA1), (tB, QB0, QB1)):
        a(f"v_dot2_f32_bf16 v{t}, v{q0}, v{q0}, 0")
        for r in (q0 + 1, q0 + 2, q0 + 3, q1, q1 + 1):
            a(f"v_dot2_f32_bf16 v{t}, v{r}, v{r}, v{t}")
    for i in range(16):
        a(f"v_mov_b32 v{OA+i}, 0")
        if i == 2: a(f"v_mov_b32 v{tA+1}, v{tA}")
        if i == 3: a(f"v_mov_b32 v{tB+1}, v{tB}")
        if i == 6: a(f"v_permlane32_swap_b32 v{tA}, v{tA+1}")
        if i == 7: a(f"v_permlane32_swap_b32 v{tB}, v{tB+1}")
        if i == 10: a(f"v_add_f32 v{tA}, v{tA}, v{tA+1}")
        if i == 11: a(f"v_add_f32 v{tB}, v{tB}, v{tB+1}")
    for i in range(16): a(f"v_mov_b32 v{OB+i}, 0")
    for i in range(8):
        a(f"v_mov_b32 v{PB+i}, 0")
        a(f"v_mov_b32 v{VV[1][0]+i}, 0")
    wait()
    a(f"ds_read_b32 v{km}, v{V_PADDR} offset:{W_KM}")
    for x in ds_k(0, 0, 0): a(x)
    a("s_waitcnt lgkmcnt(2)")
    for t in (tA, tB):
        a(f"v_mul_f32 v{t}, v{t}, v{km}")
    for t in (tA, tB):
        a(f"v_sqrt_f32 v{t}, v{t}")
    a("s_nop 0")
    a(f"v_max_f32 v{km}, v{tA}, v{tB}")
    for t in (tA, tB):
        a(f"v_cvt_pk_bf16_f32 v{t+1}, -v{t}, 0")
    a(f"v_mov_b32 v{km+1}, {hex(f2u(T_BOUND))}")
    a(f"v_cmp_nle_f32 {sr(S['slow'],2)}, v{km}, v{km+1}")
    a(f"v_cndmask_b32_e64 v{QA1}, v{QA1}, v{tA+1}, s[22:23]")
    a(f"v_cndmask_b32_e64 v{QB1}, v{QB1}, v{tB+1}, s[22:23]")

def ds_k(slot, tile, buf):
    o = slot * CHUNK + tile * TILE_B
    return [f"ds_read_b128 {vr(K0[buf],4)}, v{V_L16} offset:{o}",
            f"ds_read_b64 {vr(K1[buf],2)}, v{V_AK1} offset:{o}"]
def ds_v(slot, tile, buf):
    o = slot * CHUNK + tile * TILE_B
    return [f"ds_read_b128 {vr(VV[buf][0],4)}, v{V_AV} offset:{o}",
            f"ds_read_b128 {vr(VV[buf][1],4)}, v{V_AV} offset:{o+2*V_PLANE}"]

def cmp_landed(S, c):
    return f"v_cmp_{'ge' if c == 3 else 'gt'}_u32 vcc, s{S['cnt']}, v{V_POLL}"

def main(a, S, tag, pat=(6,6,6,6), clk=False):
    cnt = S["cnt"]
    a(f"s_mov_b32 s{cnt}, 1")
    a(f"s_cmp_lg_u64 {sr(S['slow'],2)}, 0")
    a(f"s_cbranch_scc1 {tag}_slow")
    a("s_waitcnt lgkmcnt(0)")
    a(mfma32(SA, K0[0], QA0, None))
    a(mfma8(SA, K1[0], QA1))
    for x in ds_k(0, 1, 1): a(x)
    for x in ds_v(0, 0, 0): a(x)
    a("s_nop 7")
    if clk:
        a("s_memtime s[24:25]"); a("s_memrealtime s[26:27]"); a("s_waitcnt lgkmcnt(0)"); a("s_mov_b32 s25, s26")
    a(".p2align 6")
    a.label(f"{tag}_loop")
    for c in range(4):
        for t in range(4):
            j = 4 * c + t
            kb = vb = j & 1
            j2 = j + 2; j1 = j + 1
            dk = ds_k((j2 >> 2) & 3, j2 & 3, kb)
            dv = ds_v((j1 >> 2) & 3, j1 & 3, vb ^ 1)
            mf = [mfma32(SB, K0[kb], QB0, None), mfma8(SB, K1[kb], QB1),
                  mfma32(OB, VV[vb ^ 1][0], PB, OB), mfma32(OB, VV[vb ^ 1][1], PB + 4, OB)]
            aux = [[], [], [dk[1]], ["s_waitcnt lgkmcnt(0)"]]
            aux2 = [[dk[0]], [], [dv[0]], [dv[1]]]
            if t == 0: aux[0] = ["s_mov_b64 exec, 1", f"ds_add_u32 v{V_PADDR}, v{V_ONE} offset:{W_ARR + c*4}", "s_mov_b64 exec, -1"]
            if t == 1:
                aux[0] = [f"ds_read_b32 v{V_POLL}, v{V_PADDR} offset:{((c+1)&3)*4}"]
                aux2[1] = [cmp_landed(S, c)]
            if t == 2: aux[0] = [f"s_cbranch_vccnz {tag}_spin{c}", f"LABEL {tag}_back{c}"]
            if c == 3 and t == 3:
                aux[0] = [f"s_add_u32 s{cnt}, s{cnt}, 1"]
                aux2[1] = [f"s_cmp_lg_u32 s{cnt}, 5"]
            emit_phase(a, mf, aux, valu_stream(SA, PA), pat)
            mf = [mfma32(SA, K0[kb ^ 1], QA0, None), mfma8(SA, K1[kb ^ 1], QA1),
                  mfma32(OA, VV[vb][0], PA, OA), mfma32(OA, VV[vb][1], PA + 4, OA)]
            emit_phase(a, mf, aux2, valu_stream(SB, PB), pat)
    if clk:
        for r in (34, 32, 30, 28):
            a(f"s_mov_b32 s{r}, s{r-2 if r > 28 else 24}"); a(f"s_mov_b32 s{r+1}, s{r-1 if r > 28 else 25}")
        a("s_memtime s[24:25]"); a("s_memrealtime s[26:27]"); a("s_waitcnt lgkmcnt(0)"); a("s_mov_b32 s25, s26")
    a(f"s_cbranch_scc1 {tag}_loop")
    a("s_nop 1")
    a(mfma32(OB, VV[1][0], PB, OB))
    a(mfma32(OB, VV[1][1], PB + 4, OB))
    a.label(f"{tag}_fin")

def tails(a, S, tag):
    cnt = S["cnt"]
    t0, t1, t2 = S["t0"], S["t1"], S["t2"]
    for c in range(4):
        a.label(f"{tag}_spin{c}")
        if c == 3:
            a(f"s_cmp_eq_u32 s{cnt}, 4")
            a(f"s_cbranch_scc1 {tag}_back{c}")
        a(f"ds_read_b32 v{V_POLL}, v{V_PADDR} offset:{((c+1)&3)*4}")
        a("s_waitcnt lgkmcnt(0)")
        a(cmp_landed(S, c))
        a("s_nop 4")
        a(f"s_cbranch_vccnz {tag}_spin{c}")
        a(f"s_branch {tag}_back{c}")
    a.label(f"{tag}_slow")
    a(f"""
    s_mov_b32 exec_lo, 0
    v_mov_b32 v{QA1}, 0
    v_mov_b32 v{QB1}, 0
    s_mov_b32 exec_lo, -1
    v_mov_b32 v{MA}, 0xff7fffff
    v_mov_b32 v{MB}, 0xff7fffff
    s_mov_b32 s{t1}, 0
    """)
    a.label(f"{tag}_sl_chunk")
    a(f"""
    s_and_b32 s{t2}, s{t1}, 3
    s_lshl_b32 s{t0}, s{t2}, 2
    v_add_u32 v{TMP+1}, s{t0}, v{V_PADDR}
    s_lshr_b32 s{cnt}, s{t1}, 2
    s_waitcnt lgkmcnt(0)
    s_mov_b64 exec, 1
    ds_add_u32 v{TMP+1}, v{V_ONE} offset:{W_ARR}
    s_mov_b64 exec, -1
    """)
    a.label(f"{tag}_sl_w")
    a(f"""
    ds_read_b32 v{V_POLL}, v{TMP+1}
    s_waitcnt lgkmcnt(0)
    v_cmp_ge_u32 vcc, s{cnt}, v{V_POLL}
    s_nop 4
    s_cbranch_vccnz {tag}_sl_w
    s_mul_i32 s{t0}, s{t2}, {CHUNK}
    s_add_u32 s{t2}, s{t0}, {CHUNK}
    """)
    a.label(f"{tag}_sl_tile")
    a(f"""
    v_add_u32 v{TMP}, s{t0}, v{V_L16}
    v_add_u32 v{TMP+1}, s{t0}, v{V_AK1}
    v_add_u32 v{TMP+2}, s{t0}, v{V_AV}
    ds_read_b128 {vr(K0[0],4)}, v{TMP}
    ds_read_b64 {vr(K1[0],2)}, v{TMP+1}
    ds_read_b128 {vr(VV[0][0],4)}, v{TMP+2}
    ds_read_b128 {vr(VV[0][1],4)}, v{TMP+2} offset:{2*V_PLANE}
    s_waitcnt lgkmcnt(0)
    """)
    for (S_, Q0, Q1) in ((SA, QA0, QA1), (SB, QB0, QB1)):
        a(mfma32(S_, K0[0], Q0, None))
        a(mfma8(S_, K1[0], Q1))
    a("s_nop 7"); a("s_nop 7")
    for (S_, P_, O_, M_) in ((SA, PA, OA, MA), (SB, PB, OB, MB)):
        a(f"v_max3_f32 v{TMP}, v{S_}, v{S_+1}, v{M_}")
        for i in range(2, 16, 2):
            a(f"v_max3_f32 v{TMP}, v{S_+i}, v{S_+i+1}, v{TMP}")
        a(f"v_mov_b32 v{TMP+1}, v{TMP}")
        a("s_nop 1")
        a(f"v_permlane32_swap_b32 v{TMP}, v{TMP+1}")
        a("s_nop 1")
        a(f"v_max_f32 v{TMP}, v{TMP}, v{TMP+1}")
        a(f"v_sub_f32 v{TMP+1}, v{M_}, v{TMP}")
        a(f"v_exp_f32 v{TMP+1}, v{TMP+1}")
        a(f"v_mov_b32 v{M_}, v{TMP}")
        for i in range(16):
            a(f"v_mul_f32 v{O_+i}, v{O_+i}, v{TMP+1}")
        for i in range(16):
            a(f"v_sub_f32 v{S_+i}, v{S_+i}, v{M_}")
        for x in valu_stream(S_, P_): a(x)
        a("s_nop 1")
        a(mfma32(O_, VV[0][0], P_, O_))
        a(mfma32(O_, VV[0][1], P_ + 4, O_))
    a(f"""
    s_add_u32 s{t0}, s{t0}, {TILE_B}
    s_cmp_lg_u32 s{t0}, s{t2}
    s_cbranch_scc1 {tag}_sl_tile
    s_add_u32 s{t1}, s{t1}, 1
    s_cmp_lg_u32 s{t1}, 16
    s_cbranch_scc1 {tag}_sl_chunk
    s_branch {tag}_fin
    """)

def epilogue(a, S, signal=True):
    srdw, oo, t0 = S["srdw"], S["oo"], S["t0"]
    sm = ' sc1' if signal else ''
    def pk(d, s):
        a(f"v_cvt_pk_bf16_f32 v{d}, v{s}, v{s+1}")
        a(f"v_cvt_pk_bf16_f32 v{d+1}, v{s+2}, v{s+3}")
    def norm(O, t):
        a(f"v_mov_b32 v{t}, v{O+8}")
        a(f"v_mov_b32 v{t+1}, v{O+8}")
        a("s_nop 1")
        a(f"v_permlane32_swap_b32 v{t}, v{t+1}")
        a("s_nop 1")
        a(f"v_rcp_f32 v{t}, v{t+1}")
        a(f"v_rcp_f32 v{t+1}, v{t+1}")
        a("s_nop 0")
        for i in range(0, 12, 2):
            a(f"v_pk_mul_f32 {vr(O+i,2)}, {vr(O+i,2)}, {vr(t,2)}")
    a("s_nop 7")
    a("s_nop 1")
    norm(OA, TMP + 14)
    pk(TMP, OA); pk(TMP + 2, OA + 4); pk(TMP + 4, OA + 8)
    a("s_nop 1")
    for i in range(2):
        a(f"v_permlane32_swap_b32 v{TMP+i}, v{TMP+2+i}")
    norm(OB, TMP + 14)
    a(f"buffer_store_dwordx4 {vr(TMP,4)}, v{V_T0+3}, {sr(srdw,4)}, s{oo} offen{sm}")
    pk(TMP + 6, OB); pk(TMP + 12, OB + 4); pk(TMP + 10, OB + 8)
    a(f"s_add_u32 s{t0}, s{oo}, {2*32768}")
    for i in range(2):
        a(f"v_permlane32_swap_b32 v{TMP+6+i}, v{TMP+12+i}")
    a("s_nop 1")
    for i in range(2):
        a(f"v_permlane32_swap_b32 v{TMP+4+i}, v{TMP+12+i}")
    a("s_nop 1")
    for i in range(2):
        a(f"v_permlane32_swap_b32 v{TMP+12+i}, v{TMP+8+i}")
    a(f"buffer_store_dwordx4 {vr(TMP+4,4)}, v{V_T0+3}, {sr(srdw,4)}, s{t0} offen{sm}")
    a(f"s_add_u32 s{t0}, s{oo}, {4*32768}")
    a("s_mov_b32 exec_hi, 0")
    a(f"buffer_store_dwordx4 {vr(TMP+8,4)}, v{V_T0+3}, {sr(srdw,4)}, s{t0} offen{sm}")
    if signal == 1:
        wg, ws = S["wg"], S["ws"]
        a(f"""
        s_and_b32 s{t0}, s{wg}, 7
        s_lshl_b32 s{t0}, s{t0}, 2
        s_lshr_b32 s{S['t1']}, s{wg}, 6
        s_add_u32 s{t0}, s{t0}, s{S['t1']}
        s_lshl_b32 s{t0}, s{t0}, 7
        s_add_u32 s{t0}, s{t0}, {FL2_OFF}
        v_mov_b32 v{V_T0}, s{t0}
        s_mov_b64 exec, 1
        s_waitcnt vmcnt(0)
        global_atomic_add v{V_T0}, v{V_ONE}, {sr(ws,2)} sc1
        ds_add_u32 v{V_PADDR}, v{V_ONE} offset:{W_OP}
        """)
    if signal == 2:
        a("s_mov_b64 exec, 1")
        a(f"ds_add_u32 v{V_PADDR}, v{V_ONE} offset:{W_OP}")
```

```python
from asmlib import *
from layout import *
from gemm import *
import attn3 as attn
from attn import kd
from attn3 import CHUNK, W_LAND, W_GO, W_KM, W_QD, W_XN, W_OP, W_LW, W_CW, W_ARR, W_SY, W_SH
from kernels import finish, stamp_begin, stamp_mid, stamp_end, GS
from k1 import mfma32, mfma8, ln_stats, half_sum, split3, QSCALE

GBASE = 4 * CHUNK
LWORD = 162816
LDS = 163840
HST = 26624; VST = 37376; XN = 39424; WR = XN + 40960; WSL = 20480
assert WR + 4 * WSL <= LWORD
def waddr(k):
    if k < 2: return GBASE + 4 * REGION + 5120 * k
    if k < 8: return ((k - 2) >> 1) * CHUNK + (k & 1) * 5120
    if k < 12: return GBASE + (k - 8) * REGION
    return GBASE + ((k - 12) >> 1) * REGION + REDOFF + (k & 1) * 5120
W_HD = 36; W_WK = 172; W_UD = 176
LIM = 0x100000

def mega_kernel(name, stamp=False, eprio=2, psleep=8, lprio=3, pch=10, sm=0, p1=None, p2=None, lsleep=8,
                pf_at=7, osleep=8, hsleep=16, akw={}, qs=0, gsl=2, cprio=2, look=0, pfw=1, w8prio=3, hmode=2, pfq=True, hks=8, dbg=0, pfn0=0, pub0=True, pfm='', pfc=False, pfm2='', probe=0, pf2=True, la=3, sent=True, ssleep=8, oe=0, b2x=False, usent=False, usleep=8, odelay=8, omod=" nt", bal=False, xe=True, st1=True, rot=3, hat=0, master=True, msleep=1, rsleep=2, spoll=True, wfirst=True, upoll=False, u1=True, rva=True, xmod='', wmod='', fe=False, krot=2, near=True, kmw=True, tlb=False, mlate=True, spf=(12, 34), tmod=''):
    a = Asm()
    N = name
    uid = [0]
    late = []
    def lds_wait(vaddr, off, cmp, val, vtmp, sleep):
        i = uid[0]; uid[0] += 1
        a.label(f"{N}_lw{i}")
        a(f"""
        ds_read_b32 v{vtmp}, v{vaddr} offset:{off}
        s_waitcnt lgkmcnt(0)
        v_cmp_{cmp}_u32 s[84:85], {val}, v{vtmp}
        s_nop 1
        s_cmp_eq_u64 s[84:85], 0
        s_cbranch_scc0 {N}_lx{i}
        """)
        late.append(f"{N}_lx{i}:\ns_sleep {sleep}\ns_branch {N}_lw{i}")
    def lds_check(vaddr, off, cmp, val, vtmp, sleep):
        i = uid[0]; uid[0] += 1
        pre = [f"v_cmp_{cmp}_u32 vcc, {val}, v{vtmp}"]
        post = [f"s_cbranch_vccnz {N}_cx{i}", f"{N}_cb{i}:"]
        late.append(f"""{N}_cx{i}:
        ds_read_b32 v{vtmp}, v{vaddr} offset:{off}
        s_waitcnt lgkmcnt(0)
        v_cmp_{cmp}_u32 vcc, {val}, v{vtmp}
        s_nop 4
        s_cbranch_vccz {N}_cb{i}
        s_sleep {sleep}
        s_branch {N}_cx{i}""")
        return pre, post
    def g_wait(vaddr, val, vtmp, sleep, mask=1, base=4):
        i = uid[0]; uid[0] += 1
        a("s_mov_b32 s71, 0")
        a(f"s_mov_b32 s3, {val}")
        a(f"s_mov_b64 exec, {mask}")
        a.label(f"{N}_gw{i}")
        a(f"""
        global_load_dword v{vtmp}, v{vaddr}, s[{base}:{base+1}] sc1
        s_add_u32 s71, s71, 1
        s_waitcnt vmcnt(0)
        v_cmp_gt_u32 s[84:85], s3, v{vtmp}
        s_nop 1
        s_cmp_eq_u64 s[84:85], 0
        s_cbranch_scc0 {N}_gx{i}
        """)
        a.label(f"{N}_gy{i}")
        a("s_mov_b64 exec, -1")
        late.append(f"""{N}_gx{i}:
        s_cmp_ge_u32 s71, {LIM}
        s_cbranch_scc1 {N}_gy{i}
        s_sleep {sleep}
        s_branch {N}_gw{i}""")
    def s_wait(soff, val, sleep):
        i = uid[0]; uid[0] += 1
        a("s_mov_b32 s71, 0")
        a.label(f"{N}_sw{i}")
        a(f"""
        s_load_dword s3, s[4:5], s{soff} glc
        s_add_u32 s71, s71, 1
        s_waitcnt lgkmcnt(0)
        s_cmp_ge_u32 s3, {val}
        s_cbranch_scc0 {N}_sx{i}
        """)
        a.label(f"{N}_sy{i}")
        late.append(f"""{N}_sx{i}:
        s_cmp_ge_u32 s71, {LIM}
        s_cbranch_scc1 {N}_sy{i}
        s_sleep {sleep}
        s_branch {N}_sw{i}""")
    def spf_w1(n, first_expr):
        a(first_expr)
        a(f"""
        s_mul_i32 s7, s2, 216
        s_add_u32 s7, s7, s3
        s_lshl_b32 s7, s7, 7
        s_add_u32 s30, s40, s7
        s_addc_u32 s31, s41, 0
        """)
        for i in range(n): a(f"s_load_dword s32, s[30:31], {i*128}")
    def zload(v):
        a(f"v_mov_b32 v{v}, 0")
        a(f"global_load_dword v{v}, v{v}, s[78:79] sc1")
    def publish(vz, vt, soff, mask=1, lane_stride=None):
        i = uid[0]; uid[0] += 1
        a(f"""
        s_mov_b64 exec, -1
        s_waitcnt vmcnt(0)
        v_readfirstlane_b32 s3, v{vz}
        v_mov_b32 v{vz}, 0
        s_cmp_lg_u32 s3, 0
        s_cbranch_scc1 {N}_zk{i}
        """)
        g_wait(vz, 1, vt, 2, base=78)
        a.label(f"{N}_zk{i}")
        if lane_stride is None: a(f"v_mov_b32 v{vt}, s{soff}")
        else:
            a(f"v_and_b32 v{vt}, 63, v0")
            a(f"v_lshl_add_u32 v{vt}, v{vt}, {lane_stride}, s{soff}")
        a(f"""
        v_mov_b32 v{vz}, 1
        s_mov_b64 exec, {mask}
        global_atomic_add v{vt}, v{vz}, s[4:5] sc1
        """)
    def lds_inc(vaddr, vone, off):
        a("s_mov_b64 exec, 1")
        a(f"ds_add_u32 v{vaddr}, v{vone} offset:{off}")
        a("s_mov_b64 exec, -1")
    def ln_fin(A0):
        a("s_nop 2")
        a(f"v_add_f32 v{A0}, v{A0}, v{A0+1}")
        a(f"v_add_f32 v{A0+2}, v{A0+2}, v{A0+3}")
        for dpp in ("quad_perm:[1,0,3,2]", "quad_perm:[2,3,0,1]", "row_half_mirror"):
            a("s_nop 0")
            a(f"v_add_f32_dpp v{A0}, v{A0}, v{A0} {dpp} row_mask:0xf bank_mask:0xf")
            a(f"v_add_f32_dpp v{A0+2}, v{A0+2}, v{A0+2} {dpp} row_mask:0xf bank_mask:0xf")
        ln_stats(a, A0, A0 + 2, A0 + 1, 61, 62)
        a(f"v_mul_f32 v{A0}, -v{A0}, v{A0+2}")
        a(f"v_mov_b32 v{A0+3}, v{A0+2}")
        a(f"v_mov_b32 v{A0+1}, v{A0}")
    def ln_sums(X, A0, waits):
        for i in range(4): a(f"v_mov_b32 v{A0+i}, 0")
        for i in range(40):
            if i % 4 == 0: a(waits(i // 4))
            a(f"v_dot2_f32_bf16 v{A0+(i&1)}, v{X+i}, s60, v{A0+(i&1)}")
            a(f"v_dot2_f32_bf16 v{A0+2+(i&1)}, v{X+i}, v{X+i}, v{A0+2+(i&1)}")
        ln_fin(A0)
    def ln_norm(X, A0, U, regs):
        for i in regs:
            u = U + 2 * (i & 3)
            a(f"v_lshlrev_b32 v{u}, 16, v{X+i}")
            a(f"v_and_b32 v{u+1}, 0xffff0000, v{X+i}")
            a(f"v_pk_fma_f32 {vr(u,2)}, {vr(u,2)}, {vr(A0+2,2)}, {vr(A0,2)}")
            a(f"v_cvt_pk_bf16_f32 v{X+i}, v{u}, v{u+1}")
    def ln_pass(X, A0, U, waits):
        ln_sums(X, A0, waits); ln_norm(X, A0, U, range(40))
    def row_addr(d, t, srow):
        a(f"""
        v_bfe_u32 v{t}, v0, 3, 3
        s_lshl_b32 s7, s{srow}, 3
        v_add_u32 v{t}, s7, v{t}
        v_and_b32 v{t+1}, 7, v0
        v_and_b32 v{d}, 15, v{t}
        v_xor_b32 v{t+1}, v{t+1}, v{d}
        v_mul_u32_u24 v{t}, 1280, v{t}
        v_add_u32 v{t}, {XN}, v{t}
        v_lshl_add_u32 v{d}, v{t+1}, 4, v{t}
        v_xor_b32 v{t+1}, 8, v{t+1}
        v_lshl_add_u32 v{d+1}, v{t+1}, 4, v{t}
        """)
    def frag_addr(AX, t):
        a(f"""
        v_and_b32 v{t}, 31, v0
        v_bfe_u32 v{t+1}, v0, 5, 1
        v_and_b32 v{t+2}, 15, v0
        v_xor_b32 v{t+1}, v{t+1}, v{t+2}
        v_mul_u32_u24 v{t}, 1280, v{t}
        v_add_u32 v{t}, {XN}, v{t}
        """)
        for j in range(8):
            a(f"v_xor_b32 v{AX+j}, {2*j}, v{t+1}")
            a(f"v_lshl_add_u32 v{AX+j}, v{AX+j}, 4, v{t}")
    def tr_addr(d, t, pitch):
        a(f"""
        v_bfe_u32 v{t}, v0, 2, 2
        v_bfe_u32 v{t+1}, v0, 5, 1
        v_lshl_add_u32 v{t}, v{t+1}, 3, v{t}
        v_mul_u32_u24 v{d}, {pitch}, v{t}
        v_bfe_u32 v{t}, v0, 4, 1
        v_lshl_add_u32 v{d}, v{t}, 5, v{d}
        v_and_b32 v{t}, 3, v0
        v_lshl_add_u32 v{d}, v{t}, 3, v{d}
        """)

    a.label(N)
    a(f"""
    s_cmp_ge_u32 s2, 256
    s_cbranch_scc1 {N}_end
    s_load_dwordx4 s[56:59], s[0:1], 0
    s_load_dwordx2 s[4:5], s[0:1], 96
    s_load_dwordx4 s[80:83], s[0:1], 16
    s_load_dwordx4 s[40:43], s[0:1], 48
    s_load_dwordx2 s[44:45], s[0:1], 32
    s_load_dwordx2 s[76:77], s[0:1], 64
    s_load_dwordx4 s[72:75], s[0:1], 72
    s_load_dwordx2 s[78:79], s[0:1], 88
    s_getpc_b64 s[20:21]
    s_lshr_b32 s7, s2, 3
    s_lshl_b32 s7, s7, 7
    v_lshl_add_u32 v1, v0, 12, s7
    v_cmp_gt_u32 vcc, code_end-{N}-128, v1
    s_nop 0
    s_and_saveexec_b64 s[22:23], vcc
    s_cbranch_execz {N}_npc
    global_load_dword v167, v1, s[20:21]
    """)
    a.label(f"{N}_npc")
    a(f"""
    s_mov_b64 exec, s[22:23]
    v_lshrrev_b32 v1, 6, v0
    s_and_b32 s46, s2, 7
    v_readfirstlane_b32 s6, v1
    """)
    X_, WQ_, W2_ = 56, 58, 76
    if probe: a("s_memrealtime s[86:87]")
    def mark(k, v=None):
        if probe == k:
            a("s_memrealtime s[88:89]")
            if v is not None:
                a(f"""
                s_waitcnt lgkmcnt(0)
                s_sub_u32 s88, s88, s86
                v_mov_b32 v{v}, s88
                v_mov_b32 v{v+1}, {LWORD}
                ds_write_b32 v{v+1}, v{v} offset:200
                s_waitcnt lgkmcnt(0)
                """)
    def spin():
        if not probe: return
        i = uid[0]; uid[0] += 1
        a(f"""
        s_cmp_lg_u32 s2, 9
        s_cbranch_scc1 {N}_sx{i}
        s_waitcnt vmcnt(0) lgkmcnt(0)
        s_memrealtime s[90:91]
        s_sub_u32 s88, s88, s86
        """)
        if probe > 5:
            a(f"""
            v_mov_b32 v1, {LWORD}
            ds_read_b32 v1, v1 offset:200
            s_waitcnt lgkmcnt(0)
            v_readfirstlane_b32 s88, v1
            s_nop 1
            """)
        a(f"""
        s_min_u32 s88, s88, 20000
        s_lshl_b32 s88, s88, 2
        s_waitcnt lgkmcnt(0)
        """)
        a.label(f"{N}_sp{i}")
        a(f"""
        s_memrealtime s[92:93]
        s_waitcnt lgkmcnt(0)
        s_sub_u32 s92, s92, s90
        s_cmp_lt_u32 s92, s88
        s_cbranch_scc1 {N}_sp{i}
        """)
        a.label(f"{N}_sx{i}")
    if stamp: stamp_begin(a)
    a(f"""
    s_bfe_u32 s47, s2, 0x20003
    s_lshr_b32 s49, s2, 5
    s_lshl_b32 s7, s46, 3
    s_add_u32 s49, s49, s7
    s_lshr_b32 s48, s49, 1
    s_mov_b32 s60, 0x3f803f80
    s_mov_b32 s61, {hex(f2u(1.0/640))}
    s_mov_b32 s62, {hex(f2u(1e-5))}
    s_mov_b32 s70, s6
    s_cmp_eq_u32 s6, 8
    s_cbranch_scc1 {N}_w8
    s_cmp_ge_u32 s6, 4
    s_cbranch_scc1 {N}_stg
    """)
    X = 64; A0 = 136; U = 10; AX = 24; AW = 20; XF = 32; WF = 104; AC = (152, 48)
    a(f"""
    s_setprio {cprio}
    v_bfe_u32 v8, v0, 3, 3
    v_and_b32 v9, 7, v0
    v_mul_u32_u24 v8, 1280, v8
    v_lshl_add_u32 v8, v9, 4, v8
    s_lshl_b32 s7, s49, 2
    s_add_u32 s7, s7, s6
    s_mul_i32 s20, s7, 10240
    s_waitcnt lgkmcnt(0)
    """)
    srd(a, 12, X_, X_ + 1, 0, 2048 * 1280)
    for i in range(10):
        a(f"buffer_load_dwordx4 {vr(X+4*i,4)}, v8, s[12:15], s20 offen offset:{i*128}{xmod}")
    a("s_barrier")
    if pfw == 8: spf_w1(spf[0], f"s_mul_i32 s3, s6, {spf[0]}")
    mark(10, 150)
    S = dict(attn.SREG)
    attn.setup(a, S, LWORD)
    PD = attn.V_PADDR; ON = attn.V_ONE
    row_addr(22, 8, 6)
    frag_addr(AX, 8)
    tr_addr(AW, 8, 320)
    a(f"""
    s_mul_i32 s7, s6, 80
    s_add_u32 s7, s7, {WR}
    v_add_u32 v{AW}, s7, v{AW}
    v_add_u32 v{AW+1}, {3*WSL}, v{AW}
    """)
    ln_pass(X, A0, U, lambda i: f"s_waitcnt vmcnt({9-i})")
    for i in range(10):
        a(f"ds_write_b128 v{22+(i&1)}, {vr(X+4*i,4)} offset:{(i>>1)*256}")
    a("s_waitcnt lgkmcnt(0)")
    lds_inc(PD, ON, W_XN)
    mark(6, 150)
    def h_part():
        t = 140
        a(f"""
        s_lshl_b32 s7, s49, 2
        s_add_u32 s7, s7, s6
        s_mul_i32 s24, s7, 10240
        s_add_u32 s24, s24, {HF_OFF}
        """)
        ln_sums(X, A0, lambda i: "")
        for hg, (g0, n) in enumerate(((0, 2), (2, 2), (4, 3), (7, 3))):
            pitch = 128 * n + 64
            base = HST if n == 2 else 0
            if hg < 3:
                a(f"s_cmp_lg_u32 s47, {hg}")
                a(f"s_cbranch_scc1 {N}_hv{hg+1}")
            a(f"""
            s_mul_i32 s7, s6, {8*pitch}
            s_add_u32 s7, s7, {base}
            v_bfe_u32 v{t}, v0, 3, 3
            v_and_b32 v{t+1}, 7, v0
            v_mul_u32_u24 v{t}, {pitch}, v{t}
            v_lshl_add_u32 v{t}, v{t+1}, 4, v{t}
            v_add_u32 v{t}, s7, v{t}
            v_bfe_u32 v{t+1}, v0, 2, 2
            v_mul_u32_u24 v{t+1}, {pitch}, v{t+1}
            v_bfe_u32 v{t+2}, v0, 4, 2
            v_lshl_add_u32 v{t+1}, v{t+2}, 5, v{t+1}
            v_and_b32 v{t+2}, 3, v0
            v_lshl_add_u32 v{t+1}, v{t+2}, 3, v{t+1}
            v_add_u32 v{t+1}, s7, v{t+1}
            s_add_u32 s24, s24, {g0*1024}
            """)
            for i in range(n):
                ln_norm(X, A0, U, range(4 * (g0 + i), 4 * (g0 + i) + 4))
                a(f"ds_write_b128 v{t}, {vr(X+4*(g0+i),4)} offset:{i*128}")
            a("s_waitcnt lgkmcnt(0)")
            for i in range(n):
                a(f"ds_read_b64_tr_b16 {vr(X+4*(g0+i),2)}, v{t+1} offset:{i*128}")
                a(f"ds_read_b64_tr_b16 {vr(X+4*(g0+i)+2,2)}, v{t+1} offset:{i*128+4*pitch}")
            for i in range(n):
                a(f"s_waitcnt lgkmcnt({2*(n-1-i)})")
                a(f"buffer_store_dwordx4 {vr(X+4*(g0+i),4)}, v{attn.V_L16}, s[8:11], s24 offen offset:{i*1024} sc1")
            if hg < 3:
                a(f"s_branch {N}_hz")
                a.label(f"{N}_hv{hg+1}")
        a.label(f"{N}_hz")
        if sent:
            for i in range(4): a(f"v_mov_b32 v{U+i}, -1")
            a(f"""
            buffer_store_dwordx4 {vr(U,4)}, v{attn.V_T0+3}, s[8:11], s{S['oo']} offen sc1
            s_add_u32 s7, s{S['oo']}, {2*32768}
            buffer_store_dwordx4 {vr(U,4)}, v{attn.V_T0+3}, s[8:11], s7 offen sc1
            s_add_u32 s7, s{S['oo']}, {4*32768}
            s_mov_b32 exec_hi, 0
            buffer_store_dwordx4 {vr(U,4)}, v{attn.V_T0+3}, s[8:11], s7 offen sc1
            s_mov_b32 exec_hi, -1
            """)
    if hmode == 2 and not hat: h_part()
    if hmode == 1:
        a(f"""
        s_cmp_lg_u32 s6, s47
        s_cbranch_scc1 {N}_nh
        s_lshl_b32 s7, s49, 2
        s_add_u32 s7, s7, s47
        s_mul_i32 s24, s7, 10240
        s_add_u32 s24, s24, {HF_OFF}
        """)
        if dbg not in (1, 3):
            ln_pass(X, A0, U, lambda i: "")
            transpose_tail(a, X - 8, 8, 24, HST, store_mod=" sc1")
        a.label(f"{N}_nh")
    if stamp and qs == 2: stamp_mid(a, 3)
    lds_wait(PD, W_XN, "gt", 4, 8, 1)
    def qrd(ks):
        c, k = ks >> 2, ks & 3
        sl = c & 3
        L = [f"ds_read_b128 {vr(XF+4*k,4)}, v{AX+(ks&7)} offset:{(ks>>3)*256}"]
        for b in range(2):
            for t in range(2):
                L.append(f"ds_read_b64_tr_b16 {vr(WF+8*k+4*b+2*t,2)}, v{AW+(sl==3)} offset:{(sl%3)*WSL+(16*k+4*t)*320+64*b}")
        return L
    lds_wait(PD, W_LW, "gt", 1 if st1 else 4, 8, 1)
    for ks in range(la):
        for x in qrd(ks): a(x)
    for ks in range(40):
        c, k = ks >> 2, ks & 3
        a(f"s_waitcnt lgkmcnt({5 if (k == 4 - la and c < 9) else 5*min(la-1, 39-ks)})")
        chk = None
        if k == 4 - la and c < 9:
            chk = lds_check(PD, W_LW + 4 * (c + 1), "gt", 1 if st1 else 4, 8, 1)
            a(chk[0][0])
        if k == 0 and c > 0 and c < 7: lds_inc(PD, ON, W_CW + 4 * (c - 1))
        if k == 0 and c == look + 1 and look >= 6: lds_inc(PD, ON, W_CW + 4 * (c - 1))
        if stamp and qs == 4 and ks == 16: stamp_mid(a, 3)
        if hmode == 2 and hat and ks == hat: h_part()
        if hmode == 2 and ks == hks + hat:
            a("s_waitcnt vmcnt(0)")
            lds_inc(PD, ON, W_HD)
        if hmode == 1 and ks == hks:
            a(f"""
            s_cmp_lg_u32 s6, s47
            s_cbranch_scc1 {N}_nh2
            s_waitcnt vmcnt(0)
            """)
            lds_inc(PD, ON, W_HD)
            a.label(f"{N}_nh2")
        fill = qrd(ks + la) if ks + la < 40 else []
        if k == 3 - la and c < 9: fill = [f"ds_read_b32 v8, v{PD} offset:{W_LW + 4 * (c + 1)}"] + fill
        for b in range(2):
            a(mfma32(AC[b], WF + 8 * k + 4 * b, XF + 4 * k, AC[b] if ks else None))
            if chk and b == 0:
                a("s_nop 3")
                for x in chk[1]: a(x)
            for x in fill[3 * b:3 * b + 3]: a(x)
    lds_inc(PD, ON, W_QD)
    mark(7, 150)
    if stamp and qs == 0: stamp_mid(a, 3)
    QA0, QB0, QA1, QB1 = attn.QA0, attn.QB0, attn.QA1, attn.QB1
    a(f"v_mov_b32 v22, {hex(f2u(QSCALE))}")
    a(f"v_mov_b32 v23, {hex(f2u(QSCALE))}")
    a("s_nop 7")
    Y, Z = 32, 34
    for (d, r) in ((QA0, AC[0]), (QA0 + 2, AC[0] + 4), (QA1, AC[0] + 8), (Y, AC[0] + 12), (Z, AC[1])):
        a(f"v_pk_mul_f32 {vr(r,2)}, {vr(r,2)}, v[22:23]")
        a(f"v_pk_mul_f32 {vr(r+2,2)}, {vr(r+2,2)}, v[22:23]")
        a(f"v_cvt_pk_bf16_f32 v{d}, v{r}, v{r+1}")
        a(f"v_cvt_pk_bf16_f32 v{d+1}, v{r+2}, v{r+3}")
    a("s_nop 1")
    for i in range(2):
        a(f"v_permlane32_swap_b32 v{QB0+i}, v{Y+i}")
        a(f"v_permlane32_swap_b32 v{QB0+2+i}, v{Z+i}")
    a("s_nop 1")
    for i in range(2):
        a(f"v_permlane32_swap_b32 v{QA1+i}, v{QB0+i}")
        a(f"v_permlane32_swap_b32 v{Y+i}, v{QB0+2+i}")
        a(f"v_permlane32_swap_b32 v{Z+i}, v{QB1+i}")
    a("s_nop 0")
    for r in (QA1, QA1 + 1, QB1, QB1 + 1):
        a(f"v_cndmask_b32_e64 v{r}, v{r}, 0, s[22:23]")
    if stamp: stamp_mid(a, 2)
    attn.bound(a, S, N, lambda: lds_wait(PD, W_LAND, "gt", 1, attn.V_POLL, 1))
    a("s_setprio 0")
    if stamp: stamp_mid(a, 0)
    mark(8, 150)
    attn.main(a, S, N, **akw)
    mark(9, 150)
    if stamp: stamp_mid(a, 1)
    attn.epilogue(a, S, signal=2 if sent else 1)
    if akw.get("clk"):
        a(f"""
        s_mov_b64 exec, 1
        s_mul_i32 s36, s2, 4
        s_add_u32 s36, s36, s70
        s_lshl_b32 s36, s36, 6
        s_add_u32 s36, s36, {WS_END - 4*65536}
        v_mov_b32 v8, 0
        """)
        for i, r in enumerate((34, 35, 32, 33, 30, 31, 28, 29, 24, 25)):
            a(f"v_mov_b32 v9, s{r}")
            a(f"buffer_store_dword v9, v8, s[8:11], s36 offen offset:{4*i}")
    if stamp: stamp_end(a, 8, 70, 0, nw=8)
    a("s_endpgm")
    attn.tails(a, S, N)

    a.label(f"{N}_stg")
    a(f"""
    s_sub_u32 s6, s6, 4
    v_and_b32 v1, 63, v0
    """)
    for i in range(5):
        a(f"""
        v_add_u32 v2, {64*i}, v1
        v_mul_u32_u24 v3, 3277, v2
        v_lshrrev_b32 v3, 16, v3
        v_mul_u32_u24 v3, {1280 - 320}, v3
        v_lshl_add_u32 v{8+i}, v2, 4, v3
        """)
        if 0 < i < 4: a(f"v_subrev_u32 v{8+i}, {1024*i}, v{8+i}")
    a(f"""
    s_mul_i32 s20, s6, {16*1280}
    s_mul_i32 s7, s47, 320
    s_add_u32 s20, s20, s7
    s_mul_i32 s21, s6, 5120
    s_add_u32 s21, s21, {WR}
    v_mov_b32 v1, {LWORD}
    v_mov_b32 v2, 1
    s_waitcnt lgkmcnt(0)
    """)
    srd(a, 12, WQ_, WQ_ + 1, 0, 640 * 1280)
    def wiss(c):
        a(f"s_add_u32 m0, s21, {(c&3)*WSL}")
        a("s_nop 0")
        for i in range(4):
            a(f"buffer_load_dwordx4 v{8+i}, s[12:15], s20 offen offset:{i*1024} lds")
        a(f"s_add_u32 m0, s21, {(c&3)*WSL + 4096}")
        a("s_nop 0")
        a(f"buffer_load_dwordx4 v12, s[12:15], s20 offen lds")
        a(f"s_add_u32 s20, s20, {64*1280}")
    def wpub(c, left):
        a(f"s_waitcnt vmcnt({left})")
        lds_inc(1, 2, W_LW + 4 * c)
    if st1:
        assert not usent
        a(f"""
        s_add_u32 s6, s6, {rot}
        s_and_b32 s6, s6, 3
        s_mul_i32 s20, s6, {64*1280}
        s_mul_i32 s7, s47, 320
        s_add_u32 s20, s20, s7
        s_mul_i32 s21, s6, {WSL}
        s_add_u32 s21, s21, {WR}
        s_lshl_b32 s7, s6, 2
        v_add_u32 v1, s7, v1
        s_barrier
        """)
        for r in range(3):
            if r == 2:
                a("s_cmp_ge_u32 s6, 2")
                a(f"s_cbranch_scc1 {N}_{'pf6' if pfw == 6 else 'g'}")
                late.append(f"""{N}_pf6:
                s_mov_b32 s24, s40
                s_and_b32 s25, s41, 0xffff
                s_mov_b32 s26, {2048*3456}
                s_mov_b32 s27, 0x20000
                s_lshl_b32 s7, s2, 1
                s_add_u32 s7, s7, s6
                s_sub_u32 s7, s7, 2
                s_mul_i32 s7, s7, {4*3456}
                v_and_b32 v2, 63, v0
                v_min_u32 v2, 53, v2
                v_lshlrev_b32 v2, 7, v2
                buffer_load_dword v4, v2, s[24:27], s7 offen
                s_add_u32 s7, s7, {54*128}
                buffer_load_dword v4, v2, s[24:27], s7 offen
                s_branch {N}_g""")
            if r: lds_wait(1, W_CW + 16 * (r - 1), "gt", 4, 3, 1)
            for q in range(4):
                a(f"s_add_u32 m0, s21, {q*5120}")
                a("s_nop 0")
                for i in range(4):
                    a(f"buffer_load_dwordx4 v{8+i}, s[12:15], s20 offen offset:{i*1024}{wmod} lds")
                a(f"s_add_u32 m0, s21, {q*5120 + 4096}")
                a("s_nop 0")
                a(f"buffer_load_dwordx4 v12, s[12:15], s20 offen{wmod} lds")
                a(f"s_add_u32 s20, s20, {16*1280}")
            a(f"s_add_u32 s20, s20, {192*1280}")
            if pfw == 8 and r == 0: spf_w1(spf[1], f"s_mul_i32 s3, s6, {spf[1]}\ns_add_u32 s3, s3, {4*spf[0]}")
            a("s_waitcnt vmcnt(0)")
            lds_inc(1, 2, W_LW + 16 * r)
            if stamp and sm == 5 and r < 2: stamp_mid(a, 2 + r)
    else:
        a("s_barrier")
        if pub0:
            wiss(0); wiss(1); wiss(2); wpub(0, 10); wiss(3)
        else:
            for c in range(4): wiss(c)
        if usent:
            srd(a, 16, 4, 5, 0, WS_END)
            a(f"""
            s_lshr_b32 s25, s2, 5
            s_lshr_b32 s26, s46, 1
            s_mul_i32 s26, s26, 7
            s_add_u32 s26, s26, s25
            s_and_b32 s25, s25, 7
            s_cmp_eq_u32 s25, 7
            s_cselect_b32 s26, 27, s26
            s_cmp_ge_u32 s26, 27
            s_cselect_b32 s27, 0x40000000, 0
            s_and_b32 s25, s46, 1
            s_lshl_b32 s25, s25, 2
            s_add_u32 s25, s25, s47          ; db
            s_lshl_b32 s26, s26, 2
            s_add_u32 s26, s26, s6
            s_mul_i32 s26, s26, 20480
            s_mul_i32 s25, s25, 1280
            s_add_u32 s26, s26, s25
            s_add_u32 s26, s26, {UF_OFF}
            s_add_u32 s26, s26, s27
            v_and_b32 v14, 31, v0
            v_lshlrev_b32 v14, 4, v14
            v_bfe_u32 v15, v0, 5, 1
            v_mul_u32_u24 v15, 10240, v15
            v_add_u32 v14, v14, v15
            v_mov_b32 v16, -1
            v_mov_b32 v17, -1
            v_mov_b32 v18, -1
            v_mov_b32 v19, -1
            buffer_store_dwordx4 v[16:19], v14, s[16:19], s26 offen sc1
            buffer_store_dwordx4 v[16:19], v14, s[16:19], s26 offen offset:512 sc1
            s_mov_b32 exec_lo, 0xffff
            s_mov_b32 exec_hi, 0xffff
            buffer_store_dwordx4 v[16:19], v14, s[16:19], s26 offen offset:1024 sc1
            s_mov_b64 exec, -1
            """)
        if stamp and sm == 6: stamp_mid(a, 2)
        for c in range(1 if pub0 else 0, 4):
            wpub(c, 15 - 5 * c + (3 if usent else 0))
            if stamp and sm == 6 and c == 0: stamp_mid(a, 3)
        if stamp and sm == 5: stamp_mid(a, 2)
        if usent:
            a("s_waitcnt vmcnt(0)")
            lds_inc(1, 2, W_HD)
        for c in range(4, 10):
            if dbg != 3: lds_wait(1, W_CW + 4 * (c - 4), "gt", 4, 3, 1)
            if stamp and sm == 7 and c == 4: stamp_mid(a, 2)
            wiss(c)
            if stamp and sm == 7 and c == 7: stamp_mid(a, 3)
            if c >= 6: wpub(c - 2, 10)
        wpub(8, 5); wpub(9, 0)
        if stamp and sm == 5: stamp_mid(a, 3)
    a(f"s_branch {N}_g")

    a.label(f"{N}_w8")
    a(f"""
    s_setprio {w8prio}
    v_and_b32 v1, 63, v0
    v_lshlrev_b32 v2, 2, v1
    v_add_u32 v2, {LWORD}, v2
    v_mov_b32 v4, 0
    v_mov_b32 v5, 0
    v_mov_b32 v6, 0
    v_mov_b32 v7, 0
    ds_write_b32 v2, v4
    v_lshlrev_b32 v1, 4, v1
    s_waitcnt lgkmcnt(0)
    s_barrier
    """)
    def wdma_kv():
        a(f"""
        s_cmp_ge_u32 s47, 2
        s_cbranch_scc1 {N}_nw
        s_cmp_eq_u32 s47, 0
        s_cselect_b32 s12, s80, s82
        s_cselect_b32 s13, s81, s83
        s_and_b32 s13, s13, 0xffff
        s_mov_b32 s14, 25600
        s_mov_b32 s15, 0x20000
        s_mov_b32 s7, 0
        """)
        for h in range(7):
            a(f"s_mov_b32 m0, {h*4096}")
            a("s_nop 0")
            for i in range(4 if h < 6 else 1):
                a(f"buffer_load_dwordx4 v1, s[12:15], s7 offen offset:{i*1024} lds")
            a("s_add_u32 s7, s7, 4096")
        a.label(f"{N}_nw")
    if wfirst: wdma_kv()
    if pfq:
        srd(a, 12, WQ_, WQ_ + 1, 0, 640 * 1280)
        a(f"""
        s_lshr_b32 s7, s2, 3
        s_mul_i32 s7, s7, {12*1280}
        s_add_u32 s7, s7, {256*1280}
        v_lshrrev_b32 v2, 4, v1
        v_min_u32 v2, 59, v2
        v_lshlrev_b32 v2, 7, v2
        buffer_load_dword v127, v2, s[12:15], s7 offen{pfm}
        s_add_u32 s7, s7, {60*128}
        buffer_load_dword v127, v2, s[12:15], s7 offen{pfm}
        """)
    srd(a, 8, 4, 5, 0, WS_END)
    a(f"""
    s_cmp_lg_u32 s2, 24
    s_cbranch_scc1 {N}_nz
    s_mov_b32 s20, {FL_OFF}
    """)
    for i in range(16):
        a(f"buffer_store_dwordx4 v[4:7], v1, s[8:11], s20 offen offset:{(i&3)*1024} sc1")
        if i & 3 == 3: a("s_add_u32 s20, s20, 4096")
    a(f"""
    v_mov_b32 v2, 1
    s_waitcnt vmcnt(0)
    s_mov_b64 exec, 1
    global_store_dword v4, v2, s[78:79] sc1
    s_mov_b64 exec, -1
    """)
    a.label(f"{N}_nz")
    if tlb:
        a(f"""
        s_lshr_b32 s7, s2, 3
        s_cmp_lg_u32 s7, 30
        s_cbranch_scc1 {N}_nt
        v_lshlrev_b32 v2, 16, v1
        """)
        srd(a, 12, 4, 5, 0, Y_OFF)
        a("buffer_load_dword v127, v2, s[12:15], 0 offen")
        srd(a, 12, W2_, W2_ + 1, 0, 1728 * 4096)
        a("buffer_load_dword v127, v2, s[12:15], 0 offen")
        srd(a, 12, 74, 75, 0, 2048 * 1280)
        a("buffer_load_dword v127, v2, s[12:15], 0 offen")
        srd(a, 12, 44, 45, 0, 640 * 1280)
        a("buffer_load_dword v127, v2, s[12:15], 0 offen")
        srd(a, 12, 40, 41, 0, 2048 * 3456)
        a("buffer_load_dword v127, v2, s[12:15], 0 offen")
        a.label(f"{N}_nt")
    if not wfirst: wdma_kv()
    def pf_w1(cond=None):
        i_ = uid[0]; uid[0] += 1
        if cond:
            a(f"s_cmp_{cond}_u32 s2, {pfn0}")
            a(f"s_cbranch_scc0 {N}_pw{i_}")
        srd(a, 24, 40, 41, 0, 2048 * 3456)
        if pfc:
            a(f"""
            s_lshr_b32 s7, s2, 3
            s_mul_i32 s7, s7, {64*3456}
            s_lshr_b32 s3, s46, 1
            s_mul_i32 s3, s3, 896
            s_add_u32 s7, s7, s3
            v_and_b32 v2, 63, v0
            v_mul_u32_u24 v2, 3456, v2
            """)
            for i in range(7):
                a(f"buffer_load_dword v127, v2, s[24:27], s7 offen offset:{i*128}{pfm}")
            a.label(f"{N}_pw{i_}")
            return
        a(f"""
        s_mul_i32 s7, s2, {8*3456}
        v_and_b32 v2, 63, v0
        v_min_u32 v2, 53, v2
        v_lshlrev_b32 v2, 7, v2
        """)
        if bal:
            a(f"""
            s_cmp_lt_u32 s47, 2
            s_cbranch_scc1 {N}_pw{i_}
            s_lshr_b32 s7, s2, 5
            s_lshl_b32 s7, s7, 4
            s_and_b32 s3, s2, 15
            s_add_u32 s7, s7, s3
            s_mul_i32 s7, s7, {16*3456}
            """)
        for i in range(8 if bal else 4):
            a(f"buffer_load_dword v127, v2, s[24:27], s7 offen{pfm}")
            a(f"s_add_u32 s7, s7, {54*128}")
        a.label(f"{N}_pw{i_}")
    npf = 0
    if pfw == 0:
        pf_w1(); npf = 7 if pfc else 0 if bal else 4
    elif pfn0:
        pf_w1("lt")
    if pfw == 8: spf_w1(216 - 4 * spf[0] - 4 * spf[1], f"s_mov_b32 s3, {4*spf[0] + 4*spf[1]}")
    T = 10; AX = 16; AW = 24; XF = 28; WF = 44; ACC = 64; PK = 80; SX = 90; ZV = 92
    frag_addr(AX, T); tr_addr(AW, T, 40); row_addr(26, T, 47)
    a(f"""
    v_mov_b32 v3, {LWORD}
    v_mov_b32 v5, 1
    v_and_b32 v{T+3}, 31, v0
    v_bfe_u32 v{T+4}, v0, 5, 1
    s_waitcnt vmcnt({npf + (2 if (pfq and wfirst) else 0)})
    """)
    if pfw == 5:
        lds_wait(3, W_LW + 4, "gt", 4, 4, 2)
        pf_w1()
    lds_wait(3, W_XN, "gt", 4, 4, 2)
    if pfw == 4: pf_w1()
    a(f"""
    s_cmp_ge_u32 s47, {0 if dbg in (1,2,3) else 2}
    s_cbranch_scc1 {N}_h
    """)
    def krd(ks):
        k = ks & 3
        return [f"ds_read_b128 {vr(XF+4*k,4)}, v{AX+(ks&7)} offset:{(ks>>3)*256}"] + \
               [f"ds_read_b64_tr_b16 {vr(WF+4*k+2*t,2)}, v{AW} offset:{(16*ks+4*t)*40}" for t in range(2)]
    for ks in range(3):
        for x in krd(ks): a(x)
    for ks in range(40):
        a(f"s_waitcnt lgkmcnt({3*min(2, 39-ks)})")
        a(mfma32(ACC, WF + 4 * (ks & 3), XF + 4 * (ks & 3), ACC if ks else None))
        if ks + 3 < 40:
            for x in krd(ks + 3): a(x)
    a(f"""
    s_mul_i32 s20, s49, {TILE_B}
    s_add_u32 s20, s20, {KV_OFF}
    v_cmp_eq_u32 vcc, 1, v{T+4}
    s_nop 7
    s_nop 1
    """)
    for i in range(6): a(f"v_cvt_pk_bf16_f32 v{PK+i}, v{ACC+2*i}, v{ACC+2*i+1}")
    a(f"""
    s_cmp_eq_u32 s47, 1
    s_cbranch_scc1 {N}_v
    buffer_store_dwordx4 {vr(PK,4)}, v1, s[8:11], s20 offen sc1
    v_cndmask_b32_e64 v{PK+4}, v{PK+4}, 0, vcc
    v_cndmask_b32_e64 v{PK+5}, v{PK+5}, 0, vcc
    v_lshlrev_b32 v{T+1}, 3, v{T+3}
    s_mov_b32 exec_hi, 0
    buffer_store_dwordx2 {vr(PK+4,2)}, v{T+1}, s[8:11], s20 offen offset:{K1_OFF_T} sc1
    s_mov_b32 exec_hi, -1
    v_dot2_f32_bf16 v{SX}, v{PK}, v{PK}, 0
    """)
    for i in range(1, 6): a(f"v_dot2_f32_bf16 v{SX}, v{PK+i}, v{PK+i}, v{SX}")
    a("s_nop 2")
    half_sum(a, SX, T)
    def wavemax(r, t, full):
        for k in (8, 4, 2, 1):
            a("s_nop 1")
            a(f"v_max_f32_dpp v{r}, v{r}, v{r} row_ror:{k} row_mask:0xf bank_mask:0xf")
        for sw in ("v_permlane16_swap_b32", "v_permlane32_swap_b32")[:2 if full else 1]:
            a(f"""
            v_mov_b32 v{t}, v{r}
            s_nop 1
            {sw} v{r}, v{t}
            s_nop 1
            v_max_f32 v{r}, v{r}, v{t}
            """)
    wavemax(SX, T, False)
    a(f"""
    s_lshl_b32 s21, s49, {7 if kmw else 2}
    s_add_u32 s21, s21, {KV_OFF - 8192 if kmw else KM_OFF}
    v_mov_b32 v{T}, 0
    s_mov_b64 exec, 1
    buffer_store_dword v{SX}, v{T}, s[8:11], s21 offen sc1
    s_mov_b64 exec, -1
    s_branch {N}_h
    """)
    a.label(f"{N}_v")
    a(f"""
    v_lshlrev_b32 v{T}, 6, v{T+3}
    v_lshl_add_u32 v{T}, v{T+4}, 3, v{T}
    ds_write_b64 v{T}, {vr(PK,2)} offset:{VST}
    ds_write_b64 v{T}, {vr(PK+2,2)} offset:{VST+16}
    ds_write_b64 v{T}, {vr(PK+4,2)} offset:{VST+32}
    v_bfe_u32 v{T}, v0, 2, 2
    v_lshl_add_u32 v{T}, v{T+4}, 2, v{T}
    v_lshlrev_b32 v{T}, 6, v{T}
    v_bfe_u32 v{T+1}, v0, 4, 1
    v_lshl_add_u32 v{T}, v{T+1}, 5, v{T}
    v_and_b32 v{T+1}, 3, v0
    v_lshl_add_u32 v{T}, v{T+1}, 3, v{T}
    s_waitcnt lgkmcnt(0)
    """)
    for t in range(2):
        for u in range(2):
            a(f"ds_read_b64_tr_b16 {vr(PK+4*t+2*u,2)}, v{T} offset:{VST+(16*t+8*u)*64}")
    a(f"""
    v_cmp_eq_u32 vcc, 20, v{T+3}
    v_mov_b32 v{T+1}, s60
    s_nop 0
    v_cndmask_b32_e64 v{T+1}, 0, v{T+1}, vcc
    v_cmp_gt_u32 vcc, 20, v{T+3}
    v_mul_u32_u24 v{T+2}, {V_PLANE}, v{T+4}
    v_lshl_add_u32 v{T+2}, v{T+3}, 4, v{T+2}
    s_waitcnt lgkmcnt(0)
    """)
    for i in range(8): a(f"v_cndmask_b32_e64 v{PK+i}, v{T+1}, v{PK+i}, vcc")
    a(f"""
    v_cmp_eq_u32 vcc, 26, v{T+3}
    v_mov_b32 v{T+1}, 0x3f80
    s_nop 0
    v_cndmask_b32_e64 v{PK}, v{PK}, v{T+1}, vcc
    s_mov_b32 exec_lo, 0x0fffffff
    s_mov_b32 exec_hi, 0x0fffffff
    buffer_store_dwordx4 {vr(PK,4)}, v{T+2}, s[8:11], s20 offen offset:{V_OFF_T} sc1
    buffer_store_dwordx4 {vr(PK+4,4)}, v{T+2}, s[8:11], s20 offen offset:{V_OFF_T+2*V_PLANE} sc1
    s_mov_b64 exec, -1
    """)
    a.label(f"{N}_h")
    if stamp: stamp_mid(a, 2)
    if hmode == 0:
        HX = 40
        for i in range(10):
            a(f"ds_read_b128 {vr(HX+4*i,4)}, v{26+(i&1)} offset:{(i>>1)*256}")
        zload(ZV)
        a(f"""
        s_lshl_b32 s7, s49, 2
        s_add_u32 s7, s7, s47
        s_mul_i32 s21, s7, 10240
        s_add_u32 s21, s21, {HF_OFF}
        """)
        ln_pass(HX, 96, 100, lambda i: f"s_waitcnt lgkmcnt({9-i})")
        transpose_tail(a, 32, 8, 21, HST, store_mod=" sc1")
    else:
        zload(ZV)
        lds_wait(3, W_HD, "gt", (4 if hmode == 2 else 1) + (4 if usent else 0), 4, 2)
    a(f"""
    s_lshr_b32 s7, s49, 2
    s_lshl_b32 s7, s7, 7
    s_add_u32 s7, s7, {FL4_OFF}
    """)
    if stamp: stamp_mid(a, 0)
    publish(ZV, ZV + 1, 7)
    a("s_mov_b64 exec, -1")
    if stamp: stamp_mid(a, 1)
    if pfw == 1 and not mlate: pf_w1('ge' if pfn0 else None)
    a(f"""
    s_setprio {lprio}
    s_add_u32 s8, s4, {KV_OFF}
    s_addc_u32 s9, s5, 0
    s_and_b32 s9, s9, 0xffff
    s_mov_b32 s10, {KV_SZ}
    s_mov_b32 s11, 0x20000
    s_mov_b32 s12, 0
    s_mov_b32 s13, 4                 ; chunk n
    v_lshlrev_b32 v6, 3, v1
    v_add_u32 v6, {FL4_OFF}, v6
    """)
    if master:
        a(f"""
        s_cmp_lg_u32 s2, 24
        s_cbranch_scc1 {N}_nm
        """)
        g_wait(6, 16, 4, msleep, mask=0xffff)
        a(f"""
        v_lshlrev_b32 v6, 3, v1
        v_add_u32 v6, {FL3_OFF}, v6
        s_mov_b32 exec_hi, 0
        global_store_dword v6, v5, s[4:5] sc1
        s_mov_b32 exec_hi, -1
        """)
        a.label(f"{N}_nm")
        if pfw == 1 and mlate: pf_w1('ge' if pfn0 else None)
        a(f"""
        s_lshl_b32 s17, s48, 7
        s_add_u32 s17, s17, {FL3_OFF}
        v_mov_b32 v6, s17
        """)
        if look: lds_wait(3, W_CW + 4 * look, "gt", 1, 4, 4)
        if spoll: s_wait(17, 1, rsleep)
        else: g_wait(6, 1, 4, rsleep)
    else:
        lds_wait(3, W_QD if look == 9 else W_CW + 4 * look, "gt", 1, 4, 4)
        g_wait(6, 16, 4, hsleep, mask=0xffff)
    if stamp: stamp_mid(a, 3)
    def iss(n):
        for h in range(3):
            a(f"s_mov_b32 m0, {n*CHUNK + h*4096}")
            a("s_nop 0")
            for i in range(4):
                a(f"buffer_load_dwordx4 v1, s[8:11], s12 offen offset:{i*1024} sc1 lds")
            a(f"s_add_u32 s12, s12, 4096")
    def pub(n, left):
        a(f"s_waitcnt vmcnt({left})")
        lds_inc(3, 5, W_LAND + 4 * n)
    a(f"""
    {"v_lshlrev_b32 v6, 3, v1" if kmw else "v_lshrrev_b32 v6, 2, v1"}
    v_add_u32 v6, {KV_OFF - 8192 if kmw else KM_OFF}, v6
    global_load_dword v7, v6, s[4:5] sc1
    ds_write_b32 v3, v5 offset:{W_GO}
    """)
    iss(0); iss(1)
    e7 = 0
    if pfw == 7:
        pf_w1('ge' if pfn0 else None); e7 = 0 if pfn0 else 4
    a(f"s_waitcnt vmcnt({24+e7})")
    wavemax(7, 6, True)
    a(f"ds_write_b32 v3, v7 offset:{W_KM}")
    pub(0, 12 + e7); pub(1, e7)
    lds_wait(3, W_QD, "gt", 4, 4, 2)
    iss(2); iss(3); pub(2, 12); pub(3, 0)
    if pfw == 2: pf_w1('ge' if pfn0 else None)
    a.label(f"{N}_ld")
    a(f"""
    s_and_b32 s14, s13, 3
    s_add_u32 s15, s14, 1
    s_and_b32 s15, s15, 3
    s_lshl_b32 s15, s15, 2
    s_add_u32 s15, s15, {LWORD}
    v_mov_b32 v2, s15
    s_add_u32 s15, s13, 1
    s_andn2_b32 s15, s15, 3          ; needs 4*(((n-3)>>2)+1)
    """)
    lds_wait(2, W_ARR, "gt", "s15", 4, lsleep)
    a(f"s_mul_i32 s16, s14, {CHUNK}")
    for h in range(3):
        a(f"s_add_u32 m0, s16, {h*4096}")
        a("s_nop 0")
        for i in range(4):
            a(f"buffer_load_dwordx4 v1, s[8:11], s12 offen offset:{i*1024} sc1 lds")
        a(f"s_add_u32 s12, s12, 4096")
    a(f"""
    s_lshl_b32 s14, s14, 2
    s_add_u32 s14, s14, {LWORD}
    v_mov_b32 v2, s14
    s_add_u32 s13, s13, 1
    s_waitcnt vmcnt(0)
    """)
    lds_inc(2, 5, W_LAND)
    def l_mid():
        a(f"""
        s_cmp_lt_u32 s2, 224
        s_cbranch_scc1 {N}_ld_np
        """)
        srd(a, 24, W2_, W2_ + 1, 0, 1728 * 4096)
        a(f"""
        s_sub_u32 s17, s2, 224
        s_mul_i32 s18, s17, {54*4096}
        v_and_b32 v6, 63, v0
        v_lshlrev_b32 v6, 7, v6
        s_mov_b32 s17, 27
        """)
        a.label(f"{N}_pfl")
        a(f"""
        buffer_load_dword v8, v6, s[24:27], s18 offen{pfm2}
        s_add_u32 s18, s18, 8192
        s_sub_u32 s17, s17, 1
        s_cmp_lg_u32 s17, 0
        s_cbranch_scc1 {N}_pfl
        """)
    def l_end():
        srd(a, 24, 4, 5, 0, WS_END)
        a(f"v_mov_b32 v6, {FL_OFF + 384}")
        g_wait(6, 80, 7, 8)
        a(f"ds_write_b32 v3, v5 offset:{W_WK}")
        a(f"""
        s_lshr_b32 s17, s2, 3
        s_and_b32 s20, s17, 7
        s_mul_i32 s17, s17, 25600
        s_add_u32 s17, s17, {WOF_OFF}
        v_and_b32 v6, 63, v0
        v_min_u32 v6, 49, v6
        v_lshlrev_b32 v6, 7, v6
        """)
        for i in range(4):
            a("buffer_load_dword v8, v6, s[24:27], s17 offen")
            a("s_add_u32 s17, s17, 6400")
        a(f"""
        v_and_b32 v6, 15, v0
        v_bfe_u32 v7, v0, 4, 2
        v_mul_u32_u24 v7, 10240, v7
        v_lshl_add_u32 v6, v6, 4, v7
        s_mul_i32 s20, s20, 1280
        s_add_u32 s20, s20, {WOF_OFF}
        """)
        for k in range(8):
            if k in (2, 4, 6):
                c = 13 + (k - 2) // 2
                lds_wait(3, W_ARR + 4 * (c & 3), "gt", 16, 4, lsleep)
            for j in range(5):
                a(f"s_mov_b32 m0, {waddr(k) + j*768}")
                a("s_nop 0")
                a(f"buffer_load_dwordx4 v6, s[24:27], s20 offen offset:{j*256} sc1 lds")
            a(f"s_add_u32 s20, s20, 40960")
        a(f"""
        s_lshl_b32 s17, s48, 7
        s_add_u32 s17, s17, {FL2_OFF}
        v_mov_b32 v6, s17
        """)
        if sent:
            a("s_waitcnt vmcnt(0)")
        else:
            lds_wait(3, W_OP, "gt", 4, 4, 2)
            g_wait(6, 32, 4, osleep)
    a(f"s_cmp_lg_u32 s13, {pf_at if pf2 else 99}")
    a(f"s_cbranch_scc1 {N}_ld_np")
    l_mid()
    a.label(f"{N}_ld_np")
    a(f"""
    s_cmp_lg_u32 s13, 16
    s_cbranch_scc1 {N}_ld
    """)
    l_end()
    if stamp:
        a("s_mov_b32 s70, 0")
        stamp_end(a, 24, 70, 1, nw=1)
    a("s_endpgm")

    a.label(f"{N}_g")
    S = dict(GS); g = G2()
    VFA, VPA, VPOLL = g.tmp + 8, g.tmp + 9, g.tmp + 10
    VONE = g.ONE
    a(f"""
    s_sub_u32 s6, s70, 4
    s_lshr_b32 s47, s2, 3
    s_mov_b32 s60, s48
    s_and_b32 s48, s46, 1
    s_lshl_b32 s48, s48, 2
    s_and_b32 s49, s47, 3
    s_add_u32 s48, s48, s49          ; db
    s_lshr_b32 s49, s46, 1
    s_lshr_b32 s50, s47, 2
    s_and_b32 s64, s47, 7            ; db (B2)
    s_mul_i32 s49, s49, 7
    s_add_u32 s49, s49, s50          ; fb
    s_mul_i32 s52, s48, 1280         ; db*80*16
    v_mov_b32 v{VONE}, 1
    """)
    P2 = dict(mode="TF", srdT=12, srdF=16, strideT=4096, planeF=10240, W=4, TisA=False, fmod=" sc1", tmod=tmod)
    def b2_x():
        srd(a, 20, X_, X_ + 1, 0, 2048 * 1280)
        srd(a, 24, 72, 73, 0, 4096)
        a(f"""
        s_lshl_b32 s53, s60, 2
        s_add_u32 s53, s53, s6
        s_lshl_b32 s7, s53, 5
        s_mul_i32 s53, s53, {16*1280}
        s_mul_i32 s55, s64, 160
        s_add_u32 s53, s53, s55
        v_and_b32 v1, 15, v0
        v_lshlrev_b32 v4, 1, v1
        v_mul_u32_u24 v1, 1280, v1
        v_bfe_u32 v5, v0, 4, 2
        v_lshl_add_u32 v1, v5, 3, v1
        buffer_load_ushort v4, v4, s[24:27], s7 offen
        """)
        for j in range(5):
            a(f"buffer_load_dwordx2 {vr(g.FB[2]+2*j,2)}, v1, s[20:23], s53 offen offset:{j*32}")
    def b2_t():
        srd(a, 12, W2_, W2_ + 1, 0, 1728 * 4096)
        srd(a, 16, 4, 5, UF_OFF, UF_SZ)
        a(f"v_bfe_u32 v{g.tmp+2}, v0, 4, 2")
        setup_T(a, g, 4096)
        a("s_lshl_b32 s51, s60, 7")
        a("s_mul_i32 s52, s64, 1280")
        a(f"s_add_u32 s63, s6, {krot}")
        a("s_and_b32 s63, s63, 3")
        init_offsets(a, g, dict(S, w=63), P2, 51, 52)
        issue(a, g, S, 0, P2, "T"); issue(a, g, S, 1, P2, "T")
    def b2_early():
        b2_x(); b2_t()
    nsy = [0]
    def arrive4(va=VFA):
        a(f"v_mov_b32 v{va}, {LWORD}")
        lds_inc(va, VONE, W_SY + 4 * nsy[0])
    def wait4(va=VFA, vp=VPOLL):
        lds_wait(va, W_SY + 4 * nsy[0], "gt", 4, vp, 1)
        nsy[0] += 1
    def sync4():
        arrive4(); wait4()
    srd(a, 8, 4, 5, 0, WS_END)
    setup_lane(a, g, S, GBASE)
    setup_F(a, g, g.vF, 10240)
    a(f"""
    s_cmp_eq_u32 s50, 7
    s_cbranch_scc1 {N}_wo
    s_cmp_ge_u32 s49, 27
    s_cbranch_scc1 {N}_nob1
    """)
    srd(a, 12, 40, 41, 0, 2048 * 3456)
    srd(a, 16, 4, 5, HF_OFF, HF_SZ)
    srd(a, 20, 42, 43, 0, 1728 * 2)
    P = dict(mode="TF", srdT=12, srdF=16, strideT=3456, planeF=10240, W=4, TisA=True, fmod=" sc1", tmod=tmod)
    setup_T(a, g, 3456)
    a("s_lshl_b32 s51, s49, 7")
    init_offsets(a, g, S, P, 51, 52)
    a(f"""
    v_lshlrev_b32 v1, 3, v{g.tmp+2}
    s_lshl_b32 s53, s6, 5
    s_add_u32 s53, s53, s51
    buffer_load_dwordx2 v[2:3], v1, s[20:23], s53 offen
    """)
    a(f"""
    s_lshl_b32 s54, s49, 3
    s_lshl_b32 s55, s6, 1
    s_add_u32 s54, s54, s55
    s_mul_i32 s54, s54, 10240
    s_add_u32 s54, s54, s52
    s_add_u32 s54, s54, {UF_OFF}
    v_mov_b32 v1, {LWORD}
    """)
    if fe:
        lds_wait(1, W_GO, "gt", 1, g.JUNK, gsl)
        roll_prologue(a, g, S, P, tpart=False)
        lds_wait(1, W_QD, "gt", 4, g.JUNK, gsl)
        roll_prologue(a, g, S, P, fpart=False)
    else:
        lds_wait(1, W_QD, "gt", 4, g.JUNK, gsl)
        lds_wait(1, W_GO, "gt", 1, g.JUNK, gsl)
        mark(1)
        roll_prologue(a, g, S, P)
    if stamp and sm == 0: stamp_mid(a, 2)
    main_loop(a, g, S, P, N + "_b1", 16, prios=p1, ffirst=fe)
    a(f"s_setprio {eprio}")
    if stamp: stamp_mid(a, 0)
    mark(2)
    reduce4(a, g, S, GBASE, sync4, mid=b2_x if xe else None, va=1 if rva else None)
    b1_epilogue(a, g, S, 8, 54, 2, store_mod=" sc1")
    if stamp and sm == 0: stamp_mid(a, 3)
    if xe: b2_t()
    if not usent:
        a(f"""
        s_mul_i32 s3, s49, 57
        s_lshr_b32 s3, s3, 9             ; fb / 9
        s_lshl_b32 s7, s48, 2
        s_add_u32 s7, s7, s3
        s_lshl_b32 s7, s7, 7
        s_add_u32 s7, s7, {FL_OFF}
        v_mov_b32 v1, s7
        v_mov_b32 v2, {LWORD}
        s_waitcnt vmcnt({8 if xe else 0})
        s_mov_b64 exec, 1
        """)
        if u1:
            a(f"""
            ds_add_rtn_u32 v2, v2, v{VONE} offset:{W_UD}
            s_waitcnt lgkmcnt(0)
            v_readfirstlane_b32 s3, v2
            s_nop 0
            s_cmp_lg_u32 s3, 3
            s_cbranch_scc1 {N}_nu
            """)
        a(f"global_atomic_add v1, v{VONE}, s[4:5] sc1")
        a.label(f"{N}_nu")
        a("s_mov_b64 exec, -1")
    if not xe:
        b2_early()
        a("s_waitcnt vmcnt(8)")
    if stamp and sm == 1: stamp_mid(a, 2)
    a(f"s_branch {N}_b2")
    a.label(f"{N}_wo")
    a(f"""
    s_and_b32 s47, s47, 3
    s_lshl_b32 s47, s47, 3
    s_add_u32 s47, s47, s46
    s_lshl_b32 s47, s47, 2
    s_add_u32 s47, s47, s6           ; task
    s_cmp_ge_u32 s47, 80
    s_cbranch_scc1 {N}_nob1
    s_mul_i32 s51, s47, 10240
    s_add_u32 s53, s51, {WOF_OFF}
    """)
    srd(a, 12, 44, 45, 0, 640 * 1280)
    a(f"v_mov_b32 v1, {LWORD}")
    lds_wait(1, W_QD, "gt", 4, 2, 4)
    lds_wait(1, W_GO, "gt", 1, 2, 4)
    a("v_mov_b32 v2, 1")
    transpose_task(a, g.ACC, S, 12, 51, 8, 53, S["lb"], store_mod=" sc1")
    a(f"s_mov_b32 s7, {FL_OFF + 384}")
    publish(2, 1, 7, mask=0xff, lane_stride=9)
    a("s_mov_b64 exec, -1")
    a.label(f"{N}_nob1")
    a(f"s_setprio {eprio}")
    a(f"v_mov_b32 v1, {LWORD}")
    lds_wait(1, W_QD, "gt", 4, 2, 4)
    b2_early()
    a(f"v_mov_b32 v{VPA}, {LWORD}")
    lds_wait(VPA, W_ARR + 4 * (pch & 3), "ge", 4 * (pch >> 2), VPOLL, 8)
    a("s_waitcnt vmcnt(8)")
    a.label(f"{N}_b2")
    a("v_mov_b32 v3, v4")
    for i in range(10):
        a(f"v_lshlrev_b32 v{g.ACC+2*i}, 16, v{g.FB[2]+i}")
        a(f"v_and_b32 v{g.ACC+2*i+1}, 0xffff0000, v{g.FB[2]+i}")
    if not usent:
        a(f"""
        s_lshl_b32 s7, s64, 9
        s_add_u32 s7, s7, {FL_OFF}
        v_and_b32 v1, 3, v0
        v_lshl_add_u32 v1, v1, 7, s7
        s_add_u32 s82, s4, s7
        s_addc_u32 s83, s5, 0
        s_mov_b32 s62, 0
        s_add_u32 s68, s63, 4
        s_cmp_ge_u32 s63, 2
        s_cselect_b32 s65, 12, 13
        """)
    def poll(lab, back, first=False):
        if upoll:
            a.label(lab)
            a(f"""
            s_load_dword s24, s[82:83], 0 glc
            s_load_dword s25, s[82:83], 128 glc
            s_load_dword s26, s[82:83], 256 glc
            s_load_dword s27, s[82:83], 384 glc
            s_add_u32 s62, s62, 1
            s_cmp_ge_u32 s62, {LIM}
            s_waitcnt lgkmcnt(0)
            s_cbranch_scc1 {back}
            s_cmp_ge_u32 s26, {9 if u1 else 36}
            s_cselect_b32 s66, 64, 36
            s_cmp_ge_u32 s25, {9 if u1 else 36}
            s_cselect_b32 s66, s66, 18
            s_cmp_ge_u32 s24, {9 if u1 else 36}
            s_cselect_b32 s66, s66, 0
            """)
            if first:
                a("s_cmp_ge_u32 s27, 80")
                a("s_cselect_b32 s66, s66, 0")
        else:
            a.label(lab)
            a(f"""
            s_mov_b64 exec, 15
            global_load_dword v2, v1, s[4:5] sc1
            s_mov_b64 exec, -1
            s_waitcnt vmcnt(0)
            v_cmp_le_u32 vcc, {0 if dbg == 4 else 9 if u1 else 36}, v2
            s_add_u32 s62, s62, 1
            s_cmp_ge_u32 s62, {LIM}
            s_cbranch_scc1 {back}
            s_and_b32 s66, vcc_lo, 7
            s_xor_b32 s67, s66, 15
            s_ff1_i32_b32 s67, s67
            s_mul_i32 s66, s67, 18
            s_cmp_eq_u32 s67, 3
            s_cselect_b32 s66, 64, s66
            """)
            if first:
                a(f"""
                v_readlane_b32 s69, v2, 3
                s_nop 0
                s_cmp_lt_u32 s69, 80
                s_cselect_b32 s66, 0, s66
                """)
        a(f"""
        s_cmp_lt_u32 s68, s66
        s_cbranch_scc1 {back}
        s_sleep {psleep}
        s_branch {lab}
        """)
    if usent:
        a('s_mov_b32 s62, 0')
        arrive4(4)
    else:
        a(f"""
        v_mov_b32 v{g.tmp+11}, {LWORD + W_SH}
        s_cmp_lg_u32 s6, 0
        s_cbranch_scc1 {N}_go2
        """)
        if stamp and sm == 1: stamp_mid(a, 3)
        poll(f"{N}_poll", f"{N}_go", True)
        a.label(f"{N}_go")
        a(f"""
        v_mov_b32 v{VFA}, s66
        ds_write_b32 v{g.tmp+11}, v{VFA}
        s_waitcnt lgkmcnt(0)
        """)
        a.label(f"{N}_go2")
        sync4()
        a(f"""
        ds_read_b32 v{VFA}, v{g.tmp+11}
        s_waitcnt lgkmcnt(0)
        v_readfirstlane_b32 s66, v{VFA}
        """)
    stubs = []
    def check():
        i = len(stubs); stubs.append(i)
        a(f"""
        s_add_u32 s68, s68, 4
        s_cmp_ge_u32 s68, s66
        s_cbranch_scc1 {N}_ck{i}
        """)
        a.label(f"{N}_ckb{i}")
    def fcheck(b):
        i = uid[0]; uid[0] += 1
        F_ = g.FB[b]
        ck = [f"v_max3_u32 v2, v{F_}, v{F_+1}, v{F_+2}"] + [f"v_max3_u32 v2, v2, v{F_+j}, v{F_+j+1}" for j in range(3, 19, 2)] + \
             [f"v_max_u32 v2, v2, v{F_+19}", "v_cmp_eq_u32 vcc, -1, v2", "s_nop 4"]
        a(f"s_setprio {eprio}")
        for x in ck: a(x)
        a("s_setprio 0")
        a(f"s_cbranch_vccnz {N}_ux{i}")
        a.label(f"{N}_ub{i}")
        sf = S["sf"]
        late.append(f"""{N}_ux{i}:
        s_setprio {eprio}
        s_sub_u32 s7, s{sf}, {2*4*4*10240}
        {N}_uy{i}:
        s_add_u32 s62, s62, 1
        s_cmp_ge_u32 s62, 0x4000
        s_cbranch_scc1 {N}_uz{i}
        s_sleep {usleep}
        """ + "\n".join(f"buffer_load_dwordx4 {vr(F_+4*j,4)}, v{g.vF}, s[16:19], s7 offen offset:{j*256} sc1" for j in range(5)) + f"""
        s_waitcnt vmcnt(0)
        """ + "\n".join(ck) + f"""
        s_cbranch_vccnz {N}_uy{i}
        {N}_uz{i}:
        s_setprio 0
        s_branch {N}_ub{i}""")
    if stamp: stamp_mid(a, 1)
    mark(3)
    roll_prologue(a, g, S, P2, tpart=False)
    if usent: wait4(4, 2)
    issue(a, g, S, 2, P2, "T")
    a("s_setprio 0")
    main_loop(a, g, S, P2, N + "_b2l", 14, midentry=True, czero=5, check=None if usent else check, prios=p2, fcheck=fcheck if usent else None, cnt_s=65)
    a(f"s_setprio {eprio}")
    if stamp and sm == 3: stamp_mid(a, 2)
    OFR = lambda k: 92 + 4 * k if k < 5 else 124 + 4 * (k - 5) if k < 16 else 8 if k == 16 else 112 + 4 * (k - 17)
    def wdma(koff, ldsoff):
        a(f"s_add_u32 s7, s21, {koff*40960}")
        for j in range(5):
            a(f"s_add_u32 m0, s{S['lb']}, {ldsoff + j*768}")
            a("s_nop 0")
            a(f"buffer_load_dwordx4 v2, s[8:11], s7 offen offset:{j*256} sc1 lds")
    def o_early():
        for k in range(17):
            a(f"buffer_load_dwordx4 {vr(OFR(k),4)}, v1, s[8:11], s20 offen sc1")
            a(f"s_add_u32 s20, s20, {4*32768}")
    def w_first():
        a(f"""
        v_and_b32 v5, 15, v0
        v_bfe_u32 v6, v0, 4, 2
        v_lshlrev_b32 v5, 4, v5
        v_lshl_add_u32 v1, v6, 15, v5
        v_mul_u32_u24 v2, 10240, v6
        v_add_u32 v2, v2, v5
        s_mul_i32 s21, s64, 1280
        s_mul_i32 s7, s6, 40960
        s_add_u32 s21, s21, s7
        s_add_u32 s21, s21, {WOF_OFF}
        s_lshl_b32 s20, s60, 2
        s_add_u32 s20, s20, s6
        s_lshl_b32 s20, s20, 8
        s_add_u32 s20, s20, {OF_OFF}
        """)
        if usent:
            a(f"v_mov_b32 v5, {LWORD}")
            lds_wait(5, W_WK, "gt", 1, 6, 4)
        wdma(8, 0)
        a(f"s_mul_i32 s7, s6, 40960")
        a(f"s_add_u32 s21, s21, s7")
        a("s_mov_b32 s22, s20")
        if oe == 1: o_early()
    reduce4(a, g, S, GBASE, sync4, mid=w_first, post=o_early if oe == 2 else None, va=4 if rva else None)
    if stamp and sm == 3: stamp_mid(a, 3)
    WB = [32, 52, 72]
    arrive4()
    a("v_lshlrev_b32 v3, 16, v3")
    for i in range(20): a(f"v_add_f32 v{g.ACC+i}, v{g.ACC+i}, v3")
    if b2x:
        a(f"v_mov_b32 v5, {LWORD}")
        lds_wait(5, W_OP, "gt", 4, 6, 2)
        if odelay: a(f"s_sleep {odelay}")
        for k in range(17):
            a(f"buffer_load_dwordx4 {vr(OFR(k),4)}, v1, s[8:11], s20 offen sc1")
            a(f"s_add_u32 s20, s20, {4*32768}")
    wait4()
    if b2x:
        for k in range(17, 20):
            a(f"buffer_load_dwordx4 {vr(OFR(k),4)}, v1, s[8:11], s20 offen sc1")
            a(f"s_add_u32 s20, s20, {4*32768}")
    wdma(12, REDOFF); wdma(13, REDOFF + 5120)
    srd(a, 24, 74, 75, 0, 2048 * 1280)
    a(f"""
    v_and_b32 v5, 63, v0
    v_lshlrev_b32 v5, 4, v5
    v_add_u32 v6, 0x10000, v5
    v_add_u32 v7, 0x20000, v5
    s_waitcnt vmcnt({30 if b2x else 0})
    s_barrier
    """)
    if stamp and sm == 4: stamp_mid(a, 2)
    mark(4)
    def rd1(k, j):
        off = waddr(k) + j * 1024
        return f"ds_read_b128 {vr(WB[k%3]+4*j,4)}, v{5 + (off >> 16)} offset:{off & 65535}"
    for k in range(2):
        for j in range(5): a(rd1(k, j))
    def oload(k):
        return f"buffer_load_dwordx4 {vr(OFR(k),4)}, v1, s[8:11], s20 offen sc1\ns_add_u32 s20, s20, {4*32768}"
    def ochk(k):
        r = OFR(k)
        return f"v_max3_u32 v2, v{r}, v{r+1}, v{r+2}\nv_max_u32 v2, v2, v{r+3}\nv_cmp_eq_u32 vcc, {-2 if dbg == 5 else -1}, v2"
    a("s_mov_b32 s62, 0")
    ex = 10 if b2x else 0
    for k in range(20 if b2x else 17 if oe else 0, 20): a(oload(k))
    a(f"s_waitcnt vmcnt({19+ex})")
    a(ochk(0))
    a("s_nop 4")
    for k in range(20):
        a(f"s_cbranch_vccnz {N}_os{k}")
        a.label(f"{N}_ok{k}")
        a(f"s_waitcnt lgkmcnt({5 if k < 19 else 0})")
        if b2x and k == 10:
            a("s_waitcnt vmcnt(0)")
            a("s_barrier")
        for j in range(5):
            a(mfma16(g.ACC + 4 * j, WB[k % 3] + 4 * j, OFR(k), g.ACC + 4 * j))
            if k + 2 < 20: a(rd1(k + 2, j))
            if j == 1 and k < 19:
                a(f"s_waitcnt vmcnt({18-k+ex})")
                a(ochk(k + 1))
        late.append(f"""{N}_os{k}:
        s_mov_b32 s23, {k}
        s_add_u32 s20, s22, {k*4*32768}
        s_add_u32 s62, s62, 1
        s_cmp_ge_u32 s62, 0x4000
        s_cbranch_scc1 {N}_ok{k}
        s_sleep {ssleep}
        s_branch {N}_ol{k}
        {N}_oc{k}:
        s_waitcnt vmcnt(0)
        {ochk(k)}
        s_nop 4
        s_cbranch_vccnz {N}_os{k}
        s_branch {N}_ok{k}""")
    late.append("\n".join(f"{N}_ol{k}:\n{oload(k)}" for k in range(20)) + "\n" +
                "\n".join(f"s_cmp_eq_u32 s23, {k}\ns_cbranch_scc1 {N}_oc{k}" for k in range(19)) + f"\ns_branch {N}_oc19")
    if stamp and sm == 4: stamp_mid(a, 3)
    a("s_nop 4")
    pack_store(a, g, g.ACC, 24, 53, PLANE=0, rowstride=1280, mode="R", store_mod=omod)
    mark(5)
    spin()
    if stamp: stamp_end(a, 8, 70, 0, nw=8)
    a.label(f"{N}_end")
    a("s_endpgm")
    for i in stubs:
        a.label(f"{N}_ck{i}")
        a(f"s_setprio {eprio}")
        poll(f"{N}_ckp{i}", f"{N}_ckr{i}")
        a.label(f"{N}_ckr{i}")
        a("s_setprio 0")
        a(f"s_branch {N}_ckb{i}")
    for x in late: a(x)
    if near:
        L = a.lines
        ib = L.index("s_barrier")
        i_s = L.index(f"{N}_stg:"); i_w = L.index(f"{N}_w8:")
        i_wb = L.index("s_barrier", i_w)
        a.lines = L[:ib + 1] + [f"s_branch {N}_lnr"] + L[i_w:i_wb + 1] + [f"s_branch {N}_w8r"] + L[i_s:i_w] + \
                  [f"{N}_lnr:"] + L[ib + 1:i_s] + [f"{N}_w8r:"] + L[i_wb + 1:]
    return finish(a, N, 168, (256, 576, LDS))
```

```python
from mega2 import mega_kernel
from build import build
def mm(fn, **kw):
    open(fn, "w").write(build([mega_kernel("mega_kernel", **kw)]))
if __name__ == "__main__":
    B = dict(stamp=True, qs=2, sm=0)
    mm("n_a.s", **dict(B))
    mm("n_b.s", **dict(B, tmod=" sc1"))
    mm("n_c.s", **dict(B, tmod=" sc1", wmod=" sc1"))
    mm("n_d.s", **dict(B, tmod=" sc0"))
```
